```python
import torch

def _softmax(x, axis=-1):
    return torch.softmax(x, dim=axis)
def _gelu(x):
    return torch.nn.functional.gelu(x, approximate="tanh")
def _silu(x):
    return torch.nn.functional.silu(x)
def _sigmoid(x):
    return torch.sigmoid(x)
def _layernorm(x, axis=-1, eps=1e-5):
    m = x.mean(dim=axis, keepdim=True)
    v = x.var(dim=axis, keepdim=True, unbiased=False)
    return (x - m) / torch.sqrt(v + eps)
def _scatter_add(tgt, idx, src, axis=0):
    return tgt.clone().index_add_(axis, idx, src)
def _segment_sum(src, seg, n):
    out = torch.zeros((n,) + src.shape[1:], dtype=src.dtype)
    return out.index_add_(0, seg, src)
def _pad(x, pw):
    flat = tuple(v for pair in reversed(pw) for v in pair)
    return torch.nn.functional.pad(x, flat)

kernel_name = 'standalone__grouped_kv_mqa__prompt'

def setup_inputs():

    _w = (lambda a: (lambda t: t.to(torch.bfloat16) if t.is_floating_point() else t)(torch.as_tensor(a)))
    B, S, D, H = 1, 2048, 640, 32
    Dh = D // H
    return {
        "x": _w((lambda *s: torch.randn(*s, dtype=torch.bfloat16) * 0.05)(B, S, D)),
        "wq": _w((lambda *s: torch.randn(*s, dtype=torch.bfloat16) * 0.8)(D, H * Dh)),
        "wk": _w((lambda *s: torch.randn(*s, dtype=torch.bfloat16) * 0.8)(D, Dh)),
        "wv": _w((lambda *s: torch.randn(*s, dtype=torch.bfloat16) * 0.05)(D, Dh)),
        "wo": _w((lambda *s: torch.randn(*s, dtype=torch.bfloat16) * 0.05)(H * Dh, D)),
    }

def reference(x, wq, wk, wv, wo):
    B, S, D = x.shape
    H = 32
    Dh = D // H
    q = (lambda x, *d: x.permute(*d))((x @ wq).reshape(B, S, H, Dh), 0, 2, 1, 3)
    k = x @ wk
    v = x @ wv
    scores = torch.einsum("bhqd,bkd->bhqk", q, k) * (Dh ** -0.5)
    p = _softmax(scores, axis=-1)
    o = torch.einsum("bhqk,bkd->bhqd", p, v)
    return (lambda x, *d: x.permute(*d))(o, 0, 2, 1, 3).reshape(B, S, H * Dh) @ wo
```

```python
import re

class Asm:
    def __init__(self):
        self.lines = []
        self.vm = []
        self.lg = []
    def e(self, s):
        for l in s.strip("\n").split("\n"):
            self.lines.append("    " + l.strip())
    def c(self, s):
        self.lines.append("    ; " + s)
    def label(self, name):
        self.lines.append(name + ":")
    def raw(self, s):
        self.lines.append(s)
    def vload(self, s, tag):
        self.e(s); self.vm.append(tag)
    def wait_vm(self, tag):
        idx = max(i for i, t in enumerate(self.vm) if t == tag)
        n = len(self.vm) - 1 - idx
        assert n <= 63
        self.e(f"s_waitcnt vmcnt({n})")
        self.vm = self.vm[idx + 1:]
    def wait_vm_if(self, tag):
        if tag in self.vm: self.wait_vm(tag)
    def wait_vm0(self):
        self.e("s_waitcnt vmcnt(0)"); self.vm = []
    def lds(self, s, tag):
        self.e(s); self.lg.append(tag)
    def wait_lg(self, tag):
        if tag not in self.lg: return
        idx = max(i for i, t in enumerate(self.lg) if t == tag)
        n = len(self.lg) - 1 - idx
        n = min(n, 15)
        self.e(f"s_waitcnt lgkmcnt({n})")
        self.lg = self.lg[len(self.lg) - n:] if n else []
    def wait_lg0(self):
        self.e("s_waitcnt lgkmcnt(0)"); self.lg = []
    def text(self):
        return "\n".join(self.lines) + "\n"

def vr(base, n=1):
    return f"v{base}" if n == 1 else f"v[{base}:{base+n-1}]"
def sr(base, n=1):
    return f"s{base}" if n == 1 else f"s[{base}:{base+n-1}]"

_REG = re.compile(r"^(-?\|?)(?:abs\()?([vsa])(?:(\d+)|\[(\d+):(\d+)\])\)?\|?$")
def regs(tok):
    tok = tok.strip()
    if tok in ("vcc", "vcc_lo", "vcc_hi"): return {("s", 106), ("s", 107)}
    if tok in ("exec", "exec_lo", "exec_hi"): return {("s", 126), ("s", 127)}
    if tok == "m0": return {("s", 124)}
    m = _REG.match(tok)
    if not m: return set()
    f = m.group(2)
    if m.group(3) is not None: lo = hi = int(m.group(3))
    else: lo, hi = int(m.group(4)), int(m.group(5))
    return {(f, i) for i in range(lo, hi + 1)}

TRANS = ("v_exp_", "v_log_", "v_rcp_", "v_rsq_", "v_sqrt_", "v_sin_", "v_cos_")
def passes(op):
    if "32x32x4_2b" in op: return 16
    if "32x32" in op: return 8
    if "16x16" in op: return 4
    raise ValueError(op)

def parse(line):
    line = line.split(";")[0].strip()
    if not line or line.endswith(":") or line.startswith("."): return None
    parts = line.split(None, 1)
    op = parts[0]
    ops = []
    if len(parts) > 1:
        ops = [x.strip() for x in parts[1].split(",")]
        last = ops[-1].split()
        if last: ops[-1] = last[0]
    d = dict(op=op, w=set(), r=set(), kind="other", text=line, srcc=set(), ab=set(), data=set())
    R = [regs(x) for x in ops]
    if op.startswith("v_mfma"):
        d["kind"] = "mfma"; d["w"] = R[0]; d["ab"] = R[1] | R[2]; d["srcc"] = R[3]; d["r"] = R[1] | R[2] | R[3]; d["p"] = passes(op)
    elif op.startswith("v_smfmac"):
        d["kind"] = "mfma"; d["w"] = R[0]; d["ab"] = R[1] | R[2] | R[3]; d["srcc"] = R[0]; d["r"] = R[0] | R[1] | R[2] | R[3]; d["p"] = passes(op)
    elif op.startswith("v_"):
        d["kind"] = "valu"
        if op.startswith("v_cmp"):
            d["w"] = R[0]; d["r"] = set().union(*R[1:])
        elif op.startswith("v_permlane32_swap") or op.startswith("v_permlane16_swap"):
            d["w"] = R[0] | R[1]; d["r"] = R[0] | R[1]
        elif op.startswith("v_add_co") or op.startswith("v_addc_co"):
            d["w"] = R[0] | R[1]; d["r"] = set().union(*R[2:])
        else:
            d["w"] = R[0]; d["r"] = set().union(*R[1:]) if len(R) > 1 else set()
            if op.startswith("v_fmac") : d["r"] |= R[0]
    elif op.startswith("buffer_") or op.startswith("global_"):
        d["kind"] = "vmem"
        lds = " lds" in line
        if "load" in op and not lds:
            d["w"] = R[0]; d["r"] = set().union(*R[1:])
        else:
            d["r"] = set().union(*R)
            if "store" in op: d["data"] = R[0] if op.startswith("buffer_") else R[1]
            if lds: d["r"] |= {("s", 124)}; d["ldsdma"] = True
    elif op.startswith("ds_"):
        d["kind"] = "ds"
        if "read" in op: d["w"] = R[0]; d["r"] = set().union(*R[1:])
        else: d["r"] = set().union(*R)
    elif op.startswith("s_"):
        d["kind"] = "salu"
        if op in ("s_nop",): d["nop"] = int(ops[0], 0) + 1
        elif op.startswith(("s_cmp", "s_cbranch", "s_branch", "s_waitcnt", "s_barrier", "s_setprio", "s_endpgm", "s_sleep", "s_bitcmp")):
            d["r"] = set().union(*R) if R else set()
        else:
            d["w"] = R[0] if R else set(); d["r"] = set().union(*R[1:]) if len(R) > 1 else set()
    return d

def check(text, window=24):
    ins = []
    for ln, l in enumerate(text.split("\n"), 1):
        p = parse(l)
        if p: p["ln"] = ln; ins.append(p)
    probs = []
    for i, c in enumerate(ins):
        dist = 0
        for j in range(i - 1, max(-1, i - window - 1), -1):
            p = ins[j]
            if p["op"] in ("s_branch", "s_endpgm", "s_setpc_b64"): break
            need = 0
            vw = {x for x in p["w"] if x[0] in "va"}
            sw = {x for x in p["w"] if x[0] == "s"}
            if p["kind"] == "mfma":
                P = p["p"]
                t_ab = {4: 8, 8: 12, 16: 20}[P]; t_c = {4: 6, 8: 10, 16: 18}[P]
                if c["kind"] == "mfma":
                    if c["ab"] & vw: need = max(need, t_ab)
                    if c["srcc"] & vw and not (c["srcc"] == vw and c["p"] == P): need = max(need, t_c)
                    if c["w"] & vw and not (c["srcc"] & vw) : need = max(need, t_c)
                elif c["kind"] in ("valu", "vmem", "ds"):
                    if (c["r"] | c["w"]) & vw: need = max(need, t_ab)
                    if c["kind"] == "valu" and c["w"] & p["srcc"]: need = max(need, {4: 3, 8: 7, 16: 15}[P])
            if p["kind"] == "valu":
                if c["kind"] == "mfma" and c["r"] & vw: need = max(need, 2)
                if p["op"].startswith(TRANS) and c["kind"] in ("valu",) and not c["op"].startswith(TRANS) and c["r"] & vw: need = max(need, 1)
                if p["op"].startswith(TRANS) and c["kind"] in ("vmem", "ds") and c["r"] & vw: need = max(need, 1)
                if c["op"].startswith("v_permlane") and c["r"] & vw: need = max(need, 2)
                if c["op"].startswith(("v_readfirstlane", "v_readlane")) and c["r"] & vw: need = max(need, 1)
                if c["kind"] == "vmem" and c["r"] & sw: need = max(need, 5)
                if c["kind"] == "valu" and c["r"] & sw: need = max(need, 2)
                if "dpp" in c["text"] and c["r"] & vw: need = max(need, 2)
            if p["kind"] == "salu" and ("s", 124) in p["w"] and c.get("ldsdma"): need = max(need, 1)
            if p["kind"] == "vmem" and len(p["data"]) > 2 and c["w"] & p["data"]: need = max(need, 2)
            if need > dist:
                probs.append(f"line {c['ln']}: '{c['text']}' needs {need} states after line {p['ln']} '{p['text']}', has {dist}")
            dist += p.get("nop", 1)
    return probs
```

```python
import sys, math
from asmlib import *

NAME = "standalone__grouped_kv_mqa__prompt"
class Opt:
    debug = False
    D = 3
    SP = 128
    stages = (10,)
    prio = True
    force_fallback = False
opt = Opt()
for a in sys.argv[2:]:
    k, v = a.split("=")
    setattr(opt, k, eval(v))

A_K0, A_V0, A_V1, A_K1 = 0, 65536, 131072, 196608
A_F1 = 262144
A_F2 = A_F1 + 65536
A_EP = A_F2 + 65536
A_O = 1 << 20
A_DBG = 4 << 20
WS_BYTES = 8 << 20
L_W = 0
L_B = 102400
L_KVP = L_B + 28672
XSLOT = 6144
LDS_BYTES = L_B + 8 * XSLOT
sX, sWQ, sWKV, sWO, sOUT, sWS = 20, 24, 28, 32, 36, 40
sW, sTT, sKH, sHG, sTB, sT, sOM, sTAG, sXCD, sMAT = 44, 45, 46, 47, 48, 49, 50, 51, 52, 53
sT0, sT1, sT2, sT3 = 54, 55, 56, 57
sKV, sKVF = 58, 59
sO0, sO1 = 60, 61
sHGO = 62
sM0B = 63
sSPIN = 64
sOB = 65
sSC = 66
sSTAMP = 70
vLane, vL16, vL8, vK1a, vV0a, vV1a, vFa, vWoA, vWoB, vTr, vXch, vXchP, vFlag, vTmp0, vTmp1, vF2 = range(1, 17)
vQA, vQB, vQH = 18, 22, 26
vS = [28, 60]
vP = 92
vO = 108
vKV = 140
R = opt.D + 2
assert vKV + 14 * R <= 256
vXf = 28
vAcc = 68
vRing = 88
NRING = 13
vPart = 88

a = Asm()
nstamp = [0]
def stamp(name):
    if not opt.debug: return
    i = nstamp[0]; nstamp[0] += 1
    a.c(f"stamp {i}: {name}")
    a.e(f"s_memrealtime s[{sSTAMP+2*i}:{sSTAMP+2*i+1}]")
    a.wait_lg0()
    STAMPS.append(name)
STAMPS = []

def srd(base, lo, nbytes):
    a.e(f"s_mov_b32 s{base}, s{lo}\ns_mov_b32 s{base+1}, s{lo+1}\ns_mov_b32 s{base+2}, {nbytes}\ns_mov_b32 s{base+3}, 0x00020000")

def gemm(bregs, i0, i1, acc, ring, nring, first, ahead=7, pre=0):
    js = [(i, t) for i in range(i0, i1) for t in range(5)]
    issued = pre
    def rd(j):
        i, t = js[j]; f = ring + 4 * (j % nring)
        for q in range(2):
            a.lds(f"ds_read_b64_tr_b16 {vr(f+2*q,2)}, v{vTr} offset:{i*5120+q*2560+8*t}", ("fr", i, t))
    for j, (i, t) in enumerate(js):
        while issued < len(js) and issued <= j + ahead - 1 and issued < j + nring:
            rd(issued); issued += 1
        a.wait_lg(("fr", i, t))
        f = ring + 4 * (j % nring)
        c = "0" if (first and i == i0) else vr(acc + 4 * t, 4)
        a.e(f"v_mfma_f32_16x16x32_bf16 {vr(acc+4*t,4)}, {vr(f,4)}, {vr(bregs[i],4)}, {c}")
def gemm_prefetch(i0, i1, ring, nring, n):
    js = [(i, t) for i in range(i0, i1) for t in range(5)]
    for j in range(n):
        i, t = js[j]; f = ring + 4 * (j % nring)
        for q in range(2):
            a.lds(f"ds_read_b64_tr_b16 {vr(f+2*q,2)}, v{vTr} offset:{i*5120+q*2560+8*t}", ("fr", i, t))

def kvslot(n): return vKV + 14 * (n % R)
def kv_loads(n):
    b = kvslot(n); o = (n & 3) * 1024
    return [(f"buffer_load_dwordx4 {vr(b,4)}, v{vL16}, {sr(sWS,4)}, s{sKV} offen offset:{o} sc1", ("kv", n)),
            (f"buffer_load_dwordx2 {vr(b+4,2)}, v{vK1a}, {sr(sWS,4)}, s{sKV} offen offset:{o} sc1", ("kv", n)),
            (f"buffer_load_dwordx4 {vr(b+6,4)}, v{vV0a}, {sr(sWS,4)}, s{sKV} offen offset:{o} sc1", ("kv", n)),
            (f"buffer_load_dwordx4 {vr(b+10,4)}, v{vV1a}, {sr(sWS,4)}, s{sKV} offen offset:{o} sc1", ("kv", n))]
slow_stubs = []
def flag_load(c):
    a.vload(f"buffer_load_dword v{vFlag}, v{vFa}, {sr(sWS,4)}, s{sKVF} offen sc1", ("flag", c))
def flag_check(c):
    a.wait_vm_if(("flag", c))
    a.e(f"v_cmp_ne_u32 vcc, s{sTAG}, v{vFlag}")
    a.e(f"s_cbranch_vccnz L_slow{c}")
    a.label(f"L_back{c}")
    a.e(f"s_mov_b32 s{sKV}, s{sKVF}\ns_add_u32 s{sKVF}, s{sKVF}, 8192\ns_and_b32 s{sKVF}, s{sKVF}, 0xffff")
    slow_stubs.append((f"L_slow{c}", f"L_back{c}", f"buffer_load_dword v{vFlag}, v{vFa}, {sr(sWS,4)}, s{sKVF} offen sc1", vFlag))

a.raw(open("header.txt").read().replace("@LDS@", str(LDS_BYTES)))
a.e("s_cmp_ge_u32 s2, 256\ns_cbranch_scc1 L_end")
a.e("s_load_dwordx16 s[4:19], s[0:1], 0")
if opt.debug:
    a.e(f"s_memrealtime s[{sSTAMP}:{sSTAMP+1}]"); nstamp[0] = 1; STAMPS.append("start")
a.e(f"""v_lshrrev_b32 v{vTmp0}, 6, v0
v_and_b32 v{vLane}, 63, v0
s_and_b32 s{sXCD}, s2, 7
s_lshr_b32 s{sT0}, s2, 3
v_readfirstlane_b32 s{sW}, v{vTmp0}
s_and_b32 s{sHG}, s{sT0}, 7
s_lshr_b32 s{sT0}, s{sT0}, 3
s_lshl_b32 s{sTB}, s{sXCD}, 2
s_add_u32 s{sTB}, s{sTB}, s{sT0}
s_and_b32 s{sTT}, s{sW}, 3
s_lshr_b32 s{sKH}, s{sW}, 2
s_lshl_b32 s{sT}, s{sTB}, 2
s_add_u32 s{sT}, s{sT}, s{sTT}
s_lshr_b32 s{sT0}, s{sHG}, 1
s_and_b32 s{sMAT}, s{sHG}, 1
s_sub_u32 s{sOM}, s{sW}, s{sT0}
s_add_u32 s{sOM}, s{sOM}, 4
s_and_b32 s{sOM}, s{sOM}, 7
s_mul_i32 s{sHGO}, s{sHG}, 160
v_lshlrev_b32 v{vL16}, 4, v{vLane}
v_lshlrev_b32 v{vL8}, 3, v{vLane}
v_and_b32 v{vTmp0}, 15, v{vLane}
v_mul_u32_u24 v{vTmp0}, 1280, v{vTmp0}
v_and_b32 v{vTmp1}, 48, v{vLane}
v_add_u32 v{vTmp0}, v{vTmp0}, v{vTmp1}
s_mul_i32 s{sT1}, s{sT}, 20480
s_mul_i32 s{sT2}, s{sKH}, 640
s_add_u32 s{sT1}, s{sT1}, s{sT2}
s_mov_b32 s{sSPIN}, 0""")
a.e("s_waitcnt lgkmcnt(0)")
a.e(f"s_load_dword s{sTAG}, s[18:19], {A_EP}")
srd(sX, 4, 2621440)
srd(sWS, 18, WS_BYTES)
a.e(f"s_cmp_lt_u32 s{sOM}, 3\ns_cbranch_scc1 L_role_kv")
def xloads():
    for i in range(10):
        a.e(f"buffer_load_dwordx4 {vr(vXf+4*i,4)}, v{vTmp0}, {sr(sX,4)}, s{sT1} offen offset:{64*i}")
xloads()
srd(sWQ, 6, 819200)
a.e(f"""s_sub_u32 s{sT0}, s{sOM}, 3
s_lshl_b32 s{sT2}, s{sT0}, 6
v_add_u32 v{vTmp1}, s{sT2}, v{vLane}
v_mul_u32_u24 v{vFlag}, 6554, v{vTmp1}
v_lshrrev_b32 v{vFlag}, 16, v{vFlag}
v_mul_u32_u24 v{vF2}, 10, v{vFlag}
v_sub_u32 v{vTmp1}, v{vTmp1}, v{vF2}
v_lshlrev_b32 v{vTmp1}, 4, v{vTmp1}
v_and_b32 v{vF2}, 3, v{vFlag}
v_lshrrev_b32 v{vXch}, 4, v{vFlag}
v_lshl_add_u32 v{vF2}, v{vXch}, 2, v{vF2}
v_bfe_u32 v{vXch}, v{vFlag}, 2, 2
v_lshl_add_u32 v{vF2}, v{vXch}, 3, v{vF2}
v_mul_u32_u24 v{vF2}, 1280, v{vF2}
v_add_u32 v{vTmp1}, v{vTmp1}, v{vF2}
s_lshl_b32 s{sT0}, s{sT0}, 10""")
worder = [s for i in range(10) for s in (i, 10 + i)]
for s in worder:
    a.e(f"s_add_u32 m0, s{sT0}, {L_W + s*5120}\ns_add_u32 s{sT2}, s{sHGO}, {s*40960}")
    a.e(f"buffer_load_dwordx4 v{vTmp1}, {sr(sWQ,4)}, s{sT2} offen lds")
a.e("s_branch L_role_join")
a.label("L_role_kv")
a.e(f"""s_cmp_eq_u32 s{sMAT}, 0
s_cselect_b32 s{sWKV}, s8, s10
s_cselect_b32 s{sWKV+1}, s9, s11
s_mov_b32 s{sWKV+2}, 25600
s_mov_b32 s{sWKV+3}, 0x00020000
s_mul_i32 s{sT0}, s{sOM}, 9216""")
for grp in range(3):
    a.e(f"s_add_u32 m0, s{sT0}, {L_B + grp*4096}\ns_add_u32 s{sT2}, s{sT0}, {grp*4096}")
    for i in range(4 if grp < 2 else 1):
        a.e(f"buffer_load_dwordx4 v{vL16}, {sr(sWKV,4)}, s{sT2} offen offset:{1024*i} lds")
xloads()
a.label("L_role_join")
srd(sWO, 12, 819200)
srd(sOUT, 14, 2621440)
a.e(f"""s_lshl_b32 s{sT0}, s{sT}, 3
s_mul_i32 s{sOB}, s{sT0}, 2560
s_add_u32 s{sOB}, s{sOB}, {A_O}
s_mul_i32 s{sT0}, s{sHG}, 2560
s_add_u32 s{sT0}, s{sT0}, s{sOB}
s_lshl_b32 s{sT2}, s{sKH}, 10
s_add_u32 s{sO0}, s{sT0}, s{sT2}
s_lshl_b32 s{sT2}, s{sKH}, 2
s_add_u32 s{sO1}, s{sT0}, s{sT2}
s_add_u32 s{sO1}, s{sO1}, 2048
s_mul_i32 s{sT2}, s{sKH}, 10240
s_add_u32 s{sOB}, s{sOB}, s{sT2}
v_mov_b32 v{vAcc}, -1
v_mov_b32 v{vAcc+1}, -1
v_mov_b32 v{vAcc+2}, -1
v_mov_b32 v{vAcc+3}, -1""")
a.e(f"buffer_store_dwordx4 {vr(vAcc,4)}, v{vL16}, {sr(sWS,4)}, s{sO0} offen sc1")
a.e(f"buffer_store_dword v{vAcc}, v{vL8}, {sr(sWS,4)}, s{sO1} offen sc1")
a.e(f"""v_and_b32 v{vTmp0}, 31, v{vLane}
v_lshlrev_b32 v{vK1a}, 3, v{vTmp0}
v_add_u32 v{vK1a}, {A_K1}, v{vK1a}
v_and_b32 v{vV0a}, 3, v{vTmp0}
v_lshrrev_b32 v{vV1a}, 3, v{vTmp0}
v_lshl_add_u32 v{vV0a}, v{vV1a}, 2, v{vV0a}
v_bfe_u32 v{vV1a}, v{vTmp0}, 2, 1
v_mul_u32_u24 v{vV1a}, 10, v{vV1a}
v_add_u32 v{vV1a}, v{vV1a}, v{vV0a}
v_cmp_gt_u32 vcc, 10, v{vV0a}
v_and_b32 v{vTmp0}, 32, v{vLane}
s_nop 0
v_cndmask_b32 v{vV0a}, 20, v{vV1a}, vcc
v_add_u32 v{vV0a}, v{vV0a}, v{vTmp0}
v_lshlrev_b32 v{vV0a}, 4, v{vV0a}
v_add_u32 v{vV1a}, {A_V1}, v{vV0a}
v_add_u32 v{vV0a}, {A_V0}, v{vV0a}
v_and_b32 v{vFa}, 15, v{vLane}
v_mul_u32_u24 v{vFa}, {opt.SP}, v{vFa}
v_add_u32 v{vFa}, {A_F1}, v{vFa}
s_lshl_b32 s{sKVF}, s{sXCD}, 13
s_lshl_b32 s{sT0}, s{sKH}, 12
s_add_u32 s{sKVF}, s{sKVF}, s{sT0}
s_mul_i32 s{sT0}, s{sKH}, 51200
v_mul_u32_u24 v{vTr}, 40, v{vLane}
v_add_u32 v{vTr}, s{sT0}, v{vTr}
s_mul_i32 s{sT0}, s{sW}, {XSLOT}
s_add_u32 s{sT0}, s{sT0}, {L_B}
v_add_u32 v{vXch}, s{sT0}, v{vL16}
s_xor_b32 s{sT0}, s{sW}, 4
s_mul_i32 s{sT0}, s{sT0}, {XSLOT}
s_add_u32 s{sT0}, s{sT0}, {L_B}
v_add_u32 v{vXchP}, s{sT0}, v{vL16}
s_mul_i32 s{sM0B}, s{sW}, 640""")
a.e(f"""v_mul_u32_u24 v{vTmp0}, 6554, v{vLane}
v_lshrrev_b32 v{vTmp0}, 16, v{vTmp0}
v_mul_u32_u24 v{vTmp1}, 10, v{vTmp0}
v_sub_u32 v{vTmp1}, v{vLane}, v{vTmp1}
v_lshlrev_b32 v{vTmp1}, 4, v{vTmp1}
s_and_b32 s{sT0}, s{sTT}, 1
s_mul_i32 s{sT0}, s{sT0}, 20
s_lshr_b32 s{sT2}, s{sTT}, 1
s_mul_i32 s{sT2}, s{sT2}, 10
s_add_u32 s{sT0}, s{sT0}, s{sT2}
s_lshl_b32 s{sT2}, s{sKH}, 2
s_add_u32 s{sT2}, s{sT2}, s{sT0}
v_add_u32 v{vWoA}, s{sT2}, v{vTmp0}
v_mul_u32_u24 v{vWoA}, 1280, v{vWoA}
v_add_u32 v{vWoA}, v{vWoA}, v{vTmp1}
s_mul_i32 s{sT2}, s{sKH}, 80
s_add_u32 s{sT2}, s{sT2}, s{sT0}
s_add_u32 s{sT2}, s{sT2}, 8
v_lshrrev_b32 v{vWoB}, 1, v{vTmp0}
v_mul_u32_u24 v{vWoB}, 40, v{vWoB}
v_and_b32 v{vTmp0}, 1, v{vTmp0}
v_add_u32 v{vWoB}, v{vWoB}, v{vTmp0}
v_add_u32 v{vWoB}, s{sT2}, v{vWoB}
v_mul_u32_u24 v{vWoB}, 1280, v{vWoB}
v_add_u32 v{vWoB}, v{vWoB}, v{vTmp1}""")
SCALE = math.log2(math.e) / math.sqrt(20.0)
import struct
a.e(f"s_mov_b32 s{sSC}, 0x{struct.unpack('<I', struct.pack('<f', SCALE))[0]:08x}")
a.e(f"s_waitcnt lgkmcnt(0)\ns_mul_i32 s{sTAG}, s{sTAG}, 1664525\ns_add_u32 s{sTAG}, s{sTAG}, 1013904223")
vLo, vHi = vF2, vFlag
a.e(f"""v_lshrrev_b32 v{vTmp0}, 4, v{vLane}
v_bfe_u32 v{vTmp1}, v{vLane}, 2, 2
v_lshl_add_u32 v{vTmp0}, v{vTmp0}, 3, v{vTmp1}
v_mul_u32_u24 v{vTmp0}, 40, v{vTmp0}
s_mul_i32 s{sT0}, s{sKH}, 12800
s_add_u32 s{sT0}, s{sT0}, {L_B}
v_add_u32 v{vTmp0}, s{sT0}, v{vTmp0}
v_add_u32 v{vHi}, 32, v{vTmp0}
v_and_b32 v{vTmp1}, 3, v{vLane}
v_lshl_add_u32 v{vLo}, v{vTmp1}, 3, v{vTmp0}""")
a.e(f"s_cmp_lt_u32 s{sOM}, 3\ns_cbranch_scc0 L_b1\ns_waitcnt vmcnt(10)")
a.label("L_b1")
a.e("s_barrier")
stamp("B1")
a.e(f"s_and_b32 s{sT0}, s{sOM}, 3\ns_cmp_eq_u32 s{sT0}, 0\ns_cbranch_scc0 L_b2")
vKA = vAcc
def kvchain(mat):
    js = [(i, h) for i in range(10) for h in range(2)]
    issued = 0
    for j, (i, h) in enumerate(js):
        while issued < len(js) and issued <= j + 6:
            ii, hh = js[issued]; f = vRing + 4 * (issued % NRING)
            for q in range(2):
                a.lds(f"ds_read_b64_tr_b16 {vr(f+2*q,2)}, v{vHi if hh else vLo} offset:{ii*1280+q*160}", ("kf", ii, hh))
            issued += 1
        if j == 0:
            a.e(f"s_cmp_eq_u32 s{sOM}, 0\ns_cbranch_scc1 L_xw{mat}a\ns_waitcnt vmcnt(20)\ns_branch L_xw{mat}b")
            a.label(f"L_xw{mat}a"); a.e("s_waitcnt vmcnt(0)"); a.label(f"L_xw{mat}b")
        a.wait_lg(("kf", i, h))
        f = vRing + 4 * (j % NRING)
        c = "0" if i == 0 else vr(vKA + 4 * h, 4)
        A, B = (vr(f, 4), vr(vXf + 4 * i, 4)) if mat == 0 else (vr(vXf + 4 * i, 4), vr(f, 4))
        a.e(f"v_mfma_f32_16x16x32_bf16 {vr(vKA+4*h,4)}, {A}, {B}, {c}")
a.e(f"s_cmp_eq_u32 s{sMAT}, 0\ns_cbranch_scc0 L_chainv")
kvchain(0)
a.e("s_branch L_chaind")
a.label("L_chainv")
kvchain(1)
a.label("L_chaind")
a.e(f"s_cmp_eq_u32 s{sOM}, 0\ns_cbranch_scc1 L_b2")
a.e(f"v_add_u32 v{vTmp0}, {L_KVP}, v{vL16}\ns_nop 7")
a.e(f"ds_write_b128 v{vTmp0}, {vr(vKA,4)}\nds_write_b128 v{vTmp0}, {vr(vKA+4,4)} offset:1024\ns_waitcnt lgkmcnt(0)")
a.label("L_b2")
a.e("s_barrier")
stamp("B2")
a.e(f"s_cmp_eq_u32 s{sOM}, 0\ns_cbranch_scc0 L_pub_done")
a.e(f"v_add_u32 v{vTmp0}, {L_KVP}, v{vL16}")
a.e(f"ds_read_b128 {vr(vRing,4)}, v{vTmp0}\nds_read_b128 {vr(vRing+4,4)}, v{vTmp0} offset:1024")
a.e(f"""s_lshr_b32 s{sT0}, s{sT}, 1
s_and_b32 s{sT1}, s{sT}, 1
s_lshl_b32 s{sT2}, s{sT0}, 10
v_and_b32 v{vTmp0}, 15, v{vLane}
v_lshlrev_b32 v{vTmp0}, 4, v{vTmp0}
v_bfe_u32 v{vTmp1}, v{vLane}, 4, 1
v_lshrrev_b32 v{vLo}, 5, v{vLane}
s_waitcnt lgkmcnt(0)""")
for i in range(8):
    a.e(f"v_add_f32 v{vKA+i}, v{vKA+i}, v{vRing+i}")
for i in range(4):
    a.e(f"v_cvt_pk_bf16_f32 v{vRing+8+i}, v{vKA+2*i}, v{vKA+2*i+1}")
a.e(f"s_cmp_eq_u32 s{sMAT}, 0\ns_cbranch_scc0 L_stv")
a.e(f"""v_lshl_add_u32 v{vTmp0}, v{vLo}, 9, v{vTmp0}
v_lshl_add_u32 v{vTmp0}, v{vTmp1}, 3, v{vTmp0}
s_lshl_b32 s{sT3}, s{sT1}, 8
s_add_u32 s{sT3}, s{sT3}, s{sT2}
buffer_store_dwordx2 {vr(vRing+8,2)}, v{vTmp0}, {sr(sWS,4)}, s{sT3} offen sc1
s_lshl_b32 s{sT3}, s{sT1}, 7
s_add_u32 s{sT3}, s{sT3}, s{sT2}
s_add_u32 s{sT3}, s{sT3}, {A_K1}
s_mov_b64 exec, 0xffff
buffer_store_dwordx2 {vr(vRing+10,2)}, v{vL8}, {sr(sWS,4)}, s{sT3} offen sc1
s_branch L_st_done""")
a.label("L_stv")
a.e(f"""v_lshl_add_u32 v{vTmp0}, v{vTmp1}, 9, v{vTmp0}
v_lshl_add_u32 v{vTmp0}, v{vLo}, 3, v{vTmp0}
s_lshl_b32 s{sT3}, s{sT1}, 16
s_add_u32 s{sT3}, s{sT3}, s{sT2}
s_add_u32 s{sT3}, s{sT3}, {A_V0}
buffer_store_dwordx2 {vr(vRing+8,2)}, v{vTmp0}, {sr(sWS,4)}, s{sT3} offen sc1
s_mov_b32 exec_lo, 0x00100010
s_mov_b32 exec_hi, 0x00100010
v_mov_b32 v{vRing+10}, 0x3f803f80
v_mov_b32 v{vRing+11}, 0x3f803f80
s_mov_b32 exec_lo, 0x001f001f
s_mov_b32 exec_hi, 0x001f001f
buffer_store_dwordx2 {vr(vRing+10,2)}, v{vTmp0}, {sr(sWS,4)}, s{sT3} offen offset:256 sc1""")
a.label("L_st_done")
a.e(f"""s_mov_b64 exec, 1
s_lshr_b32 s{sT3}, s{sT0}, 2
s_lshl_b32 s{sT3}, s{sT3}, 12
s_and_b32 s{sT0}, s{sT0}, 3
s_lshl_b32 s{sT0}, s{sT0}, 2
s_lshl_b32 s{sT1}, s{sT1}, 1
s_add_u32 s{sT0}, s{sT0}, s{sT1}
s_add_u32 s{sT0}, s{sT0}, s{sMAT}
s_mul_i32 s{sT0}, s{sT0}, {opt.SP}
s_add_u32 s{sT3}, s{sT3}, s{sT0}
s_add_u32 s{sT3}, s{sT3}, {A_F1}
v_mov_b32 v{vTmp1}, s{sTAG}
v_mov_b32 v{vTmp0}, 0
s_waitcnt vmcnt(0)
buffer_store_dword v{vTmp1}, v{vTmp0}, {sr(sWS,4)}, s{sT3} offen sc1
s_mov_b64 exec, -1""")
a.label("L_pub_done")
stamp("published")
prev = 0
for si, st in enumerate(opt.stages):
    last = si == len(opt.stages) - 1
    if last:
        a.e("s_waitcnt vmcnt(0)")
    else:
        if si == 0:
            a.e(f"s_cmp_lt_u32 s{sOM}, 3\ns_cbranch_scc0 L_st0\ns_waitcnt vmcnt(0)")
            a.label("L_st0")
        a.e(f"s_waitcnt vmcnt({20 - 2*st})")
    a.e("s_barrier")
    stamp(f"B3.{si}")
    if last:
        a.e(f"s_cmp_eq_u32 s{sOM}, 1\ns_cbranch_scc0 L_f2d")
        a.e(f"""s_mov_b64 exec, 1
s_lshl_b32 s{sT0}, s{sTB}, 3
s_add_u32 s{sT0}, s{sT0}, s{sHG}
s_lshl_b32 s{sT0}, s{sT0}, 7
s_add_u32 s{sT0}, s{sT0}, {A_F2}
v_mov_b32 v{vTmp1}, s{sTAG}
v_mov_b32 v{vTmp0}, 0
buffer_store_dword v{vTmp1}, v{vTmp0}, {sr(sWS,4)}, s{sT0} offen sc1
s_mov_b64 exec, -1""")
        a.label("L_f2d")
        flag_load(0)
    gemm([vXf + 4 * i for i in range(10)], prev, st, vAcc, vRing, NRING, first=(prev == 0))
    prev = st
stamp("qgemm")
flag_check(0)
for n in range(min(opt.D, 4)):
    for t, tag in kv_loads(n): a.vload(t, tag)
assert opt.D <= 4
FL_LEAD = 2
if 4 - opt.D - FL_LEAD < 0: flag_load(1)
a.e("s_nop 3")
for t in range(5):
    a.e(f"ds_write_b128 v{vXch}, {vr(vAcc+4*t,4)} offset:{1024*t}")
a.e("s_waitcnt lgkmcnt(0)\ns_barrier")
stamp("B4")
for t in range(5):
    a.lds(f"ds_read_b128 {vr(vPart+4*t,4)}, v{vXchP} offset:{1024*t}", ("qp", t))
qdst = [vQA, vQA + 2, vQB, vQB + 2, vQH]
for t in range(5):
    a.wait_lg(("qp", t))
    for r in range(4):
        a.e(f"v_add_f32 v{vAcc+4*t+r}, v{vAcc+4*t+r}, v{vPart+4*t+r}")
    for r in range(4):
        a.e(f"v_mul_f32 v{vAcc+4*t+r}, s{sSC}, v{vAcc+4*t+r}")
    a.e(f"v_cvt_pk_bf16_f32 v{qdst[t]}, v{vAcc+4*t}, v{vAcc+4*t+1}")
    a.e(f"v_cvt_pk_bf16_f32 v{qdst[t]+1}, v{vAcc+4*t+2}, v{vAcc+4*t+3}")
for i in range(4):
    a.e(f"v_permlane32_swap_b32 v{vQA+i}, v{vQB+i}")
a.e(f"""v_and_b32 v{vTmp0}, 7, v{vLane}
s_lshl_b32 s{sT0}, s{sTB}, 3
v_add_u32 v{vTmp0}, s{sT0}, v{vTmp0}
v_lshlrev_b32 v{vTmp0}, 7, v{vTmp0}
v_add_u32 v{vTmp0}, {A_F2}, v{vTmp0}""")
def s2b(n): b = kvslot(n); S = vS[n % 2]; return f"v_mfma_f32_32x32x4_2b_bf16 {vr(S,32)}, {vr(b+4,2)}, {vr(vQH,2)}, 0"
def s16(n, x): b = kvslot(n); S = vS[n % 2] + 16 * x; return f"v_mfma_f32_32x32x16_bf16 {vr(S,16)}, {vr(b,4)}, {vr(vQB if x else vQA,4)}, {vr(S,16)}"
def pv(n, g):
    b = kvslot(n); O = vO + 16 * (g // 2)
    c = "0" if (n == 0 and g % 2 == 0) else vr(O, 16)
    return f"v_mfma_f32_32x32x16_bf16 {vr(O,16)}, {vr(b+6+4*(g%2),4)}, {vr(vP+4*g,4)}, {c}"
a.wait_vm(("kv", 0))
stamp("kv0")
a.e(s2b(0)); a.e("s_nop 15\ns_nop 1"); a.e(s16(0, 0)); a.e(s16(0, 1)); a.e("s_nop 10")
NS = 32
PRIO = {0: 3, 16: 2, 26: 1, 30: 0} if opt.prio else {}
for n in range(NS):
    a.c(f"step {n}")
    if n in PRIO: a.e(f"s_setprio {PRIO[n]}")
    S = vS[n % 2]
    ex = [f"v_exp_f32 v{S+i}, v{S+i}" for i in range(32)]
    cv = [f"v_cvt_pk_bf16_f32 v{vP+i}, v{S+2*i}, v{S+2*i+1}" for i in range(16)]
    E = lambda lo, hi: [a.e(x) for x in ex[lo:hi]]
    C = lambda lo, hi: [a.e(x) for x in cv[lo:hi]]
    nl = n + opt.D
    L = kv_loads(nl) if nl < NS else []
    def LD(i):
        if i < len(L): a.vload(*L[i])
    nxt = n + 1 < NS
    E(0, 2)
    if n > 0: a.e(pv(n - 1, 3))
    E(2, 6)
    if nxt:
        a.wait_vm_if(("kv", n + 1))
        a.e(s2b(n + 1))
    E(6, 8)
    if nl < NS and nl % 4 == 0:
        flag_check(nl // 4)
    LD(0); C(0, 4); LD(1); E(8, 10); LD(2); E(10, 12); LD(3); E(12, 13)
    a.e(pv(n, 0))
    E(13, 16)
    if (nl + FL_LEAD) % 4 == 0 and (nl + FL_LEAD) // 4 < 8 and not ((nl + FL_LEAD) // 4 == 1 and 4 - opt.D - FL_LEAD < 0):
        flag_load((nl + FL_LEAD) // 4)
    C(4, 8); E(16, 18)
    a.e(pv(n, 1))
    E(18, 22)
    if nxt: a.e(s16(n + 1, 0))
    E(22, 24)
    s = n - 1
    if 0 <= s < 20:
        pp, u = divmod(s, 5)
        rowb = 160 * pp + (40 * u if u < 4 else 0)
        a.e(f"s_add_u32 m0, s{sM0B}, {L_W + s*5120}\ns_add_u32 s{sT2}, s{sHGO}, {rowb*1280}\ns_mov_b32 exec_hi, 0xff")
        a.vload(f"buffer_load_dwordx4 v{vWoA if u < 4 else vWoB}, {sr(sWO,4)}, s{sT2} offen lds", ("wo", s))
        a.e("s_mov_b32 exec_hi, -1")
    if n == 24:
        a.vload(f"buffer_load_dword v{vF2}, v{vTmp0}, {sr(sWS,4)}, 0 offen sc1", ("f2",))
    C(8, 12); E(24, 26)
    a.e(pv(n, 2))
    E(26, 30)
    if nxt: a.e(s16(n + 1, 1))
    E(30, 32); C(12, 16)
a.e("s_nop 1")
a.e(pv(NS - 1, 3))
a.wait_vm0()
stamp("loop end")
a.e(f"v_cmp_ne_u32 vcc, s{sTAG}, v{vF2}\ns_cbranch_vccnz L_slowf2")
a.label("L_backf2")
slow_stubs.append(("L_slowf2", "L_backf2", f"buffer_load_dword v{vF2}, v{vTmp0}, {sr(sWS,4)}, 0 offen sc1", vF2))
vSum = 28
vRecv = 40
vOF = 52
vAcc2 = 28
a.e("s_nop 9")
a.e(f"s_cmp_eq_u32 s{sKH}, 0\ns_cbranch_scc0 L_sendA")
for i in range(3): a.e(f"ds_write_b128 v{vXch}, {vr(vO+16+4*i,4)} offset:{1024*i}")
a.e("s_branch L_sent")
a.label("L_sendA")
for i in range(3): a.e(f"ds_write_b128 v{vXch}, {vr(vO+4*i,4)} offset:{1024*i}")
a.label("L_sent")
a.e("s_waitcnt lgkmcnt(0)\ns_barrier")
stamp("B5")
for i in range(3): a.e(f"ds_read_b128 {vr(vRecv+4*i,4)}, v{vXchP} offset:{1024*i}")
a.e(f"s_cmp_eq_u32 s{sKH}, 0\ns_waitcnt lgkmcnt(0)\ns_cbranch_scc0 L_keepB")
for i in range(11): a.e(f"v_add_f32 v{vSum+i}, v{vO+i}, v{vRecv+i}")
a.e("s_branch L_kept")
a.label("L_keepB")
for i in range(11): a.e(f"v_add_f32 v{vSum+i}, v{vO+16+i}, v{vRecv+i}")
a.label("L_kept")
a.e(f"v_add_f32 v{vRecv}, abs(v{vSum}), abs(v{vSum+1})")
for i in range(2, 10): a.e(f"v_add_f32 v{vRecv}, v{vRecv}, abs(v{vSum+i})")
a.e(f"""s_mov_b32 s{sT0}, 0x21800000
s_mov_b32 s{sT1}, 0x5d800000
s_mov_b32 s{sT2}, 0x7f800000
v_cmp_nle_f32 vcc, s{sT0}, v{vSum+10}
v_cmp_nge_f32 s[{sT0+14}:{sT0+15}], s{sT1}, v{vSum+10}
s_or_b64 vcc, vcc, s[{sT0+14}:{sT0+15}]
v_cmp_ngt_f32 s[{sT0+14}:{sT0+15}], s{sT2}, v{vRecv}
s_or_b64 vcc, vcc, s[{sT0+14}:{sT0+15}]""")
a.e("s_branch L_fallback" if opt.force_fallback else "s_cbranch_vccnz L_fallback")
a.label("L_norm")
a.e(f"v_rcp_f32 v{vSum+10}, v{vSum+10}\ns_nop 0")
for i in range(10): a.e(f"v_mul_f32 v{vSum+i}, v{vSum+i}, v{vSum+10}")
for i in range(5): a.e(f"v_cvt_pk_bf16_f32 v{vRecv+i}, v{vSum+2*i}, v{vSum+2*i+1}")
for i in range(5): a.e(f"v_min_u32 v{vRecv+i}, -2, v{vRecv+i}")
a.e(f"buffer_store_dwordx4 {vr(vRecv,4)}, v{vL16}, {sr(sWS,4)}, s{sO0} offen sc1")
a.e(f"buffer_store_dword v{vRecv+4}, v{vL8}, {sr(sWS,4)}, s{sO1} offen sc1")
stamp("O stored")
vRing2 = 92; NRING2 = 41
gemm_prefetch(0, 10, vRing2, NRING2, 40)
a.label("L_opoll")
for j in range(4):
    pp, jj = divmod(j, 2)
    base = vOF + 20 * pp
    a.e(f"s_add_u32 s{sT0}, s{sOB}, {2560*j}")
    a.e(f"buffer_load_dwordx4 {vr(base+8*jj,4)}, v{vL16}, {sr(sWS,4)}, s{sT0} offen sc1")
    a.e(f"buffer_load_dwordx4 {vr(base+8*jj+4,4)}, v{vL16}, {sr(sWS,4)}, s{sT0} offen offset:1024 sc1")
    a.e(f"buffer_load_dwordx2 {vr(base+16+2*jj,2)}, v{vL8}, {sr(sWS,4)}, s{sT0} offen offset:2048 sc1")
a.e("s_waitcnt vmcnt(0)")
a.e(f"v_max_u32 v{vTmp0}, v{vOF}, v{vOF+1}")
for i in range(2, 40, 2): a.e(f"v_max3_u32 v{vTmp0}, v{vTmp0}, v{vOF+i}, v{vOF+i+1}")
a.e(f"v_cmp_eq_u32 vcc, -1, v{vTmp0}\ns_cbranch_vccz L_ogot")
a.e(f"s_add_u32 s{sSPIN}, s{sSPIN}, 1\ns_cmp_lt_u32 s{sSPIN}, 400000\ns_cbranch_scc1 L_opoll\ns_branch L_end")
a.label("L_ogot")
stamp("O polled")
gemm([vOF + 4 * i for i in range(10)], 0, 10, vAcc2, vRing2, NRING2, first=True, pre=40 if not opt.debug else 40)
stamp("ogemm")
a.e(f"""v_and_b32 v{vTmp0}, 15, v{vLane}
v_mul_u32_u24 v{vTmp0}, 1280, v{vTmp0}
v_lshrrev_b32 v{vTmp1}, 4, v{vLane}
v_mul_u32_u24 v{vTmp1}, 40, v{vTmp1}
v_add_u32 v{vTmp0}, v{vTmp0}, v{vTmp1}
s_mul_i32 s{sT1}, s{sT}, 20480
s_add_u32 s{sT1}, s{sT1}, s{sHGO}
s_nop 1""")
a.e(f"s_cmp_eq_u32 s{sKH}, 0\ns_cbranch_scc0 L_o1")
for t in (3, 4): a.e(f"ds_write_b128 v{vXch}, {vr(vAcc2+4*t,4)} offset:{3072+1024*(t-3)}")
a.e("s_waitcnt lgkmcnt(0)\ns_barrier")
for t in range(3): a.e(f"ds_read_b128 {vr(vOF+4*t,4)}, v{vXchP} offset:{3072+1024*t}")
a.e("s_waitcnt lgkmcnt(0)")
for i in range(12): a.e(f"v_add_f32 v{vAcc2+i}, v{vAcc2+i}, v{vOF+i}")
for i in range(6): a.e(f"v_cvt_pk_bf16_f32 v{vOF+16+i}, v{vAcc2+2*i}, v{vAcc2+2*i+1}")
a.e(f"buffer_store_dwordx4 {vr(vOF+16,4)}, v{vTmp0}, {sr(sOUT,4)}, s{sT1} offen")
a.e(f"buffer_store_dwordx2 {vr(vOF+20,2)}, v{vTmp0}, {sr(sOUT,4)}, s{sT1} offen offset:16")
a.e("s_branch L_fin")
a.label("L_o1")
for t in range(3): a.e(f"ds_write_b128 v{vXch}, {vr(vAcc2+4*t,4)} offset:{3072+1024*t}")
a.e("s_waitcnt lgkmcnt(0)\ns_barrier")
for t in range(2): a.e(f"ds_read_b128 {vr(vOF+4*t,4)}, v{vXchP} offset:{3072+1024*t}")
a.e("s_waitcnt lgkmcnt(0)")
for i in range(8): a.e(f"v_add_f32 v{vAcc2+12+i}, v{vAcc2+12+i}, v{vOF+i}")
for i in range(4): a.e(f"v_cvt_pk_bf16_f32 v{vOF+16+i}, v{vAcc2+12+2*i}, v{vAcc2+12+2*i+1}")
a.e(f"buffer_store_dwordx4 {vr(vOF+16,4)}, v{vTmp0}, {sr(sOUT,4)}, s{sT1} offen offset:24")
a.label("L_fin")
a.e(f"s_or_b32 s{sT0}, s2, s{sW}\ns_cmp_eq_u32 s{sT0}, 0\ns_cbranch_scc0 L_noep")
a.e(f"s_mov_b64 exec, 1\nv_mov_b32 v{vTmp1}, s{sTAG}\nv_mov_b32 v{vTmp0}, {A_EP}\nbuffer_store_dword v{vTmp1}, v{vTmp0}, {sr(sWS,4)}, 0 offen sc1\ns_mov_b64 exec, -1")
a.label("L_noep")
if opt.debug:
    a.e("s_waitcnt vmcnt(0)")
    stamp("end")
    a.e(f"s_lshl_b32 s{sT0}, s2, 3\ns_add_u32 s{sT0}, s{sT0}, s{sW}\ns_lshl_b32 s{sT0}, s{sT0}, 7\ns_add_u32 s{sT0}, s{sT0}, {A_DBG}\ns_mov_b64 exec, 1\nv_mov_b32 v{vTmp0}, 0")
    for i in range(nstamp[0]):
        a.e(f"v_mov_b32 v{vTmp1}, s{sSTAMP+2*i}\nbuffer_store_dword v{vTmp1}, v{vTmp0}, {sr(sWS,4)}, s{sT0} offen offset:{4*i}")
    a.e(f"v_mov_b32 v{vTmp1}, s{sSPIN}\nbuffer_store_dword v{vTmp1}, v{vTmp0}, {sr(sWS,4)}, s{sT0} offen offset:124")
a.label("L_end")
a.e("s_endpgm")
for lab, back, ld, reg in slow_stubs:
    a.label(lab)
    a.e(f"s_add_u32 s{sSPIN}, s{sSPIN}, 1\ns_cmp_lt_u32 s{sSPIN}, 400000\ns_cbranch_scc0 L_end")
    a.e(ld)
    a.e(f"s_waitcnt vmcnt(0)\nv_cmp_ne_u32 vcc, s{sTAG}, v{reg}\ns_cbranch_vccnz {lab}\ns_branch {back}")
a.label("L_fallback")
fS = 60; fM0, fM1 = 40, 41; fK = vKV
def f_scores():
    a.e(f"buffer_load_dwordx4 {vr(fK,4)}, v{vL16}, {sr(sWS,4)}, s{sT0} offen sc1")
    a.e(f"buffer_load_dwordx2 {vr(fK+4,2)}, v{vK1a}, {sr(sWS,4)}, s{sT0} offen sc1")
    a.e(f"buffer_load_dwordx4 {vr(fK+6,4)}, v{vV0a}, {sr(sWS,4)}, s{sT0} offen sc1")
    a.e(f"buffer_load_dwordx4 {vr(fK+10,4)}, v{vV1a}, {sr(sWS,4)}, s{sT0} offen sc1")
    a.e("s_waitcnt vmcnt(0)")
    a.e(f"v_mfma_f32_32x32x4_2b_bf16 {vr(fS,32)}, {vr(fK+4,2)}, {vr(vQH,2)}, 0\ns_nop 15\ns_nop 1")
    a.e(f"v_mfma_f32_32x32x16_bf16 {vr(fS,16)}, {vr(fK,4)}, {vr(vQA,4)}, {vr(fS,16)}")
    a.e(f"v_mfma_f32_32x32x16_bf16 {vr(fS+16,16)}, {vr(fK,4)}, {vr(vQB,4)}, {vr(fS+16,16)}\ns_nop 11")
a.e(f"v_mov_b32 v{fM0}, 0xff800000\nv_mov_b32 v{fM1}, 0xff800000\ns_mov_b32 s{sT0}, 0")
a.label("L_fb1")
f_scores()
for i in range(0, 16, 2):
    a.e(f"v_max3_f32 v{fM0}, v{fM0}, v{fS+i}, v{fS+i+1}\nv_max3_f32 v{fM1}, v{fM1}, v{fS+16+i}, v{fS+17+i}")
a.e(f"s_add_u32 s{sT0}, s{sT0}, 1024\ns_cmp_lt_u32 s{sT0}, 65536\ns_cbranch_scc1 L_fb1")
for m in (fM0, fM1):
    a.e(f"v_mov_b32 v{fM1+1}, v{m}\ns_nop 1\nv_permlane32_swap_b32 v{m}, v{fM1+1}\ns_nop 1\nv_max_f32 v{m}, v{m}, v{fM1+1}")
for i in range(32): a.e(f"v_mov_b32 v{vO+i}, 0")
a.e(f"s_mov_b32 s{sT0}, 0")
a.label("L_fb2")
f_scores()
for i in range(32): a.e(f"v_sub_f32 v{fS+i}, v{fS+i}, v{fM0 if i < 16 else fM1}")
for i in range(32): a.e(f"v_exp_f32 v{fS+i}, v{fS+i}")
a.e("s_nop 0")
for i in range(16): a.e(f"v_cvt_pk_bf16_f32 v{vP+i}, v{fS+2*i}, v{fS+2*i+1}")
a.e("s_nop 1")
for g in range(4):
    O = vO + 16 * (g // 2)
    a.e(f"v_mfma_f32_32x32x16_bf16 {vr(O,16)}, {vr(fK+6+4*(g%2),4)}, {vr(vP+4*g,4)}, {vr(O,16)}")
a.e(f"s_add_u32 s{sT0}, s{sT0}, 1024\ns_cmp_lt_u32 s{sT0}, 65536\ns_cbranch_scc1 L_fb2")
a.e(f"s_nop 15\ns_cmp_eq_u32 s{sKH}, 0\ns_cbranch_scc0 L_fbB")
for i in range(11): a.e(f"v_mov_b32 v{vSum+i}, v{vO+i}")
a.e("s_branch L_norm")
a.label("L_fbB")
for i in range(11): a.e(f"v_mov_b32 v{vSum+i}, v{vO+16+i}")
a.e("s_branch L_norm")
a.raw(open("footer.txt").read())
txt = a.text()
for p in check(txt): print("HAZARD", p, file=sys.stderr)
open(sys.argv[1], "w").write(txt)
if opt.debug: open(sys.argv[1] + ".stamps", "w").write("\n".join(STAMPS))
```

```python
import sys, os, subprocess, struct, ctypes
sys.path.insert(0, "cdna_kernels")
import numpy as np
import cdna_launch as cl

HEAD = """; @launch grid=({grid},1,1) block=({block},1,1) lds={lds}
.amdgcn_target "amdgcn-amd-amdhsa--gfx950"
.text
.globl mb_kernel
.p2align 8
.type mb_kernel,@function
mb_kernel:
    s_load_dwordx2 s[4:5], s[0:1], 0
    s_waitcnt lgkmcnt(0)
    s_mov_b32 s8, s4
    s_mov_b32 s9, s5
    s_mov_b32 s10, 0x1000000
    s_mov_b32 s11, 0x00020000
    v_lshrrev_b32 v1, 6, v0
    v_and_b32 v2, 63, v0
    s_mul_i32 s3, s2, {waves}
    v_add_u32 v1, s3, v1
    v_lshlrev_b32 v1, 3, v1
    v_cvt_f32_u32 v3, v2
    v_mul_f32 v3, 0xbc800000, v3
"""
TAIL = """
    s_memtime s[14:15]
    s_waitcnt lgkmcnt(0)
    s_sub_u32 s14, s14, s12
    s_subb_u32 s15, s15, s13
    v_mov_b32 v4, s14
    v_mov_b32 v5, s15
    v_cmp_eq_u32 vcc, 0, v2
    s_and_saveexec_b64 s[16:17], vcc
    buffer_store_dwordx2 v[4:5], v1, s[8:11], 0 offen
    s_waitcnt vmcnt(0)
    s_endpgm
.section .rodata,"a"
.p2align 6
.amdhsa_kernel mb_kernel
  .amdhsa_next_free_vgpr {vgpr}
  .amdhsa_next_free_sgpr 64
  .amdhsa_accum_offset {accum}
  .amdhsa_group_segment_fixed_size 0
  .amdhsa_kernarg_size 8
  .amdhsa_user_sgpr_count 2
  .amdhsa_user_sgpr_kernarg_segment_ptr 1
  .amdhsa_system_sgpr_workgroup_id_x 1
.end_amdhsa_kernel
"""

def build(name, body, init="", iters=200, block=256, grid=256, vgpr=128, lds=0):
    waves = block // 64
    s = HEAD.format(grid=grid, block=block, lds=lds, waves=waves)
    for r in range(8, vgpr):
        s += f"    v_mov_b32 v{r}, v3\n"
    s += init + "\n"
    s += f"    s_mov_b32 s20, {iters}\n"
    s += "    s_barrier\n"
    s += "    s_memtime s[12:13]\n    s_waitcnt lgkmcnt(0)\n"
    s += ".p2align 6\nL_loop:\n" + body + "\n"
    s += "    s_sub_u32 s20, s20, 1\n    s_cmp_lg_u32 s20, 0\n    s_cbranch_scc1 L_loop\n"
    s += TAIL.format(vgpr=vgpr, accum=(vgpr + 3) // 4 * 4)
    os.makedirs("mb", exist_ok=True)
    src = f"mb/{name}.s"
    open(src, "w").write(cl.with_harness_metadata(s, "mb_kernel", 1))
    co = f"mb/{name}.co"
    r = subprocess.run(["clang", "-x", "assembler", "-target", "amdgcn-amd-amdhsa",
                        "-mcpu=gfx950", src, "-o", co], capture_output=True, text=True)
    if r.returncode != 0:
        print(name, "ASM FAIL", r.stderr[:2000]); return None
    return co

def run(name, body, init="", iters=200, block=256, grid=256, vgpr=128, lds=0, per=1):
    co = build(name, body, init, iters, block, grid, vgpr, lds)
    if co is None: return
    if not os.path.exists('/dev/kfd'):
        print(name, "assembled"); return
    k = cl.AsmKernel(co, "mb_kernel")
    waves = block // 64
    buf = cl.DeviceBuffer(0x1000000)
    ka = cl.pack_ptr_kernargs([buf.ptr])
    for _ in range(3):
        k.launch((grid, 1, 1), (block, 1, 1), ka, lds)
        cl.hip_check(cl._hip.hipDeviceSynchronize())
    out = buf.to_numpy(np.uint64, (grid * waves,)).astype(np.float64)
    print(f"{name:40s} block={block:4d} cyc/iter: med {np.median(out)/iters:9.2f} min {out.min()/iters:9.2f} max {out.max()/iters:9.2f}  per-unit {np.median(out)/iters/per:7.3f}", flush=True)
    k.unload(); buf.free()
```

```python
import sys, os, subprocess, ctypes, re
sys.path.insert(0, "cdna_kernels")
import numpy as np
import cdna_launch as cl
from mb import HEAD, TAIL
def f2bf(x): return ((np.asarray(x, np.float32).view(np.uint32) + 0x8000) >> 16).astype(np.uint16)
NST = 12
def step(j, v):
    q4 = v.get("q4")
    RING = 4 if q4 else 6
    KV = 176 if q4 else 144
    t = (lambda x: x // 2) if q4 else (lambda x: x)
    S = 32 + 32 * (j % 2); Sn = 32 + 32 * ((j + 1) % 2)
    P = 96
    kb = KV + 16 * (t(j + 1) % RING); vb = KV + 16 * (t(j) % RING); vp = KV + 16 * (t(j + NST - 1) % RING); lb = KV + 16 * ((t(j) + RING - 2) % RING)
    ex = [f"v_exp_f32 v{S+i}, v{S+i}" for i in range(32)]
    if v.get("perm"): cv = [f"v_perm_b32 v{P+i}, v{S+2*i+1}, v{S+2*i}, s30" for i in range(16)]
    else: cv = [f"v_cvt_pk_bf16_f32 v{P+i}, v{S+2*i}, v{S+2*i+1}" for i in range(16)]
    qo = 240 if (q4 and (j + 1) % 2) else 16
    s2 = f"v_mfma_f32_32x32x4_2b_bf16 v[{Sn}:{Sn+31}], v[{kb+4}:{kb+5}], v[{qo+8}:{qo+9}], 0"
    sa = f"v_mfma_f32_32x32x16_bf16 v[{Sn}:{Sn+15}], v[{kb}:{kb+3}], v[{qo}:{qo+3}], v[{Sn}:{Sn+15}]"
    sb = f"v_mfma_f32_32x32x16_bf16 v[{Sn+16}:{Sn+31}], v[{kb}:{kb+3}], v[{qo+4}:{qo+7}], v[{Sn+16}:{Sn+31}]"
    def pv(g, vb, jj):
        O = 112 + 16 * (g // 2) + (32 * (jj % 2) if q4 else 0)
        return f"v_mfma_f32_32x32x16_bf16 v[{O}:{O+15}], v[{vb+8+4*(g%2)}:{vb+11+4*(g%2)}], v[{P+4*g}:{P+4*g+3}], v[{O}:{O+15}]"
    sc = "" if v.get("plain") else " sc1"
    if v.get("nt"): sc = " nt"
    va = "v5" if v.get("oob") else "v6"
    ld = []; w = []
    if v.get("lds"):
        o = (j % 12) * 4096
        ld = [f"ds_read_b128 v[{lb}:{lb+3}], v8 offset:{o}", f"ds_read_b64 v[{lb+4}:{lb+5}], v9 offset:{o+3072}",
              f"ds_read_b128 v[{lb+8}:{lb+11}], v8 offset:{o+1024}", f"ds_read_b128 v[{lb+12}:{lb+15}], v8 offset:{o+2048}"]
        w = [f"s_waitcnt lgkmcnt(8)"]
    elif v.get("loads", True):
        ld = [f"buffer_load_dwordx4 v[{lb}:{lb+3}], v6, s[24:27], s28 offen{sc}",
              f"buffer_load_dwordx2 v[{lb+4}:{lb+5}], v7, s[24:27], s28 offen offset:3072{sc}",
              f"buffer_load_dwordx4 v[{lb+8}:{lb+11}], {va}, s[24:27], s28 offen offset:1024{sc}",
              f"buffer_load_dwordx4 v[{lb+12}:{lb+15}], {va}, s[24:27], s28 offen offset:2048{sc}",
              "s_add_u32 s28, s28, 4096", "s_and_b32 s28, s28, 0x3ffff"]
        w = [f"s_waitcnt vmcnt({4*(RING-4)})"]
        if q4:
            if j % 2 == 0: ld = ["", ld[0], "", ld[1]]; w = []
            else: ld = ["", ld[2], "", ld[3], ld[4], ld[5]]; w = ["s_waitcnt vmcnt(2)"]
    L = ld + [""] * (6 - len(ld))
    seq = ex[0:2] + [pv(3, vp, j - 1)] + ex[2:6] + w + [s2] + ex[6:8] + [L[0]] + cv[0:4] + [L[1]] + ex[8:10] + [L[2]] + ex[10:12] + [L[3]] + ex[12:13] + [pv(0, vb, j)] + ex[13:16] + [L[4]] + cv[4:8] + [L[5]] + ex[16:18] + [pv(1, vb, j)] \
        + ex[18:22] + [sa] + ex[22:24] + cv[8:12] + ex[24:26] + [pv(2, vb, j)] + ex[26:30] + [sb] + ex[30:32] + cv[12:16]
    return "".join("    " + x + "\n" for x in seq if x)
def build(name, v, iters):
    block = 512
    q4 = v.get("q4")
    RING = 4 if q4 else 6
    KV = 176 if q4 else 144
    s = HEAD.format(grid=256, block=block, lds=0, waves=8)
    s += "    v_lshlrev_b32 v1, 1, v1\n"
    s += """
    s_mov_b32 s24, s4
    s_mov_b32 s25, s5
    s_mov_b32 s27, 0x00020000
    s_add_u32 s24, s24, 0x100000
    s_addc_u32 s25, s25, 0
    s_mov_b32 s26, 0x100000
    s_mov_b32 s30, 0x07060302
    v_lshlrev_b32 v6, 4, v2
    v_and_b32 v7, 31, v2
    v_cmp_lt_u32 vcc, 20, v7
    v_mov_b32 v5, 0x800000
    v_cndmask_b32 v5, v6, v5, vcc
    v_lshlrev_b32 v7, 3, v7
    v_lshrrev_b32 v4, 8, v0
    s_nop 1
    v_readfirstlane_b32 s28, v4
    s_nop 3
    s_mul_i32 s31, s28, 49152
    v_add_u32 v8, s31, v6
    v_add_u32 v9, s31, v7
    s_lshl_b32 s28, s28, 17
    s_mov_b32 s29, 0x40000
"""
    for r in list(range(28, 256)): s += f"    v_mov_b32 v{r}, 0\n"
    s += """
    buffer_load_dwordx4 v[16:19], v6, s[24:27], s29 offen
    buffer_load_dwordx4 v[20:23], v6, s[24:27], s29 offen offset:1024
    buffer_load_dwordx4 v[24:27], v6, s[24:27], s29 offen offset:2048
    buffer_load_dwordx4 v[240:243], v6, s[24:27], s29 offen offset:1024
    buffer_load_dwordx4 v[244:247], v6, s[24:27], s29 offen offset:2048
    buffer_load_dwordx4 v[248:251], v6, s[24:27], s29 offen offset:0
"""
    if v.get("lds"):
        for t in range(12):
            for q in range(4):
                s += f"    buffer_load_dwordx4 v[32:35], v6, s[24:27], s28 offen offset:{q*1024}\n    s_waitcnt vmcnt(0)\n    ds_write_b128 v8, v[32:35] offset:{t*4096+q*1024}\n    s_waitcnt lgkmcnt(0)\n"
            s += "    s_add_u32 s28, s28, 4096\n"
    for r in range(RING):
        lb = KV + 16 * r
        s += f"""    buffer_load_dwordx4 v[{lb}:{lb+3}], v6, s[24:27], s28 offen
    buffer_load_dwordx2 v[{lb+4}:{lb+5}], v7, s[24:27], s28 offen offset:3072
    buffer_load_dwordx4 v[{lb+8}:{lb+11}], v6, s[24:27], s28 offen offset:1024
    buffer_load_dwordx4 v[{lb+12}:{lb+15}], v6, s[24:27], s28 offen offset:2048
    s_add_u32 s28, s28, 4096
"""
    s += "    s_waitcnt vmcnt(0)\n"
    for S in (32, 64):
        s += f"    v_mfma_f32_32x32x16_bf16 v[{S}:{S+15}], v[{KV}:{KV+3}], v[16:19], 0\n    v_mfma_f32_32x32x16_bf16 v[{S+16}:{S+31}], v[{KV+16}:{KV+19}], v[20:23], 0\n"
    s += "    s_nop 15\n"
    for i in range(16): s += f"    v_exp_f32 v10, v{32+2*i}\n    v_exp_f32 v11, v{33+2*i}\n    s_nop 0\n    v_cvt_pk_bf16_f32 v{96+i}, v10, v11\n"
    s += f"    s_mov_b32 s20, {iters}\n    s_barrier\n    s_memrealtime s[32:33]\n    s_memtime s[12:13]\n    s_waitcnt lgkmcnt(0)\n"
    s += ".p2align 6\nL_loop:\n"
    if v.get("prio"):
        s += "    s_cmp_gt_u32 s20, %d\n    s_cbranch_scc1 L_p3\n    s_cmp_gt_u32 s20, 1\n    s_cbranch_scc1 L_p2\n    s_setprio 0\n    s_branch L_pd\nL_p3:\n    s_setprio 3\n    s_branch L_pd\nL_p2:\n    s_setprio 2\nL_pd:\n" % (iters // 2)
    s += "".join(step(j, v) for j in range(NST))
    s += "    s_sub_u32 s20, s20, 1\n    s_cmp_lg_u32 s20, 0\n    s_cbranch_scc1 L_loop\n"
    s += """    s_memrealtime s[34:35]
    s_memtime s[14:15]
    s_waitcnt lgkmcnt(0)
    s_sub_u32 s14, s14, s12
    s_sub_u32 s15, s34, s32
    v_mov_b32 v4, s14
    v_mov_b32 v5, s15
    v_cmp_eq_u32 vcc, 0, v2
    s_and_saveexec_b64 s[16:17], vcc
    buffer_store_dwordx2 v[4:5], v1, s[8:11], 0 offen
    buffer_store_dword v112, v1, s[8:11], 0 offen offset:8
    s_waitcnt vmcnt(0)
    s_endpgm
"""
    acc = 256
    if v.get("agpr"):
        acc = v["agpr"]
        def ren(m):
            if m.group(1) is not None:
                n = int(m.group(1)); return f"a{n-acc}" if n >= acc else m.group(0)
            lo, hi = int(m.group(2)), int(m.group(3))
            return f"a[{lo-acc}:{hi-acc}]" if lo >= acc else m.group(0)
        s = re.sub(r"\bv(?:(\d+)\b|\[(\d+):(\d+)\])", ren, s)
        s = re.sub(r"v_mov_b32 (a\d+), 0", r"v_accvgpr_write_b32 \1, 0", s)
    s += TAIL[TAIL.index(".section"):].format(vgpr=256, accum=acc)
    os.makedirs("mb", exist_ok=True)
    src = f"mb/{name}.s"
    open(src, "w").write(cl.with_harness_metadata(s, "mb_kernel", 1))
    co = f"mb/{name}.co"
    r = subprocess.run(["clang", "-x", "assembler", "-target", "amdgcn-amd-amdhsa", "-mcpu=gfx950", src, "-o", co], capture_output=True, text=True)
    if r.returncode != 0:
        print(name, "ASM FAIL", r.stderr[:2000]); return None
    return co
def data(pad):
    rng = np.random.default_rng(1)
    t = np.zeros((65, 2048), np.uint16)
    for i in range(64):
        t[i, 0:512] = f2bf(rng.standard_normal(512))
        V = rng.standard_normal((2, 2, 32, 8)) * 0.06
        V[:, :, 21:, :] = 0; V[:, :, 20, :] = 1
        t[i, 512:1536] = f2bf(V.reshape(-1))
        t[i, 1536:1664] = f2bf(rng.standard_normal(128))
    t[64, :1536] = f2bf(rng.standard_normal(1536) * 0.32)
    return t
tests = [("base", dict(prio=1)), ("plain", dict(prio=1, plain=1)), ("oob", dict(prio=1, oob=1)), ("plain oob", dict(prio=1, plain=1, oob=1)),
         ("q4", dict(prio=1, q4=1)), ("q4 plain oob", dict(prio=1, q4=1, plain=1, oob=1)), ("lds", dict(prio=1, lds=1)),
         ("noload", dict(prio=1, loads=False)), ("noload agpr112", dict(prio=1, loads=False, agpr=112)), ("noload agpr144", dict(prio=1, loads=False, agpr=144)),
         ("noload perm", dict(prio=1, loads=False, perm=1)), ("q4 noload", dict(prio=1, q4=1, loads=False)), ("agpr112", dict(prio=1, agpr=112)), ("noprio", dict())]
for name, v in tests:
    iters = 3
    co = build(name.replace(" ", "_").replace("+", "p"), v, iters)
    if not os.path.exists('/dev/kfd'): continue
    k = cl.AsmKernel(co, "mb_kernel")
    buf = cl.DeviceBuffer(0x1000000)
    d = data("zero")
    cl.hip_check(cl._hip.hipMemcpy(ctypes.c_void_p(buf.ptr + 0x100000), d.ctypes.data_as(ctypes.c_void_p), d.nbytes, 1))
    ka = cl.pack_ptr_kernargs([buf.ptr])
    res = []
    for _ in range(4):
        k.launch((256, 1, 1), (512, 1, 1), ka, 98304 if v.get("lds") else 0)
        cl.hip_check(cl._hip.hipDeviceSynchronize())
        out = buf.to_numpy(np.uint32, (256, 8, 4)).astype(np.float64)
        cyc = out[:, :, 0].max(axis=1); rt = out[:, :, 1].max(axis=1)
        res.append((np.median(cyc), np.median(rt) / 100, rt.max() / 100))
    c, t, tm = res[-1]
    print(f"{name:14s} cyc/tile {c/(iters*NST*4):7.1f}  time {t:6.2f} us (max {tm:6.2f})  clock {c/t/1000:5.3f} GHz  ns/tile {t*1000/(iters*NST*4):6.1f}  all:", [f"{x[1]:.2f}" for x in res], "o", out[0,0,2], flush=True)
    k.unload(); buf.free()
```

```python
import sys, math, struct
from asmlib import *

class Opt:
    debug = False
    prio = {0: 3, 16: 2, 26: 1, 30: 0}
    force_fallback = False
    fast = True
    touch = True
    wo0 = 1
    npre = 40
opt = Opt()
for x in sys.argv[2:]:
    k, v = x.split("=", 1)
    setattr(opt, k, eval(v))

A_KV = 0
A_F1 = 262144
A_EP = A_F1 + 65536
A_F2 = 524288
A_O = 1 << 20
A_DBG = 4 << 20
WS_BYTES = 8 << 20
OOB = 0x40000000
L_W = 0
L_KVW = 40960
L_X = 66560
L_FLG = 148480
L_S = 102400
XSLOT = 6144
L_Q2 = L_S + 8 * 2560
LDS_BYTES = L_S + 8 * XSLOT
assert L_X + 81920 == L_FLG and L_FLG + 16 <= LDS_BYTES
sX, sWQ, sWKV, sWO, sOUT, sWS = 20, 24, 28, 32, 36, 40
sW, sTT, sKH, sHG, sTB, sT, sTK, sTAG, sXCD, sR = 44, 45, 46, 47, 48, 49, 50, 51, 52, 53
sT0, sT1, sT2, sT3 = 54, 55, 56, 57
sKV = 58
sXCC = 59
sO0, sO1 = 60, 61
sHGO = 62
sM0B = 63
sSPIN = 64
sOB = 65
sWQB = 66
sRG = 67
sMSK = 72
sC0 = 74
sF2 = 76
vLane, vL16, vK1a, vVa, vFa, vWoA, vWoB, vTr, vTr2, vAown, vAa, vAb, vFlag, vT0, vT1, vL8 = range(1, 17)
vQ = [18, 22, 26, 30]; vQH = [34, 36]
vS = [38, 70]
vP = 102
vO = 118
vKr = 182
vVr = 200
vR1 = 224
vXf = 38; vAcc = 78; vFr = 98
vW40, vXp = 224, 225
vXa = 226
vQa = 231
vCx, vCw = 237, 238
vSt = 240
vT2, vT3 = 241, 242
vM1w, vM1r, vM2w, vM2h = 243, 244, 245, 246

a = Asm()
nstamp = [0]
STAMPS = []
def stamp(name):
    if not opt.debug: return
    i = nstamp[0]; nstamp[0] += 1
    a.c(f"stamp {i}: {name}")
    a.e("s_memrealtime s[98:99]\ns_memtime s[100:101]")
    a.wait_lg0()
    a.e(f"v_writelane_b32 v17, s98, {i}\nv_writelane_b32 v17, s100, {32+i}")
    STAMPS.append(name)
def stamp_at(i):
    if not opt.debug: return
    a.e("s_memrealtime s[98:99]\ns_memtime s[100:101]")
    a.wait_lg0()
    a.e(f"v_writelane_b32 v17, s98, {i}\nv_writelane_b32 v17, s100, {32+i}")
def srd(base, lo, nbytes):
    a.e(f"s_mov_b32 s{base}, s{lo}\ns_mov_b32 s{base+1}, s{lo+1}\ns_mov_b32 s{base+2}, {nbytes}\ns_mov_b32 s{base+3}, 0x00020000")
def trd(f, i, t, tag):
    off = (i // 2) * 20480 + (i % 2) * 5120 + 8 * t
    base = vTr
    if i // 2 >= 3: base = vTr2; off -= 61440
    for q in range(2):
        a.lds(f"ds_read_b64_tr_b16 {vr(f+2*q,2)}, v{base} offset:{off+q*2560}", tag)
slow_stubs = []

a.raw(open("header.txt").read().replace("@LDS@", str(LDS_BYTES)))
a.e("s_cmp_ge_u32 s2, 256\ns_cbranch_scc1 L_end")
a.e("s_load_dwordx16 s[4:19], s[0:1], 0")
if opt.debug:
    a.e("v_mov_b32 v17, 0\ns_memrealtime s[94:95]\ns_memtime s[96:97]"); nstamp[0] = 1; STAMPS.append("start")
a.e(f"""v_lshrrev_b32 v{vT0}, 6, v0
v_and_b32 v{vLane}, 63, v0
s_and_b32 s{sXCD}, s2, 7
s_lshr_b32 s{sT0}, s2, 3
v_readfirstlane_b32 s{sW}, v{vT0}
s_and_b32 s{sHG}, s{sT0}, 7
s_lshr_b32 s{sR}, s{sT0}, 3
s_lshl_b32 s{sTB}, s{sXCD}, 2
s_add_u32 s{sTB}, s{sTB}, s{sR}
s_and_b32 s{sTT}, s{sW}, 3
s_lshr_b32 s{sKH}, s{sW}, 2
s_lshr_b32 s{sTK}, s{sHG}, 1
v_mov_b32 v{vAcc}, 0
v_mov_b32 v{vAcc+1}, 0
v_mov_b32 v{vAcc+2}, 0
v_mov_b32 v{vAcc+3}, 0
v_mov_b32 v{vT1}, {L_FLG}
v_lshlrev_b32 v{vL16}, 4, v{vLane}
s_mov_b64 exec, 1
ds_write_b128 v{vT1}, {vr(vAcc,4)}
s_mov_b64 exec, -1""")
a.e(f"""v_lshrrev_b32 v{vT0}, 4, v{vLane}
v_sub_u32 v{vT0}, 4, v{vT0}
v_xor_b32 v{vT0}, v{vT0}, v{vLane}
v_and_b32 v{vT0}, 3, v{vT0}
v_lshrrev_b32 v{vXp}, 2, v{vLane}
v_mul_u32_u24 v{vXp}, 1280, v{vXp}
v_lshl_add_u32 v{vXp}, v{vT0}, 4, v{vXp}
s_lshl_b32 s{sT}, s{sTB}, 2
s_add_u32 s{sT0}, s{sT}, s{sTK}
s_mul_i32 s{sT0}, s{sT0}, 20480
s_mul_i32 s{sT2}, s{sTT}, 320
s_add_u32 s{sT0}, s{sT0}, s{sT2}
s_mul_i32 s{sT1}, s{sTK}, 20480
s_mul_i32 s{sT2}, s{sTT}, 5120
s_add_u32 s{sT1}, s{sT1}, s{sT2}
s_add_u32 s{sT}, s{sT}, s{sTT}
s_mul_i32 s{sHGO}, s{sHG}, 160
s_mul_i32 s{sM0B}, s{sW}, 640
s_getreg_b32 s{sXCC}, hwreg(HW_REG_XCC_ID, 0, 3)
s_mov_b32 s{sSPIN}, 0""")
a.e(f"""v_mul_u32_u24 v{vT0}, 6554, v{vLane}
v_lshrrev_b32 v{vT0}, 16, v{vT0}
v_mul_u32_u24 v{vT1}, 10, v{vT0}
v_sub_u32 v{vT1}, v{vLane}, v{vT1}
v_lshlrev_b32 v{vT1}, 4, v{vT1}
v_mul_u32_u24 v{vW40}, 1280, v{vT0}
v_add_u32 v{vW40}, v{vW40}, v{vT1}
v_lshrrev_b32 v{vWoB}, 1, v{vT0}
v_mul_u32_u24 v{vWoB}, 38, v{vWoB}
v_add_u32 v{vWoB}, v{vWoB}, v{vT0}
v_mul_u32_u24 v{vWoB}, 1280, v{vWoB}
v_add_u32 v{vWoB}, v{vWoB}, v{vT1}""")
a.e(f"""s_lshl_b32 s{sT2}, s{sT}, 3
s_mul_i32 s{sOB}, s{sT2}, 2560
s_add_u32 s{sOB}, s{sOB}, {A_O}
s_mul_i32 s{sT2}, s{sHG}, 2560
s_add_u32 s{sT2}, s{sT2}, s{sOB}
s_lshl_b32 s{sT3}, s{sKH}, 10
s_add_u32 s{sO0}, s{sT2}, s{sT3}
s_lshl_b32 s{sT3}, s{sKH}, 2
s_add_u32 s{sO1}, s{sT2}, s{sT3}
s_add_u32 s{sO1}, s{sO1}, 2048
s_mul_i32 s{sT3}, s{sKH}, 10240
s_add_u32 s{sOB}, s{sOB}, s{sT3}""")
a.e("s_waitcnt lgkmcnt(0)")
if opt.debug: a.e("v_writelane_b32 v17, s94, 0\nv_writelane_b32 v17, s96, 32")
srd(sX, 4, 2621440)
a.e(f"s_cmp_lt_u32 s{sW}, 4\ns_cbranch_scc0 L_b1")
def xdma(soff, m0b):
    for i in range(5):
        a.e(f"s_add_u32 m0, s{m0b}, {L_X + 960*i}\ns_nop 0")
        a.e(f"buffer_load_dwordx4 v{vXp}, {sr(sX,4)}, s{soff} offen offset:{64*i} lds")
xdma(sT0, sT1)
a.e(f"""s_bitcmp1_b32 s{sHG}, 0
s_cselect_b32 s{sWKV}, s10, s8
s_cselect_b32 s{sWKV+1}, s11, s9
s_mov_b32 s{sWKV+2}, 25600
s_mov_b32 s{sWKV+3}, 0x00020000
s_mul_i32 s{sT0}, s{sTT}, 6400
s_add_u32 m0, s{sT0}, {L_KVW}
s_barrier""")
for i in range(4): a.e(f"buffer_load_dwordx4 v{vL16}, {sr(sWKV,4)}, s{sT0} offen offset:{1024*i} lds")
a.e(f"s_add_u32 m0, s{sT0}, {L_KVW+4096}\ns_add_u32 s{sT0}, s{sT0}, 4096")
for i in range(2): a.e(f"buffer_load_dwordx4 v{vL16}, {sr(sWKV,4)}, s{sT0} offen offset:{1024*i} lds")
a.e(f"s_mov_b64 exec, 0xffff\nbuffer_load_dwordx4 v{vL16}, {sr(sWKV,4)}, s{sT0} offen offset:2048 lds\ns_mov_b64 exec, -1")
srd(sWS, 18, WS_BYTES); srd(sWO, 12, 819200); srd(sOUT, 14, 2621440)
a.e("s_branch L_setup")
a.label("L_b1")
srd(sWS, 18, WS_BYTES); srd(sWO, 12, 819200); srd(sOUT, 14, 2621440)
if opt.touch:
    a.e(f"""s_sub_u32 s{sT0}, s{sO0}, 3072
v_mul_u32_u24 v{vT0}, s{sT0}, v{vLane}
s_mul_i32 s{sT0}, s{sT}, 20480
s_add_u32 s{sT0}, s{sT0}, s{sHGO}
s_mov_b64 exec, 3
buffer_load_dword v{vT2}, v{vT0}, {sr(sWS,4)}, 0 offen offset:3072 sc1
s_mov_b64 exec, 1
buffer_load_dword v{vT2}, v{vL16}, {sr(sOUT,4)}, s{sT0} offen
buffer_load_dword v{vT2}, v{vL16}, {sr(sWO,4)}, s{sHGO} offen
s_mov_b64 exec, -1""")
a.e("s_barrier")
a.label("L_setup")
stamp("part1")
a.e(f"s_load_dword s{sTAG}, s[18:19], {A_EP}")
srd(sWQ, 6, 819200)
for rho in range(5):
    a.e(f"s_add_u32 s{sT0}, s{sR}, {rho}\ns_sub_u32 s{sT1}, s{sT0}, 5\ns_cmp_ge_u32 s{sT0}, 5\ns_cselect_b32 s{sRG+rho}, s{sT1}, s{sT0}")
a.e(f"""v_bfe_u32 v{vT0}, v{vLane}, 2, 2
v_sub_u32 v{vT0}, 4, v{vT0}
v_lshrrev_b32 v{vT1}, 4, v{vLane}
v_xor_b32 v{vT0}, v{vT0}, v{vT1}
v_and_b32 v{vT0}, 3, v{vT0}
v_and_b32 v{vT1}, 15, v{vLane}
v_lshlrev_b32 v{vT1}, 6, v{vT1}
v_lshl_add_u32 v{vT0}, v{vT0}, 4, v{vT1}
s_mul_i32 s{sT0}, s{sTT}, 20480
s_mul_i32 s{sT1}, s{sKH}, 10240
s_add_u32 s{sT0}, s{sT0}, s{sT1}
s_add_u32 s{sT0}, s{sT0}, {L_X}
s_mul_i32 s{sT2}, s{sTK}, 20480
s_mul_i32 s{sT3}, s{sTT}, 5120
s_add_u32 s{sT2}, s{sT2}, s{sT3}
s_add_u32 s{sT2}, s{sT2}, {L_X}
v_add_u32 v{vCx}, s{sT2}, v{vT0}
v_mul_u32_u24 v{vTr}, 40, v{vLane}
v_add_u32 v{vTr}, s{sT1}, v{vTr}
v_add_u32 v{vTr2}, 61440, v{vTr}""")
for rho in range(5):
    a.e(f"s_lshl_b32 s{sT2}, s{sRG+rho}, 11\ns_add_u32 s{sT2}, s{sT2}, s{sT0}\nv_add_u32 v{vXa+rho}, s{sT2}, v{vT0}\ns_mul_i32 s{sRG+rho}, s{sRG+rho}, 81920")
a.e(f"""s_lshl_b32 s{sT0}, s{sTT}, 3
s_lshl_b32 s{sT1}, s{sKH}, 2
s_add_u32 s{sT0}, s{sT0}, s{sT1}
s_mul_i32 s{sT0}, s{sT0}, 1280
s_add_u32 s{sWQB}, s{sT0}, s{sHGO}""")
a.e(f"""s_and_b32 s{sT0}, s{sTT}, 1
s_mul_i32 s{sT0}, s{sT0}, 20
s_and_b32 s{sT1}, s{sTT}, 2
s_lshl_b32 s{sT2}, s{sT1}, 1
s_add_u32 s{sT2}, s{sT2}, s{sT0}
s_lshl_b32 s{sT3}, s{sKH}, 3
s_add_u32 s{sT2}, s{sT2}, s{sT3}
s_mul_i32 s{sT2}, s{sT2}, 1280
v_add_u32 v{vWoA}, s{sT2}, v{vW40}
s_add_u32 s{sT0}, s{sT0}, s{sT1}
s_mul_i32 s{sT3}, s{sKH}, 80
s_add_u32 s{sT0}, s{sT0}, s{sT3}
s_add_u32 s{sT0}, s{sT0}, 16
s_mul_i32 s{sT0}, s{sT0}, 1280
v_add_u32 v{vWoB}, s{sT0}, v{vWoB}""")
a.e(f"""v_lshrrev_b32 v{vT0}, 4, v{vLane}
v_bfe_u32 v{vT1}, v{vLane}, 2, 2
v_lshl_add_u32 v{vT0}, v{vT0}, 3, v{vT1}
v_mul_u32_u24 v{vT0}, 40, v{vT0}
s_mul_i32 s{sT0}, s{sTT}, 6400
s_add_u32 s{sT0}, s{sT0}, {L_KVW}
v_add_u32 v{vT0}, s{sT0}, v{vT0}
v_and_b32 v{vT1}, 3, v{vLane}
v_lshlrev_b32 v{vT1}, 4, v{vT1}
v_min_u32 v{vCw}, 32, v{vT1}
v_add_u32 v{vCw}, v{vCw}, v{vT0}
v_add_u32 v{vT1}, 8, v{vT1}
v_min_u32 v{vCw+1}, 32, v{vT1}
v_add_u32 v{vCw+1}, v{vCw+1}, v{vT0}""")
a.e(f"""v_and_b32 v{vT0}, 31, v{vLane}
v_lshlrev_b32 v{vK1a}, 4, v{vT0}
v_lshrrev_b32 v{vT1}, 5, v{vLane}
v_mul_u32_u24 v{vT1}, 384, v{vT1}
v_add_u32 v{vVa}, v{vK1a}, v{vT1}
v_mov_b32 v{vT1}, {OOB}
s_mov_b32 vcc_lo, 0xff880000
s_mov_b32 vcc_hi, 0xff880000
v_cndmask_b32 v{vVa}, v{vVa}, v{vT1}, vcc
v_lshlrev_b32 v{vL8}, 3, v{vLane}
s_and_b32 s{sT0}, s{sTT}, 1
s_lshl_b32 s{sT0}, s{sT0}, 1
s_add_u32 s{sT0}, s{sT0}, s{sKH}
s_lshl_b32 s{sKV}, s{sXCD}, 15
s_lshl_b32 s{sT1}, s{sT0}, 13
s_add_u32 s{sKV}, s{sKV}, s{sT1}
v_lshrrev_b32 v{vFa}, 3, v{vLane}
v_add_u32 v{vFa}, s{sXCD}, v{vFa}
v_and_b32 v{vFa}, 7, v{vFa}
v_lshlrev_b32 v{vFa}, 5, v{vFa}
v_and_b32 v{vT1}, 7, v{vLane}
v_add_u32 v{vFa}, v{vFa}, v{vT1}
v_lshlrev_b32 v{vFa}, 7, v{vFa}
s_lshl_b32 s{sT1}, s{sT0}, 10
s_add_u32 s{sT1}, s{sT1}, {A_F1}
v_add_u32 v{vFa}, s{sT1}, v{vFa}""")
a.e(f"""s_mul_i32 s{sT0}, s{sW}, {XSLOT}
s_add_u32 s{sT0}, s{sT0}, {L_S}
v_add_u32 v{vAown}, s{sT0}, v{vL16}
s_xor_b32 s{sT0}, s{sW}, 1
s_mul_i32 s{sT0}, s{sT0}, {XSLOT}
s_add_u32 s{sT0}, s{sT0}, {L_S}
v_add_u32 v{vAa}, s{sT0}, v{vL16}
s_xor_b32 s{sT0}, s{sW}, 5
s_mul_i32 s{sT0}, s{sT0}, {XSLOT}
s_add_u32 s{sT0}, s{sT0}, {L_S}
v_add_u32 v{vAb}, s{sT0}, v{vL16}
s_mul_i32 s{sT0}, s{sW}, 2560
s_add_u32 s{sT0}, s{sT0}, {L_S}
v_add_u32 v{vM1w}, s{sT0}, v{vL16}
s_xor_b32 s{sT0}, s{sW}, 4
s_mul_i32 s{sT0}, s{sT0}, 2560
s_add_u32 s{sT0}, s{sT0}, {L_S}
v_add_u32 v{vM1r}, s{sT0}, v{vL16}""")
a.e(f"""s_mul_i32 s{sT0}, s{sTT}, 2560
s_add_u32 s{sT0}, s{sT0}, {L_Q2}
s_xor_b32 s{sT1}, s{sTT}, 1
s_mul_i32 s{sT1}, s{sT1}, 2560
s_add_u32 s{sT1}, s{sT1}, {L_Q2}
s_lshl_b32 s{sT2}, s{sKH}, 10
s_add_u32 s{sT2}, s{sT2}, s{sT0}
v_add_u32 v{vM2w}, s{sT2}, v{vL16}
s_lshl_b32 s{sT2}, s{sKH}, 2
s_add_u32 s{sT2}, s{sT2}, s{sT0}
v_add_u32 v{vM2h}, s{sT2}, v{vL8}
v_lshrrev_b32 v{vT0}, 5, v{vLane}
v_lshl_add_u32 v{vT0}, v{vT0}, 10, v{vK1a}
s_lshl_b32 s{sT2}, s{sKH}, 9
s_xor_b32 s{sT3}, s{sT2}, 512
v_add_u32 v{vT1}, s{sT3}, v{vT0}
v_add_u32 v{vQa}, s{sT0}, v{vT1}
v_add_u32 v{vQa+2}, s{sT1}, v{vT1}
v_add_u32 v{vT1}, s{sT2}, v{vT0}
v_add_u32 v{vQa+1}, s{sT0}, v{vT1}
v_add_u32 v{vQa+3}, s{sT1}, v{vT1}
s_lshr_b32 s{sT3}, s{sT3}, 1
v_xor_b32 v{vT1}, s{sT3}, v{vL8}
v_add_u32 v{vQa+4}, s{sT0}, v{vT1}
v_add_u32 v{vQa+5}, s{sT1}, v{vT1}""")
a.e(f"""s_lshl_b32 s{sF2}, s{sT}, 4
s_lshl_b32 s{sT0}, s{sHG}, 1
s_add_u32 s{sT0}, s{sT0}, s{sKH}
s_add_u32 s{sF2}, s{sF2}, s{sT0}
s_lshl_b32 s{sF2}, s{sF2}, 7
s_add_u32 s{sF2}, s{sF2}, {A_F2}""")
a.e(f"s_waitcnt lgkmcnt(0)\ns_mul_i32 s{sTAG}, s{sTAG}, 1664525\ns_add_u32 s{sTAG}, s{sTAG}, 1013904223")
stamp("setup")
a.e(f"s_add_u32 s{sT1}, s{sW}, {L_FLG}\nv_mov_b32 v{vT3}, s{sT1}\nv_mov_b32 v{vFlag}, 1")
a.e(f"s_cmp_lt_u32 s{sW}, 4\ns_cbranch_scc1 L_a2")
a.e(f"s_mov_b64 exec, 1\nds_write_b8 v{vT3}, v{vFlag}\ns_mov_b64 exec, -1")
def wround_b(rho):
    a.e(f"s_add_u32 s{sT2}, s{sRG+rho}, s{sT3}\ns_mov_b32 exec_hi, 0xff")
    for u in range(8):
        a.e(f"s_add_u32 m0, s{sT1}, {L_W + rho*20480 + u*640}\ns_add_u32 s{sT0}, s{sT2}, {(8*(u&3)+4*(u>>2))*1280}")
        a.e(f"buffer_load_dwordx4 v{vW40}, {sr(sWQ,4)}, s{sT0} offen lds")
    a.e("s_mov_b32 exec_hi, -1")
def wround_b_pre():
    a.e(f"""s_lshr_b32 s{sT3}, s{sTT}, 1
s_mul_i32 s{sT3}, s{sT3}, 10
s_and_b32 s{sT1}, s{sTT}, 1
s_add_u32 s{sT3}, s{sT3}, s{sT1}
s_mul_i32 s{sT3}, s{sT3}, 40960
s_add_u32 s{sT3}, s{sT3}, s{sHGO}
s_mul_i32 s{sT1}, s{sTT}, 5120""")
wround_b_pre(); wround_b(0)
for j in (1, 2, 3):
    a.e(f"""s_add_u32 s{sT0}, s{sTK}, {j}
s_and_b32 s{sT0}, s{sT0}, 3
s_mul_i32 s{sT1}, s{sT0}, 20480
s_mul_i32 s{sT2}, s{sTT}, 5120
s_add_u32 s{sT1}, s{sT1}, s{sT2}
s_lshl_b32 s{sT2}, s{sTB}, 2
s_add_u32 s{sT0}, s{sT0}, s{sT2}
s_mul_i32 s{sT0}, s{sT0}, 20480
s_mul_i32 s{sT2}, s{sTT}, 320
s_add_u32 s{sT0}, s{sT0}, s{sT2}""")
    xdma(sT0, sT1)
wround_b_pre(); wround_b(1)
kst = nstamp[0]
stamp("A:data B:issued")
stamp("A:chain B:-")
stamp("A:pub B:x")
a.e("s_waitcnt vmcnt(8)")
stamp_at(kst + 2)
a.e("s_branch L_bx")
a.label("L_a2")
cX, cW, cA, cR = 38, 98, 78, 138
a.e(f"""s_bitcmp1_b32 s{sHG}, 0
s_cbranch_scc1 L_ofv
v_lshrrev_b32 v{vT0}, 4, v{vLane}
v_and_b32 v{vT1}, 15, v{vLane}
v_lshlrev_b32 v{vT1}, 4, v{vT1}
v_lshl_add_u32 v{vSt}, v{vT0}, 9, v{vT1}
s_and_b32 s{sT1}, s{sTK}, 1
s_lshl_b32 s{sT1}, s{sT1}, 8
s_branch L_ofd""")
a.label("L_ofv")
a.e(f"""v_and_b32 v{vT0}, 7, v{vLane}
v_lshlrev_b32 v{vT0}, 2, v{vT0}
v_mov_b32 v{vT1}, 0x73625410
v_lshrrev_b32 v{vT0}, v{vT0}, v{vT1}
v_and_b32 v{vT0}, 7, v{vT0}
v_add_u32 v{vT0}, 16, v{vT0}
v_and_b32 v{vT1}, 4, v{vLane}
v_lshlrev_b32 v{vT1}, 1, v{vT1}
v_and_b32 v{vT2}, 3, v{vLane}
v_add_u32 v{vT1}, v{vT1}, v{vT2}
v_lshrrev_b32 v{vT2}, 5, v{vLane}
v_lshl_add_u32 v{vT1}, v{vT2}, 2, v{vT1}
s_mov_b32 vcc_lo, 0xff00ff00
s_mov_b32 vcc_hi, 0xff00ff00
v_cndmask_b32 v{vT0}, v{vT1}, v{vT0}, vcc
v_bfe_u32 v{vT1}, v{vLane}, 4, 1
v_mul_u32_u24 v{vT1}, 384, v{vT1}
v_lshl_add_u32 v{vSt}, v{vT0}, 4, v{vT1}
s_and_b32 s{sT1}, s{sTK}, 1
s_mul_i32 s{sT1}, s{sT1}, 768
s_add_u32 s{sT1}, s{sT1}, 1536""")
a.label("L_ofd")
a.e(f"""s_lshl_b32 s{sT0}, s{sTB}, 13
s_lshr_b32 s{sT2}, s{sTK}, 1
s_lshl_b32 s{sT2}, s{sT2}, 12
s_add_u32 s{sT0}, s{sT0}, s{sT2}
s_add_u32 s{sT0}, s{sT0}, s{sT1}
s_mul_i32 s{sT1}, s{sTT}, 6400
s_add_u32 s{sT1}, s{sT1}, {L_KVW}
v_add_u32 v{vT2}, s{sT1}, v{vL16}""")
a.e("s_waitcnt vmcnt(7)")
for i in range(5): a.lds(f"ds_read_b128 {vr(cX+4*i,4)}, v{vCx} offset:{1024*i}", ("cx", i))
a.e("s_waitcnt vmcnt(0)")
stamp_at(kst)
def cw_read(i):
    for h in range(2):
        for q in range(2):
            a.lds(f"ds_read_b64_tr_b16 {vr(cW+8*i+4*h+2*q,2)}, v{vCw+h} offset:{i*1280+q*160}", ("cw", i, h))
for i in range(5): cw_read(i)
a.e(f"s_bitcmp1_b32 s{sHG}, 0\ns_cbranch_scc1 L_chv")
save = list(a.lg)
for mat in range(2):
    a.lg = list(save)
    if mat: a.label("L_chv")
    for i in range(5):
        for h in range(2):
            a.wait_lg(("cw", i, h))
            W, X = vr(cW + 8 * i + 4 * h, 4), vr(cX + 4 * i, 4)
            c = "0" if i == 0 else vr(cA + 4 * h, 4)
            a.e(f"v_mfma_f32_16x16x32_bf16 {vr(cA+4*h,4)}, {W if not mat else X}, {X if not mat else W}, {c}")
    if not mat: a.e("s_branch L_chd")
a.label("L_chd")
a.e(f"s_cmp_eq_u32 s{sW}, 0\ns_cbranch_scc1 L_fin0\ns_nop 5")
a.e(f"ds_write_b128 v{vT2}, {vr(cA,4)}\nds_write_b128 v{vT2}, {vr(cA+4,4)} offset:1024")
a.e(f"s_mov_b64 exec, 1\nds_write_b8 v{vT3}, v{vFlag}\ns_mov_b64 exec, -1")
stamp_at(kst + 1)
a.e("s_branch L_bx")
a.label("L_fin0")
a.e(f"ds_read_b64 {vr(cR+24,2)}, v{vT3}")
for j in range(1, 4):
    for h in range(2): a.e(f"ds_read_b128 {vr(cR+8*(j-1)+4*h,4)}, v{vT2} offset:{6400*j+1024*h}")
a.e(f"""s_add_u32 s{sSPIN}, s{sSPIN}, 1
s_cmp_lt_u32 s{sSPIN}, 400000
s_cbranch_scc0 L_end
s_waitcnt lgkmcnt(6)
v_or_b32 v{vT0}, 1, v{cR+24}
v_and_b32 v{vT0}, v{vT0}, v{cR+25}
v_cmp_ne_u32 vcc, 0x01010101, v{vT0}
s_waitcnt lgkmcnt(0)
s_cbranch_vccnz L_fin0""")
stamp_at(kst + 1)
for i in range(8):
    a.e(f"v_add_f32 v{cA+i}, v{cA+i}, v{cR+i}\nv_add_f32 v{cR+8+i}, v{cR+8+i}, v{cR+16+i}")
for i in range(8): a.e(f"v_add_f32 v{cA+i}, v{cA+i}, v{cR+8+i}")
SCALE = math.log2(math.e) / math.sqrt(20.0)
SCX = f"0x{struct.unpack('<I', struct.pack('<f', SCALE))[0]:08x}"
a.e(f"s_bitcmp1_b32 s{sHG}, 0\ns_cbranch_scc1 L_stv")
for i in range(8): a.e(f"v_mul_f32 v{cA+i}, {SCX}, v{cA+i}")
for i in range(4): a.e(f"v_cvt_pk_bf16_f32 v{cR+i}, v{cA+2*i}, v{cA+2*i+1}")
a.e("s_mov_b32 exec_hi, 0xffff\ns_branch L_std")
a.label("L_stv")
for i in range(4): a.e(f"v_cvt_pk_bf16_f32 v{cR+i}, v{cA+2*i}, v{cA+2*i+1}")
a.e(f"s_nop 1\nv_permlane32_swap_b32 v{cR}, v{cR+2}\nv_permlane32_swap_b32 v{cR+1}, v{cR+3}")
a.e("s_mov_b64 exec, 0x30003000")
for i in range(4): a.e(f"v_mov_b32 v{cR+i}, 0x3f803f80")
a.e("s_mov_b32 exec_lo, 0xc000c000")
for i in range(4): a.e(f"v_mov_b32 v{cR+i}, 0")
a.e("s_mov_b32 exec_lo, -1\ns_mov_b32 exec_hi, 0x00ff00ff")
a.label("L_std")
a.e(f"""buffer_store_dwordx4 {vr(cR,4)}, v{vSt}, {sr(sWS,4)}, s{sT0} offen sc1
s_mov_b64 exec, 1
s_lshl_b32 s{sT0}, s{sTB}, 3
s_add_u32 s{sT0}, s{sT0}, s{sHG}
s_lshl_b32 s{sT0}, s{sT0}, 7
s_add_u32 s{sT0}, s{sT0}, {A_F1}
v_mov_b32 v{vT1}, s{sTAG}
s_waitcnt vmcnt(0)
buffer_store_dword v{vT1}, v{vL16}, {sr(sWS,4)}, s{sT0} offen sc1
s_mov_b64 exec, -1""")
stamp_at(kst + 2)
a.label("L_bx")
a.lg = []; a.vm = []
a.e("s_barrier")
stamp("Bx")
def kslot(t): return vKr + 6 * (t % 3)
def vslot(t): return vVr + 8 * (t % 3)
def k_loads(t):
    b = kslot(t)
    return [(f"buffer_load_dwordx4 {vr(b,4)}, v{vL16}, {sr(sWS,4)}, s{sKV} offen sc1", ("k", t)),
            (f"buffer_load_dwordx2 {vr(b+4,2)}, v{vK1a}, {sr(sWS,4)}, s{sKV} offen offset:1024 sc1", ("k", t))]
def v_loads(t):
    b = vslot(t)
    return [(f"buffer_load_dwordx4 {vr(b,4)}, v{vVa}, {sr(sWS,4)}, s{sKV} offen offset:1536 sc1", ("v", t)),
            (f"buffer_load_dwordx4 {vr(b+4,4)}, v{vVa}, {sr(sWS,4)}, s{sKV} offen offset:2304 sc1", ("v", t))]
def kv_advance(t):
    if t % 2 == 0: a.e(f"s_add_u32 s{sKV}, s{sKV}, 4096")
    else: a.e(f"s_add_u32 s{sKV}, s{sKV}, {32768-4096}\ns_and_b32 s{sKV}, s{sKV}, 0x3ffff")
FLOAD = f"buffer_load_dword v{vFlag}, v{vFa}, {sr(sWS,4)}, 0 offen sc1"
def flag_cmp(): a.e(f"v_cmp_ne_u32 {sr(sMSK,2)}, s{sTAG}, v{vFlag}")
def chunk_check(c):
    a.e(f"s_and_b32 s{sT0}, s{sMSK + c//4}, 0x{0xff << (8*(c%4)):x}\ns_cbranch_scc1 L_slow{c}")
    a.label(f"L_back{c}")
    slow_stubs.append(c)
nref = [0]
def flag_refresh():
    k = nref[0]; nref[0] += 1
    a.e(f"s_or_b32 s{sT0}, s{sMSK}, s{sMSK+1}\ns_cbranch_scc0 L_ref{k}\ns_mov_b64 exec, {sr(sMSK,2)}\n{FLOAD}\ns_mov_b64 exec, -1")
    a.label(f"L_ref{k}")
for i in range(10): a.lds(f"ds_read_b128 {vr(vXf+4*i,4)}, v{vXa+i//2} offset:{1024*(i%2)}", ("x", i))
for rho in range(5):
    if rho:
        if rho == 1: a.e("s_waitcnt vmcnt(4)")
        elif rho < 4: a.wait_vm(("w", rho))
        else: a.wait_vm0()
        a.e("s_barrier")
        stamp(f"S{rho}")
    js = [(2 * rho + e, t) for e in range(2) for t in range(5)]
    fb = vFr + 40 * (rho % 2)
    for j, (i, t) in enumerate(js[:6]): trd(fb + 4 * j, i, t, ("fr", i, t))
    if rho == 4:
        flag_cmp(); a.e("s_nop 0"); chunk_check(0)
        for t in range(2):
            for x in k_loads(t) + v_loads(t): a.vload(*x)
            kv_advance(t)
        flag_refresh()
    for j, (i, t) in enumerate(js):
        if j + 6 < 10: trd(fb + 4 * (j + 6), *js[j + 6], ("fr",) + js[j + 6])
        if rho + 2 < 5 and j % 2 == 0 and j < 8:
            sl = j // 2
            a.e(f"s_add_u32 m0, s{sM0B}, {L_W + (rho+2)*20480 + sl*5120}\ns_add_u32 s{sT0}, s{sRG+rho+2}, s{sWQB}\ns_add_u32 s{sT0}, s{sT0}, {((sl>>1)*10+(sl&1))*40960}\ns_mov_b32 exec_hi, 0xff")
            a.vload(f"buffer_load_dwordx4 v{vW40}, {sr(sWQ,4)}, s{sT0} offen lds", ("w", rho + 2))
            a.e("s_mov_b32 exec_hi, -1")
            if rho == 2 and sl == 3: a.vload(FLOAD, ("flag",))
        a.wait_lg(("fr", i, t))
        c = "0" if i == 0 else vr(vAcc + 4 * t, 4)
        a.e(f"v_mfma_f32_16x16x32_bf16 {vr(vAcc+4*t,4)}, {vr(fb+4*j,4)}, {vr(vXf+4*i,4)}, {c}")
stamp("qgemm")
vPart = vFr; vPk = vFr + 12
a.e(f"s_cmp_eq_u32 s{sKH}, 0\ns_cbranch_scc0 L_q1")
for kh in range(2):
    if kh: a.label("L_q1")
    keep = [vAcc + 8 * kh + i for i in range(8)] + [vAcc + 16 + 2 * kh, vAcc + 17 + 2 * kh]
    so = 8 * (1 - kh)
    a.e("s_nop 3" if kh else "s_nop 5")
    a.e(f"ds_write_b128 v{vM1w}, {vr(vAcc+so,4)}\nds_write_b128 v{vM1w}, {vr(vAcc+so+4,4)} offset:1024")
    a.e(f"v_sub_u32 v{vT0}, v{vM1w}, v{vL8}\nv_sub_u32 v{vT1}, v{vM1r}, v{vL8}\ns_nop 1")
    a.e(f"ds_write_b64 v{vT0}, {vr(vAcc+16+2*(1-kh),2)} offset:2048")
    a.e("s_waitcnt lgkmcnt(0)\ns_barrier")
    a.e(f"ds_read_b128 {vr(vPart,4)}, v{vM1r}\nds_read_b128 {vr(vPart+4,4)}, v{vM1r} offset:1024\nds_read_b64 {vr(vPart+8,2)}, v{vT1} offset:2048")
    for blk, (lo, hi) in enumerate(((0, 4), (4, 8), (8, 10))):
        a.e(f"s_waitcnt lgkmcnt({2-blk})")
        for i in range(lo, hi): a.e(f"v_add_f32 v{vPart+i}, v{vPart+i}, v{keep[i]}")
    if not kh: a.e("s_branch L_q2")
a.label("L_q2")
for i in range(5): a.e(f"v_cvt_pk_bf16_f32 v{vPk+i}, v{vPart+2*i}, v{vPart+2*i+1}")
a.e(f"ds_write_b128 v{vM2w}, {vr(vPk,4)}\nds_write_b32 v{vM2h}, v{vPk+4} offset:2048")
a.e("s_waitcnt lgkmcnt(0)\ns_barrier")
stamp("E2")
a.lds(f"ds_read_b64 {vr(vQH[0],2)}, v{vQa+4} offset:2048", ("q", 0))
a.lds(f"ds_read_b128 {vr(vQ[0],4)}, v{vQa}", ("q", 0))
a.lds(f"ds_read_b128 {vr(vQ[1],4)}, v{vQa+1}", ("q", 0))
a.lds(f"ds_read_b64 {vr(vQH[1],2)}, v{vQa+5} offset:2048", ("q", 1))
a.lds(f"ds_read_b128 {vr(vQ[2],4)}, v{vQa+2}", ("q", 1))
a.lds(f"ds_read_b128 {vr(vQ[3],4)}, v{vQa+3}", ("q", 1))
seq = [(t, p) for t in range(14) for p in range(2)] + [(14, 1), (15, 1), (14, 0), (15, 0)]
NS = 32
def s2b(n): t, p = seq[n]; S = vS[n % 2]; return f"v_mfma_f32_32x32x4_2b_bf16 {vr(S,32)}, {vr(kslot(t)+4,2)}, {vr(vQH[p],2)}, 0"
def s16(n, x): t, p = seq[n]; S = vS[n % 2] + 16 * x; return f"v_mfma_f32_32x32x16_bf16 {vr(S,16)}, {vr(kslot(t),4)}, {vr(vQ[2*p+x],4)}, {vr(S,16)}"
def pv(n, g):
    t, p = seq[n]; O = vO + 16 * (2 * p + g // 2)
    c = "0" if (t == 0 and g % 2 == 0) else vr(O, 16)
    return f"v_mfma_f32_32x32x16_bf16 {vr(O,16)}, {vr(vslot(t)+4*(g%2),4)}, {vr(vP+4*g,4)}, {c}"
a.wait_vm(("k", 0))
a.wait_lg(("q", 0))
stamp("kv0")
a.e(s2b(0))
a.e(f"v_mov_b32 v{vR1}, -1\nv_mov_b32 v{vR1+1}, -1\nv_mov_b32 v{vR1+2}, -1\nv_mov_b32 v{vR1+3}, -1\ns_xor_b32 s{sT0}, s{sTAG}, s{sXCC}\nv_mov_b32 v{vR1+4}, s{sT0}")
a.e("s_nop 11"); a.e(s16(0, 0)); a.e(s16(0, 1)); a.wait_lg0(); a.e("s_nop 9")
vSum = vO + 16
for n in range(NS):
    t, p = seq[n]
    a.c(f"half-step {n}: tile {t} pair {p}")
    if n in opt.prio: a.e(f"s_setprio {opt.prio[n]}")
    if n in (4, 8, 16, 24): stamp(f"step{n}")
    S = vS[n % 2]
    ex = [f"v_exp_f32 v{S+i}, v{S+i}" for i in range(32)]
    cv = [f"v_cvt_pk_bf16_f32 v{vP+i}, v{S+2*i}, v{S+2*i+1}" for i in range(16)]
    E = lambda lo, hi: [a.e(x) for x in ex[lo:hi]]
    C = lambda lo, hi: [a.e(x) for x in cv[lo:hi]]
    tl = n // 2 + 2
    L = [] if tl >= 16 else (k_loads(tl) if n % 2 == 0 else v_loads(tl))
    def LD(i):
        if i < len(L): a.vload(*L[i])
    nxt = n + 1 < NS
    E(0, 2)
    if n > 0: a.e(pv(n - 1, 3))
    E(2, 6)
    if nxt:
        a.wait_vm_if(("k", seq[n + 1][0]))
        a.e(s2b(n + 1))
    if n == 31:
        a.e("s_waitcnt lgkmcnt(0)\ns_barrier")
        for i in range(6): a.lds(f"ds_read_b128 {vr(vR1+4*i,4)}, v{vAa} offset:{1024*i}", ("r1", i // 3))
    E(6, 8)
    if n == 0:
        flag_cmp()
    if n == 4:
        flag_cmp()
    C(0, 4)
    if L and n % 4 == 0: chunk_check(tl // 2)
    LD(0); E(8, 12); LD(1)
    if L and n % 2 == 1: kv_advance(tl)
    if n == 1: flag_refresh()
    E(12, 13)
    a.wait_vm_if(("v", t))
    a.e(pv(n, 0))
    E(13, 16)
    if n == 2:
        a.e(f"buffer_store_dwordx4 {vr(vR1,4)}, v{vL16}, {sr(sWS,4)}, s{sO0} offen sc1")
        a.e(f"buffer_store_dword v{vR1}, v{vL8}, {sr(sWS,4)}, s{sO1} offen sc1")
    if n == 8:
        a.e(f"s_mov_b64 exec, 1\nbuffer_store_dword v{vR1+4}, v{vL16}, {sr(sWS,4)}, s{sF2} offen sc1\ns_mov_b64 exec, -1")
    if n == 26:
        a.e(f"v_and_b32 v{vT0}, 15, v{vLane}\nv_lshlrev_b32 v{vT0}, 7, v{vT0}\ns_and_b32 s{sF2}, s{sF2}, 0xfffff800")
        a.vload(f"buffer_load_dword v{vT1}, v{vT0}, {sr(sWS,4)}, s{sF2} offen sc1", ("f2",))
    if n == 30:
        for i in range(3): a.e(f"ds_write_b128 v{vAown}, {vr(vO+32+4*i,4)} offset:{1024*i}")
    C(4, 8); E(16, 18)
    a.e(pv(n, 1))
    E(18, 22)
    if nxt: a.e(s16(n + 1, 0))
    E(22, 24)
    s = n - opt.wo0
    if 0 <= s < 20:
        khs, i = divmod(s, 10); pp, u = divmod(i, 5)
        rowb = (4 * khs + 2 * pp) * 80 + (40 * u if u < 4 else 0)
        a.e(f"s_add_u32 m0, s{sM0B}, {L_W + (i//2)*20480 + khs*10240 + (i%2)*5120}\ns_add_u32 s{sT2}, s{sHGO}, {rowb*1280}\ns_mov_b32 exec_hi, 0xff")
        a.vload(f"buffer_load_dwordx4 v{vWoA if u < 4 else vWoB}, {sr(sWO,4)}, s{sT2} offen lds", ("wo", s))
        a.e("s_mov_b32 exec_hi, -1")
    if n == 30:
        for i in range(3): a.e(f"ds_write_b128 v{vAown}, {vr(vO+48+4*i,4)} offset:{3072+1024*i}")
        a.wait_vm0()
    C(8, 12); E(24, 26)
    a.e(pv(n, 2))
    if n == 31:
        a.wait_lg0()
        for i in range(11): a.e(f"v_add_f32 v{vO+i}, v{vO+i}, v{vR1+i}")
        for i in range(3): a.e(f"ds_write_b128 v{vAa}, {vr(vO+4*i,4)} offset:{1024*i}")
    E(26, 30)
    if nxt: a.e(s16(n + 1, 1))
    E(30, 32); C(12, 16)
a.e("s_nop 1")
a.e(pv(NS - 1, 3))
stamp("loop end")
vRecv = 38
vOF = 52
vAcc2 = 18
a.e("s_waitcnt lgkmcnt(0)\ns_barrier")
for i in range(3): a.e(f"ds_read_b128 {vr(vRecv+4*i,4)}, v{vAb} offset:{1024*i}")
a.label("L_f2")
a.e(f"""v_xor_b32 v{vT1}, s{sTAG}, v{vT1}
v_cmp_lt_u32 vcc, 7, v{vT1}
s_cbranch_vccnz L_slowf2
v_cmp_ne_u32 {sr(sMSK,2)}, s{sXCC}, v{vT1}
s_waitcnt lgkmcnt(0)""")
for i in range(11): a.e(f"v_add_f32 v{vRecv+i}, v{vRecv+i}, v{vR1+12+i}")
for i in range(11): a.e(f"v_add_f32 v{vSum+i}, v{vSum+i}, v{vRecv+i}")
a.e(f"v_add_f32 v{vRecv}, abs(v{vSum}), abs(v{vSum+1})")
for i in range(2, 10): a.e(f"v_add_f32 v{vRecv}, v{vRecv}, abs(v{vSum+i})")
a.e(f"""s_mov_b32 s{sT0}, 0x21800000
s_mov_b32 s{sT1}, 0x5d800000
s_mov_b32 s{sT2}, 0x7f800000
v_cmp_nle_f32 vcc, s{sT0}, v{vSum+10}
v_cmp_nge_f32 {sr(sC0,2)}, s{sT1}, v{vSum+10}
s_or_b64 vcc, vcc, {sr(sC0,2)}
v_cmp_ngt_f32 {sr(sC0,2)}, s{sT2}, v{vRecv}
s_or_b64 vcc, vcc, {sr(sC0,2)}""")
a.e("s_branch L_fallback" if opt.force_fallback else "s_cbranch_vccnz L_fallback")
a.label("L_norm")
a.e(f"v_rcp_f32 v{vSum+10}, v{vSum+10}\ns_nop 0")
for i in range(10): a.e(f"v_mul_f32 v{vSum+i}, v{vSum+i}, v{vSum+10}")
for i in range(5): a.e(f"v_cvt_pk_bf16_f32 v{vRecv+i}, v{vSum+2*i}, v{vSum+2*i+1}")
for i in range(5): a.e(f"v_min_u32 v{vRecv+i}, -2, v{vRecv+i}")
def ostore(pol):
    a.e(f"buffer_store_dwordx4 {vr(vRecv,4)}, v{vL16}, {sr(sWS,4)}, s{sO0} offen{pol}")
    a.e(f"buffer_store_dword v{vRecv+4}, v{vL8}, {sr(sWS,4)}, s{sO1} offen{pol}")
if opt.fast:
    a.e(f"s_or_b32 s{sT0}, s{sMSK}, s{sMSK+1}\ns_cbranch_scc1 L_osc")
    ostore("")
    a.e("s_branch L_osd")
    a.label("L_osc")
ostore(" sc1")
a.label("L_osd")
stamp("O stored")
vRing2 = 92; NRING2 = 41
def oregs(j):
    pp, jj = divmod(j, 2); base = vOF + 20 * pp
    return base + 8 * jj, base + 16 + 2 * jj
def opoll(j):
    b, l = oregs(j)
    a.e(f"s_add_u32 s{sT0}, s{sOB}, {2560*j}")
    a.e(f"buffer_load_dwordx4 {vr(b,4)}, v{vL16}, {sr(sWS,4)}, s{sT0} offen sc1")
    a.e(f"buffer_load_dwordx4 {vr(b+4,4)}, v{vL16}, {sr(sWS,4)}, s{sT0} offen offset:1024 sc1")
    a.e(f"buffer_load_dwordx2 {vr(l,2)}, v{vL8}, {sr(sWS,4)}, s{sT0} offen offset:2048 sc1")
def ocheck(j):
    b, l = oregs(j)
    a.label(f"L_ochk{j}")
    a.e(f"v_max_u32 v{vT0}, v{l}, v{l+1}")
    for i in range(0, 8, 2): a.e(f"v_max3_u32 v{vT0}, v{vT0}, v{b+i}, v{b+i+1}")
    a.e(f"v_cmp_eq_u32 vcc, -1, v{vT0}\ns_cbranch_vccnz L_oslow{j}")
js = [(i, t) for i in range(10) for t in range(5)]
for j in range(4): opoll(j)
for j in range(opt.npre): trd(vRing2 + 4 * j, *js[j], ("fr",) + js[j])
issued = opt.npre
for j, (i, t) in enumerate(js):
    if t == 0 and i % 5 in (0, 2):
        pj = 2 * (i // 5) + (i % 5) // 2
        a.e(f"s_waitcnt vmcnt({9 - 3*pj})")
        ocheck(pj)
        if pj in (0, 3): stamp(f"O poll{pj}")
    while issued < len(js) and issued < j + NRING2:
        trd(vRing2 + 4 * (issued % NRING2), *js[issued], ("fr",) + js[issued]); issued += 1
    a.wait_lg(("fr", i, t))
    c = "0" if i == 0 else vr(vAcc2 + 4 * t, 4)
    a.e(f"v_mfma_f32_16x16x32_bf16 {vr(vAcc2+4*t,4)}, {vr(vRing2+4*(j%NRING2),4)}, {vr(vOF+4*i,4)}, {c}")
stamp("ogemm")
a.e(f"""v_and_b32 v{vT0}, 15, v{vLane}
v_mul_u32_u24 v{vT0}, 1280, v{vT0}
v_lshrrev_b32 v{vT1}, 4, v{vLane}
v_mul_u32_u24 v{vT1}, 40, v{vT1}
v_add_u32 v{vT0}, v{vT0}, v{vT1}
s_mul_i32 s{sT1}, s{sT}, 20480
s_add_u32 s{sT1}, s{sT1}, s{sHGO}
s_nop 1""")
a.e(f"s_cmp_eq_u32 s{sKH}, 0\ns_cbranch_scc0 L_o1")
for t in (3, 4): a.e(f"ds_write_b128 v{vAa}, {vr(vAcc2+4*t,4)} offset:{3072+1024*(t-3)}")
a.e("s_waitcnt lgkmcnt(0)\ns_barrier")
for t in range(3): a.e(f"ds_read_b128 {vr(vOF+4*t,4)}, v{vAb} offset:{3072+1024*t}")
a.e("s_waitcnt lgkmcnt(0)")
for i in range(12): a.e(f"v_add_f32 v{vAcc2+i}, v{vAcc2+i}, v{vOF+i}")
for i in range(6): a.e(f"v_cvt_pk_bf16_f32 v{vOF+16+i}, v{vAcc2+2*i}, v{vAcc2+2*i+1}")
a.e(f"buffer_store_dwordx4 {vr(vOF+16,4)}, v{vT0}, {sr(sOUT,4)}, s{sT1} offen")
a.e(f"buffer_store_dwordx2 {vr(vOF+20,2)}, v{vT0}, {sr(sOUT,4)}, s{sT1} offen offset:16")
a.e("s_branch L_fin")
a.label("L_o1")
for t in range(3): a.e(f"ds_write_b128 v{vAa}, {vr(vAcc2+4*t,4)} offset:{3072+1024*t}")
a.e("s_waitcnt lgkmcnt(0)\ns_barrier")
for t in range(2): a.e(f"ds_read_b128 {vr(vOF+4*t,4)}, v{vAb} offset:{3072+1024*t}")
a.e("s_waitcnt lgkmcnt(0)")
for i in range(8): a.e(f"v_add_f32 v{vAcc2+12+i}, v{vAcc2+12+i}, v{vOF+i}")
for i in range(4): a.e(f"v_cvt_pk_bf16_f32 v{vOF+16+i}, v{vAcc2+12+2*i}, v{vAcc2+12+2*i+1}")
a.e(f"buffer_store_dwordx4 {vr(vOF+16,4)}, v{vT0}, {sr(sOUT,4)}, s{sT1} offen offset:24")
a.label("L_fin")
a.e(f"s_or_b32 s{sT0}, s2, s{sW}\ns_cmp_eq_u32 s{sT0}, 0\ns_cbranch_scc0 L_noep")
a.e(f"s_mov_b64 exec, 1\nv_mov_b32 v{vT1}, s{sTAG}\nv_mov_b32 v{vT0}, {A_EP}\nbuffer_store_dword v{vT1}, v{vT0}, {sr(sWS,4)}, 0 offen sc1\ns_mov_b64 exec, -1")
a.label("L_noep")
if opt.debug:
    a.e("s_waitcnt vmcnt(0)")
    stamp("end")
    a.e(f"s_lshl_b32 s{sT0}, s2, 3\ns_add_u32 s{sT0}, s{sT0}, s{sW}\ns_lshl_b32 s{sT0}, s{sT0}, 8\ns_add_u32 s{sT0}, s{sT0}, {A_DBG}")
    a.e(f"v_writelane_b32 v17, s{sSPIN}, 31\nv_lshlrev_b32 v{vT0}, 2, v{vLane}")
    a.e(f"buffer_store_dword v17, v{vT0}, {sr(sWS,4)}, s{sT0} offen")
a.label("L_end")
a.e("s_endpgm")
for c in slow_stubs:
    a.label(f"L_slow{c}")
    a.e(f"s_add_u32 s{sSPIN}, s{sSPIN}, 1\ns_cmp_lt_u32 s{sSPIN}, 400000\ns_cbranch_scc0 L_end")
    a.e(f"s_mov_b64 exec, {sr(sMSK,2)}\n{FLOAD}\ns_mov_b64 exec, -1\ns_waitcnt vmcnt(0)")
    flag_cmp()
    a.e(f"s_nop 0\ns_and_b32 s{sT0}, s{sMSK + c//4}, 0x{0xff << (8*(c%4)):x}\ns_cbranch_scc1 L_slow{c}\ns_branch L_back{c}")
for j in range(4):
    a.label(f"L_oslow{j}")
    a.e(f"s_add_u32 s{sSPIN}, s{sSPIN}, 1\ns_cmp_lt_u32 s{sSPIN}, 400000\ns_cbranch_scc0 L_end")
    opoll(j)
    a.e(f"s_waitcnt vmcnt(0)\ns_branch L_ochk{j}")
a.label("L_slowf2")
a.e(f"s_add_u32 s{sSPIN}, s{sSPIN}, 1\ns_cmp_lt_u32 s{sSPIN}, 400000\ns_cbranch_scc0 L_end")
a.e(f"buffer_load_dword v{vT1}, v{vT0}, {sr(sWS,4)}, s{sF2} offen sc1\ns_waitcnt vmcnt(0)\ns_branch L_f2")
a.label("L_fallback")
fS = 70; fM = 50; fK = vKr; fV = vVr
def f_scores():
    a.e(f"buffer_load_dwordx4 {vr(fK,4)}, v{vL16}, {sr(sWS,4)}, s{sT0} offen sc1")
    a.e(f"buffer_load_dwordx2 {vr(fK+4,2)}, v{vK1a}, {sr(sWS,4)}, s{sT0} offen offset:1024 sc1")
    a.e(f"buffer_load_dwordx4 {vr(fV,4)}, v{vVa}, {sr(sWS,4)}, s{sT0} offen offset:1536 sc1")
    a.e(f"buffer_load_dwordx4 {vr(fV+4,4)}, v{vVa}, {sr(sWS,4)}, s{sT0} offen offset:2304 sc1")
    a.e("s_waitcnt vmcnt(0)")
    a.e(f"v_mfma_f32_32x32x4_2b_bf16 {vr(fS,32)}, {vr(fK+4,2)}, {vr(vQH[0],2)}, 0\ns_nop 15\ns_nop 1")
    a.e(f"v_mfma_f32_32x32x16_bf16 {vr(fS+16,16)}, {vr(fK,4)}, {vr(vQ[1],4)}, {vr(fS+16,16)}\ns_nop 11")
a.e(f"v_mov_b32 v{fM}, 0xff800000\ns_mov_b32 s{sT0}, 0")
a.label("L_fb1")
f_scores()
for i in range(0, 16, 2): a.e(f"v_max3_f32 v{fM}, v{fM}, v{fS+16+i}, v{fS+17+i}")
a.e(f"s_add_u32 s{sT0}, s{sT0}, 4096\ns_cmp_lt_u32 s{sT0}, 262144\ns_cbranch_scc1 L_fb1")
a.e(f"v_mov_b32 v{fM+1}, v{fM}\ns_nop 1\nv_permlane32_swap_b32 v{fM}, v{fM+1}\ns_nop 1\nv_max_f32 v{fM}, v{fM}, v{fM+1}")
for i in range(16): a.e(f"v_mov_b32 v{vSum+i}, 0")
a.e(f"s_mov_b32 s{sT0}, 0")
a.label("L_fb2")
f_scores()
for i in range(16): a.e(f"v_sub_f32 v{fS+16+i}, v{fS+16+i}, v{fM}")
for i in range(16): a.e(f"v_exp_f32 v{fS+16+i}, v{fS+16+i}")
a.e("s_nop 0")
for i in range(8): a.e(f"v_cvt_pk_bf16_f32 v{vP+i}, v{fS+16+2*i}, v{fS+17+2*i}")
a.e("s_nop 1")
for g in range(2):
    a.e(f"v_mfma_f32_32x32x16_bf16 {vr(vSum,16)}, {vr(fV+4*g,4)}, {vr(vP+4*g,4)}, {vr(vSum,16)}")
a.e(f"s_add_u32 s{sT0}, s{sT0}, 4096\ns_cmp_lt_u32 s{sT0}, 262144\ns_cbranch_scc1 L_fb2")
a.e("s_nop 15\ns_branch L_norm")
a.raw(open("footer.txt").read())
txt = a.text()
for p in check(txt): print("HAZARD", p, file=sys.stderr)
open(sys.argv[1], "w").write(txt)
if opt.debug: open(sys.argv[1] + ".stamps", "w").write("\n".join(STAMPS))
```

```python
import sys, math, struct
from asmlib import *

class Opt:
    debug = False
    prio = {0: 3, 16: 2, 26: 1, 30: 0}
    force_fallback = False
    fast = True
    touch = True
    wo0 = 1
    only = None
    dbgout = False
    npre = 40
opt = Opt()
for x in sys.argv[2:]:
    k, v = x.split("=", 1)
    setattr(opt, k, eval(v))

A_KV = 0
A_F1 = 262144
A_EP = A_F1 + 65536
A_F2 = 524288
A_O = 1 << 20
A_DBG = 4 << 20
WS_BYTES = 8 << 20
OOB = 0x40000000
L_W = 0
L_KVW = 40960
L_X = 66560
L_FLG = 148480
L_S = 102400
XSLOT = 6144
L_Q2 = L_S + 8 * 2560
LDS_BYTES = L_S + 8 * XSLOT
assert L_X + 81920 == L_FLG and L_FLG + 16 <= LDS_BYTES
sX, sWQ, sWKV, sWO, sOUT, sWS = 20, 24, 28, 32, 36, 40
sW, sTT, sKH, sHG, sTB, sT, sTK, sTAG, sXCD, sR = 44, 45, 46, 47, 48, 49, 50, 51, 52, 53
sT0, sT1, sT2, sT3 = 54, 55, 56, 57
sKV = 58
sXCC = 59
sO0, sO1 = 60, 61
sHGO = 62
sM0B = 63
sSPIN = 64
sOB = 65
sWQB = 66
sRG = 67
sMSK = 72
sC0 = 74
sF2 = 76
vLane, vL16, vK1a, vVa, vFa, vWoA, vWoB, vTr, vTr2, vAown, vAa, vAb, vFlag, vT0, vT1, vL8 = range(1, 17)
vQ = [18, 22, 26, 30]; vQH = [34, 36]
vS = [38, 70]
vP = 102
vO = 118
vKr = 182
vVr = 200
vR1 = 224
vXf = 38; vAcc = 78; vFr = 98
vW40, vXp = 224, 225
vXa = 226
vQa = 231
vCx, vCw = 237, 238
vSt = 240
vT2, vT3 = 241, 242
vM1w, vM1r, vM2w, vM2h = 243, 244, 245, 246

a = Asm()
nstamp = [0]
STAMPS = []
def stamp(name):
    if not opt.debug: return
    if opt.only is not None and name not in opt.only and not name.startswith("A:"): return
    i = nstamp[0]; nstamp[0] += 1
    a.c(f"stamp {i}: {name}")
    a.e("s_memrealtime s[98:99]\ns_memtime s[100:101]")
    a.wait_lg0()
    a.e(f"v_writelane_b32 v17, s98, {i}\nv_writelane_b32 v17, s100, {32+i}")
    STAMPS.append(name)
def stamp_at(i):
    if not opt.debug: return
    a.e("s_memrealtime s[98:99]\ns_memtime s[100:101]")
    a.wait_lg0()
    a.e(f"v_writelane_b32 v17, s98, {i}\nv_writelane_b32 v17, s100, {32+i}")
def srd(base, lo, nbytes):
    a.e(f"s_mov_b32 s{base}, s{lo}\ns_mov_b32 s{base+1}, s{lo+1}\ns_mov_b32 s{base+2}, {nbytes}\ns_mov_b32 s{base+3}, 0x00020000")
def trd(f, i, t, tag):
    off = (i // 2) * 20480 + (i % 2) * 5120 + 8 * t
    base = vTr
    if i // 2 >= 3: base = vTr2; off -= 61440
    for q in range(2):
        a.lds(f"ds_read_b64_tr_b16 {vr(f+2*q,2)}, v{base} offset:{off+q*2560}", tag)
slow_stubs = []

a.raw(open("header.txt").read().replace("@LDS@", str(LDS_BYTES)))
a.e("s_cmp_ge_u32 s2, 256\ns_cbranch_scc1 L_end")
a.e("s_load_dwordx16 s[4:19], s[0:1], 0")
if opt.debug:
    a.e("v_mov_b32 v17, 0\ns_memrealtime s[94:95]\ns_memtime s[96:97]"); nstamp[0] = 1; STAMPS.append("start")
a.e(f"""v_lshrrev_b32 v{vT0}, 6, v0
v_and_b32 v{vLane}, 63, v0
s_and_b32 s{sXCD}, s2, 7
s_lshr_b32 s{sT0}, s2, 3
v_readfirstlane_b32 s{sW}, v{vT0}
s_and_b32 s{sHG}, s{sT0}, 7
s_lshr_b32 s{sR}, s{sT0}, 3
s_lshl_b32 s{sTB}, s{sXCD}, 2
s_add_u32 s{sTB}, s{sTB}, s{sR}
s_and_b32 s{sTT}, s{sW}, 3
s_lshr_b32 s{sKH}, s{sW}, 2
s_lshr_b32 s{sTK}, s{sHG}, 1
v_mov_b32 v{vAcc}, 0
v_mov_b32 v{vAcc+1}, 0
v_mov_b32 v{vAcc+2}, 0
v_mov_b32 v{vAcc+3}, 0
v_mov_b32 v{vT1}, {L_FLG}
v_lshlrev_b32 v{vL16}, 4, v{vLane}
s_mov_b64 exec, 1
ds_write_b128 v{vT1}, {vr(vAcc,4)}
s_mov_b64 exec, -1""")
a.e(f"""v_lshrrev_b32 v{vT0}, 4, v{vLane}
v_sub_u32 v{vT0}, 4, v{vT0}
v_xor_b32 v{vT0}, v{vT0}, v{vLane}
v_and_b32 v{vT0}, 3, v{vT0}
v_lshrrev_b32 v{vXp}, 2, v{vLane}
v_mul_u32_u24 v{vXp}, 1280, v{vXp}
v_lshl_add_u32 v{vXp}, v{vT0}, 4, v{vXp}
s_lshl_b32 s{sT}, s{sTB}, 2
s_add_u32 s{sT0}, s{sT}, s{sTK}
s_mul_i32 s{sT0}, s{sT0}, 20480
s_mul_i32 s{sT2}, s{sTT}, 320
s_add_u32 s{sT0}, s{sT0}, s{sT2}
s_mul_i32 s{sT1}, s{sTK}, 20480
s_mul_i32 s{sT2}, s{sTT}, 5120
s_add_u32 s{sT1}, s{sT1}, s{sT2}
s_add_u32 s{sT}, s{sT}, s{sTT}
s_mul_i32 s{sHGO}, s{sHG}, 160
s_mul_i32 s{sM0B}, s{sW}, 640
s_getreg_b32 s{sXCC}, hwreg(HW_REG_XCC_ID, 0, 3)
s_mov_b32 s{sSPIN}, 0""")
a.e(f"""v_mul_u32_u24 v{vT0}, 6554, v{vLane}
v_lshrrev_b32 v{vT0}, 16, v{vT0}
v_mul_u32_u24 v{vT1}, 10, v{vT0}
v_sub_u32 v{vT1}, v{vLane}, v{vT1}
v_lshlrev_b32 v{vT1}, 4, v{vT1}
v_mul_u32_u24 v{vW40}, 1280, v{vT0}
v_add_u32 v{vW40}, v{vW40}, v{vT1}
v_lshrrev_b32 v{vWoB}, 1, v{vT0}
v_mul_u32_u24 v{vWoB}, 38, v{vWoB}
v_add_u32 v{vWoB}, v{vWoB}, v{vT0}
v_mul_u32_u24 v{vWoB}, 1280, v{vWoB}
v_add_u32 v{vWoB}, v{vWoB}, v{vT1}""")
a.e(f"""s_lshl_b32 s{sT2}, s{sT}, 3
s_mul_i32 s{sOB}, s{sT2}, 2560
s_add_u32 s{sOB}, s{sOB}, {A_O}
s_mul_i32 s{sT2}, s{sHG}, 2560
s_add_u32 s{sT2}, s{sT2}, s{sOB}
s_lshl_b32 s{sT3}, s{sKH}, 10
s_add_u32 s{sO0}, s{sT2}, s{sT3}
s_lshl_b32 s{sT3}, s{sKH}, 2
s_add_u32 s{sO1}, s{sT2}, s{sT3}
s_add_u32 s{sO1}, s{sO1}, 2048
s_mul_i32 s{sT3}, s{sKH}, 10240
s_add_u32 s{sOB}, s{sOB}, s{sT3}""")
a.e("s_waitcnt lgkmcnt(0)")
if opt.debug: a.e("v_writelane_b32 v17, s94, 0\nv_writelane_b32 v17, s96, 32")
srd(sX, 4, 2621440)
a.e(f"s_cmp_lt_u32 s{sW}, 4\ns_cbranch_scc0 L_b1")
def xdma(soff, m0b):
    for i in range(5):
        a.e(f"s_add_u32 m0, s{m0b}, {L_X + 960*i}\ns_nop 0")
        a.e(f"buffer_load_dwordx4 v{vXp}, {sr(sX,4)}, s{soff} offen offset:{64*i} lds")
xdma(sT0, sT1)
a.e(f"""s_bitcmp1_b32 s{sHG}, 0
s_cselect_b32 s{sWKV}, s10, s8
s_cselect_b32 s{sWKV+1}, s11, s9
s_mov_b32 s{sWKV+2}, 25600
s_mov_b32 s{sWKV+3}, 0x00020000
s_mul_i32 s{sT0}, s{sTT}, 6400
s_add_u32 m0, s{sT0}, {L_KVW}
s_barrier""")
for i in range(4): a.e(f"buffer_load_dwordx4 v{vL16}, {sr(sWKV,4)}, s{sT0} offen offset:{1024*i} lds")
a.e(f"s_add_u32 m0, s{sT0}, {L_KVW+4096}\ns_add_u32 s{sT0}, s{sT0}, 4096")
for i in range(2): a.e(f"buffer_load_dwordx4 v{vL16}, {sr(sWKV,4)}, s{sT0} offen offset:{1024*i} lds")
a.e(f"s_mov_b64 exec, 0xffff\nbuffer_load_dwordx4 v{vL16}, {sr(sWKV,4)}, s{sT0} offen offset:2048 lds\ns_mov_b64 exec, -1")
srd(sWS, 18, WS_BYTES); srd(sWO, 12, 819200); srd(sOUT, 14, 2621440)
a.e("s_branch L_setup")
a.label("L_b1")
srd(sWS, 18, WS_BYTES); srd(sWO, 12, 819200); srd(sOUT, 14, 2621440)
if opt.touch:
    a.e(f"""s_sub_u32 s{sT0}, s{sO0}, 3072
v_mul_u32_u24 v{vT0}, s{sT0}, v{vLane}
s_mul_i32 s{sT0}, s{sT}, 20480
s_add_u32 s{sT0}, s{sT0}, s{sHGO}
s_mov_b64 exec, 3
buffer_load_dword v{vT2}, v{vT0}, {sr(sWS,4)}, 0 offen offset:3072 sc1
s_mov_b64 exec, 1
buffer_load_dword v{vT2}, v{vL16}, {sr(sOUT,4)}, s{sT0} offen
buffer_load_dword v{vT2}, v{vL16}, {sr(sWO,4)}, s{sHGO} offen
s_mov_b64 exec, -1""")
a.e("s_barrier")
a.label("L_setup")
stamp("part1")
a.e(f"s_load_dword s{sTAG}, s[18:19], {A_EP}")
srd(sWQ, 6, 819200)
for rho in range(5):
    a.e(f"s_add_u32 s{sT0}, s{sR}, {rho}\ns_sub_u32 s{sT1}, s{sT0}, 5\ns_cmp_ge_u32 s{sT0}, 5\ns_cselect_b32 s{sRG+rho}, s{sT1}, s{sT0}")
a.e(f"""v_bfe_u32 v{vT0}, v{vLane}, 2, 2
v_sub_u32 v{vT0}, 4, v{vT0}
v_lshrrev_b32 v{vT1}, 4, v{vLane}
v_xor_b32 v{vT0}, v{vT0}, v{vT1}
v_and_b32 v{vT0}, 3, v{vT0}
v_and_b32 v{vT1}, 15, v{vLane}
v_lshlrev_b32 v{vT1}, 6, v{vT1}
v_lshl_add_u32 v{vT0}, v{vT0}, 4, v{vT1}
s_mul_i32 s{sT0}, s{sTT}, 20480
s_mul_i32 s{sT1}, s{sKH}, 10240
s_add_u32 s{sT0}, s{sT0}, s{sT1}
s_add_u32 s{sT0}, s{sT0}, {L_X}
s_mul_i32 s{sT2}, s{sTK}, 20480
s_mul_i32 s{sT3}, s{sTT}, 5120
s_add_u32 s{sT2}, s{sT2}, s{sT3}
s_add_u32 s{sT2}, s{sT2}, {L_X}
v_add_u32 v{vCx}, s{sT2}, v{vT0}
v_mul_u32_u24 v{vTr}, 40, v{vLane}
v_add_u32 v{vTr}, s{sT1}, v{vTr}
v_add_u32 v{vTr2}, 61440, v{vTr}""")
for rho in range(5):
    a.e(f"s_lshl_b32 s{sT2}, s{sRG+rho}, 11\ns_add_u32 s{sT2}, s{sT2}, s{sT0}\nv_add_u32 v{vXa+rho}, s{sT2}, v{vT0}\ns_mul_i32 s{sRG+rho}, s{sRG+rho}, 81920")
a.e(f"""s_lshl_b32 s{sT0}, s{sTT}, 3
s_lshl_b32 s{sT1}, s{sKH}, 2
s_add_u32 s{sT0}, s{sT0}, s{sT1}
s_mul_i32 s{sT0}, s{sT0}, 1280
s_add_u32 s{sWQB}, s{sT0}, s{sHGO}""")
a.e(f"""s_and_b32 s{sT0}, s{sTT}, 1
s_mul_i32 s{sT0}, s{sT0}, 20
s_and_b32 s{sT1}, s{sTT}, 2
s_lshl_b32 s{sT2}, s{sT1}, 1
s_add_u32 s{sT2}, s{sT2}, s{sT0}
s_lshl_b32 s{sT3}, s{sKH}, 3
s_add_u32 s{sT2}, s{sT2}, s{sT3}
s_mul_i32 s{sT2}, s{sT2}, 1280
v_add_u32 v{vWoA}, s{sT2}, v{vW40}
s_add_u32 s{sT0}, s{sT0}, s{sT1}
s_mul_i32 s{sT3}, s{sKH}, 80
s_add_u32 s{sT0}, s{sT0}, s{sT3}
s_add_u32 s{sT0}, s{sT0}, 16
s_mul_i32 s{sT0}, s{sT0}, 1280
v_add_u32 v{vWoB}, s{sT0}, v{vWoB}""")
a.e(f"""v_lshrrev_b32 v{vT0}, 4, v{vLane}
v_bfe_u32 v{vT1}, v{vLane}, 2, 2
v_lshl_add_u32 v{vT0}, v{vT0}, 3, v{vT1}
v_mul_u32_u24 v{vT0}, 40, v{vT0}
s_mul_i32 s{sT0}, s{sTT}, 6400
s_add_u32 s{sT0}, s{sT0}, {L_KVW}
v_add_u32 v{vT0}, s{sT0}, v{vT0}
v_and_b32 v{vT1}, 3, v{vLane}
v_lshlrev_b32 v{vT1}, 4, v{vT1}
v_min_u32 v{vCw}, 32, v{vT1}
v_add_u32 v{vCw}, v{vCw}, v{vT0}
v_add_u32 v{vT1}, 8, v{vT1}
v_min_u32 v{vCw+1}, 32, v{vT1}
v_add_u32 v{vCw+1}, v{vCw+1}, v{vT0}""")
a.e(f"""v_and_b32 v{vT0}, 31, v{vLane}
v_lshlrev_b32 v{vK1a}, 4, v{vT0}
v_lshrrev_b32 v{vT1}, 5, v{vLane}
v_mul_u32_u24 v{vT1}, 384, v{vT1}
v_add_u32 v{vVa}, v{vK1a}, v{vT1}
v_mov_b32 v{vT1}, {OOB}
s_mov_b32 vcc_lo, 0xff880000
s_mov_b32 vcc_hi, 0xff880000
v_cndmask_b32 v{vVa}, v{vVa}, v{vT1}, vcc
v_lshlrev_b32 v{vL8}, 3, v{vLane}
s_and_b32 s{sT0}, s{sTT}, 1
s_lshl_b32 s{sT0}, s{sT0}, 1
s_add_u32 s{sT0}, s{sT0}, s{sKH}
s_lshl_b32 s{sKV}, s{sXCD}, 15
s_lshl_b32 s{sT1}, s{sT0}, 13
s_add_u32 s{sKV}, s{sKV}, s{sT1}
v_lshrrev_b32 v{vFa}, 3, v{vLane}
v_add_u32 v{vFa}, s{sXCD}, v{vFa}
v_and_b32 v{vFa}, 7, v{vFa}
v_lshlrev_b32 v{vFa}, 5, v{vFa}
v_and_b32 v{vT1}, 7, v{vLane}
v_add_u32 v{vFa}, v{vFa}, v{vT1}
v_lshlrev_b32 v{vFa}, 7, v{vFa}
s_lshl_b32 s{sT1}, s{sT0}, 10
s_add_u32 s{sT1}, s{sT1}, {A_F1}
v_add_u32 v{vFa}, s{sT1}, v{vFa}""")
a.e(f"""s_mul_i32 s{sT0}, s{sW}, {XSLOT}
s_add_u32 s{sT0}, s{sT0}, {L_S}
v_add_u32 v{vAown}, s{sT0}, v{vL16}
s_xor_b32 s{sT0}, s{sW}, 1
s_mul_i32 s{sT0}, s{sT0}, {XSLOT}
s_add_u32 s{sT0}, s{sT0}, {L_S}
v_add_u32 v{vAa}, s{sT0}, v{vL16}
s_xor_b32 s{sT0}, s{sW}, 5
s_mul_i32 s{sT0}, s{sT0}, {XSLOT}
s_add_u32 s{sT0}, s{sT0}, {L_S}
v_add_u32 v{vAb}, s{sT0}, v{vL16}
s_mul_i32 s{sT0}, s{sW}, 2560
s_add_u32 s{sT0}, s{sT0}, {L_S}
v_add_u32 v{vM1w}, s{sT0}, v{vL16}
s_xor_b32 s{sT0}, s{sW}, 4
s_mul_i32 s{sT0}, s{sT0}, 2560
s_add_u32 s{sT0}, s{sT0}, {L_S}
v_add_u32 v{vM1r}, s{sT0}, v{vL16}""")
a.e(f"""s_mul_i32 s{sT0}, s{sTT}, 2560
s_add_u32 s{sT0}, s{sT0}, {L_Q2}
s_xor_b32 s{sT1}, s{sTT}, 1
s_mul_i32 s{sT1}, s{sT1}, 2560
s_add_u32 s{sT1}, s{sT1}, {L_Q2}
s_lshl_b32 s{sT2}, s{sKH}, 10
s_add_u32 s{sT2}, s{sT2}, s{sT0}
v_add_u32 v{vM2w}, s{sT2}, v{vL16}
s_lshl_b32 s{sT2}, s{sKH}, 2
s_add_u32 s{sT2}, s{sT2}, s{sT0}
v_add_u32 v{vM2h}, s{sT2}, v{vL8}
v_lshrrev_b32 v{vT0}, 5, v{vLane}
v_lshl_add_u32 v{vT0}, v{vT0}, 10, v{vK1a}
s_lshl_b32 s{sT2}, s{sKH}, 9
s_xor_b32 s{sT3}, s{sT2}, 512
v_add_u32 v{vT1}, s{sT3}, v{vT0}
v_add_u32 v{vQa}, s{sT0}, v{vT1}
v_add_u32 v{vQa+2}, s{sT1}, v{vT1}
v_add_u32 v{vT1}, s{sT2}, v{vT0}
v_add_u32 v{vQa+1}, s{sT0}, v{vT1}
v_add_u32 v{vQa+3}, s{sT1}, v{vT1}
s_lshr_b32 s{sT3}, s{sT3}, 1
v_xor_b32 v{vT1}, s{sT3}, v{vL8}
v_add_u32 v{vQa+4}, s{sT0}, v{vT1}
v_add_u32 v{vQa+5}, s{sT1}, v{vT1}""")
a.e(f"""s_lshl_b32 s{sF2}, s{sT}, 4
s_lshl_b32 s{sT0}, s{sHG}, 1
s_add_u32 s{sT0}, s{sT0}, s{sKH}
s_add_u32 s{sF2}, s{sF2}, s{sT0}
s_lshl_b32 s{sF2}, s{sF2}, 7
s_add_u32 s{sF2}, s{sF2}, {A_F2}""")
a.e(f"s_waitcnt lgkmcnt(0)\ns_mul_i32 s{sTAG}, s{sTAG}, 1664525\ns_add_u32 s{sTAG}, s{sTAG}, 1013904223")
stamp("setup")
a.e(f"s_add_u32 s{sT1}, s{sW}, {L_FLG}\nv_mov_b32 v{vT3}, s{sT1}\nv_mov_b32 v{vFlag}, 1")
a.e(f"s_cmp_lt_u32 s{sW}, 4\ns_cbranch_scc1 L_a2")
a.e(f"s_mov_b64 exec, 1\nds_write_b8 v{vT3}, v{vFlag}\ns_mov_b64 exec, -1")
def wround_b(rho):
    a.e(f"s_add_u32 s{sT2}, s{sRG+rho}, s{sT3}\ns_mov_b32 exec_hi, 0xff")
    for u in range(8):
        a.e(f"s_add_u32 m0, s{sT1}, {L_W + rho*20480 + u*640}\ns_add_u32 s{sT0}, s{sT2}, {(8*(u&3)+4*(u>>2))*1280}")
        a.e(f"buffer_load_dwordx4 v{vW40}, {sr(sWQ,4)}, s{sT0} offen lds")
    a.e("s_mov_b32 exec_hi, -1")
def wround_b_pre():
    a.e(f"""s_lshr_b32 s{sT3}, s{sTT}, 1
s_mul_i32 s{sT3}, s{sT3}, 10
s_and_b32 s{sT1}, s{sTT}, 1
s_add_u32 s{sT3}, s{sT3}, s{sT1}
s_mul_i32 s{sT3}, s{sT3}, 40960
s_add_u32 s{sT3}, s{sT3}, s{sHGO}
s_mul_i32 s{sT1}, s{sTT}, 5120""")
wround_b_pre(); wround_b(0)
for j in (1, 2, 3):
    a.e(f"""s_add_u32 s{sT0}, s{sTK}, {j}
s_and_b32 s{sT0}, s{sT0}, 3
s_mul_i32 s{sT1}, s{sT0}, 20480
s_mul_i32 s{sT2}, s{sTT}, 5120
s_add_u32 s{sT1}, s{sT1}, s{sT2}
s_lshl_b32 s{sT2}, s{sTB}, 2
s_add_u32 s{sT0}, s{sT0}, s{sT2}
s_mul_i32 s{sT0}, s{sT0}, 20480
s_mul_i32 s{sT2}, s{sTT}, 320
s_add_u32 s{sT0}, s{sT0}, s{sT2}""")
    xdma(sT0, sT1)
wround_b_pre(); wround_b(1)
kst = nstamp[0]
stamp("A:data B:issued")
stamp("A:chain B:-")
stamp("A:pub B:x")
a.e("s_waitcnt vmcnt(8)")
stamp_at(kst + 2)
a.e("s_branch L_bx")
a.label("L_a2")
cX, cW, cA, cR = 38, 98, 78, 138
a.e(f"""s_bitcmp1_b32 s{sHG}, 0
s_cbranch_scc1 L_ofv
v_lshrrev_b32 v{vT0}, 4, v{vLane}
v_and_b32 v{vT1}, 15, v{vLane}
v_lshlrev_b32 v{vT1}, 4, v{vT1}
v_lshl_add_u32 v{vSt}, v{vT0}, 9, v{vT1}
s_and_b32 s{sT1}, s{sTK}, 1
s_lshl_b32 s{sT1}, s{sT1}, 8
s_branch L_ofd""")
a.label("L_ofv")
a.e(f"""v_and_b32 v{vT0}, 7, v{vLane}
v_lshlrev_b32 v{vT0}, 2, v{vT0}
v_mov_b32 v{vT1}, 0x73625410
v_lshrrev_b32 v{vT0}, v{vT0}, v{vT1}
v_and_b32 v{vT0}, 7, v{vT0}
v_add_u32 v{vT0}, 16, v{vT0}
v_and_b32 v{vT1}, 4, v{vLane}
v_lshlrev_b32 v{vT1}, 1, v{vT1}
v_and_b32 v{vT2}, 3, v{vLane}
v_add_u32 v{vT1}, v{vT1}, v{vT2}
v_lshrrev_b32 v{vT2}, 5, v{vLane}
v_lshl_add_u32 v{vT1}, v{vT2}, 2, v{vT1}
s_mov_b32 vcc_lo, 0xff00ff00
s_mov_b32 vcc_hi, 0xff00ff00
v_cndmask_b32 v{vT0}, v{vT1}, v{vT0}, vcc
v_bfe_u32 v{vT1}, v{vLane}, 4, 1
v_mul_u32_u24 v{vT1}, 384, v{vT1}
v_lshl_add_u32 v{vSt}, v{vT0}, 4, v{vT1}
s_and_b32 s{sT1}, s{sTK}, 1
s_mul_i32 s{sT1}, s{sT1}, 768
s_add_u32 s{sT1}, s{sT1}, 1536""")
a.label("L_ofd")
a.e(f"""s_lshl_b32 s{sT0}, s{sTB}, 13
s_lshr_b32 s{sT2}, s{sTK}, 1
s_lshl_b32 s{sT2}, s{sT2}, 12
s_add_u32 s{sT0}, s{sT0}, s{sT2}
s_add_u32 s{sT0}, s{sT0}, s{sT1}
s_mul_i32 s{sT1}, s{sTT}, 6400
s_add_u32 s{sT1}, s{sT1}, {L_KVW}
v_add_u32 v{vT2}, s{sT1}, v{vL16}""")
a.e("s_waitcnt vmcnt(7)")
for i in range(5): a.lds(f"ds_read_b128 {vr(cX+4*i,4)}, v{vCx} offset:{1024*i}", ("cx", i))
a.e("s_waitcnt vmcnt(0)")
stamp_at(kst)
def cw_read(i):
    for h in range(2):
        for q in range(2):
            a.lds(f"ds_read_b64_tr_b16 {vr(cW+8*i+4*h+2*q,2)}, v{vCw+h} offset:{i*1280+q*160}", ("cw", i, h))
for i in range(5): cw_read(i)
a.e(f"s_bitcmp1_b32 s{sHG}, 0\ns_cbranch_scc1 L_chv")
save = list(a.lg)
for mat in range(2):
    a.lg = list(save)
    if mat: a.label("L_chv")
    for i in range(5):
        for h in range(2):
            a.wait_lg(("cw", i, h))
            W, X = vr(cW + 8 * i + 4 * h, 4), vr(cX + 4 * i, 4)
            c = "0" if i == 0 else vr(cA + 4 * h, 4)
            a.e(f"v_mfma_f32_16x16x32_bf16 {vr(cA+4*h,4)}, {W if not mat else X}, {X if not mat else W}, {c}")
    if not mat: a.e("s_branch L_chd")
a.label("L_chd")
a.e(f"s_cmp_eq_u32 s{sW}, 0\ns_cbranch_scc1 L_fin0\ns_nop 5")
a.e(f"ds_write_b128 v{vT2}, {vr(cA,4)}\nds_write_b128 v{vT2}, {vr(cA+4,4)} offset:1024")
a.e(f"s_mov_b64 exec, 1\nds_write_b8 v{vT3}, v{vFlag}\ns_mov_b64 exec, -1")
stamp_at(kst + 1)
a.e("s_branch L_bx")
a.label("L_fin0")
a.e(f"ds_read_b64 {vr(cR+24,2)}, v{vT3}")
for j in range(1, 4):
    for h in range(2): a.e(f"ds_read_b128 {vr(cR+8*(j-1)+4*h,4)}, v{vT2} offset:{6400*j+1024*h}")
a.e(f"""s_add_u32 s{sSPIN}, s{sSPIN}, 1
s_cmp_lt_u32 s{sSPIN}, 400000
s_cbranch_scc0 L_end
s_waitcnt lgkmcnt(6)
v_or_b32 v{vT0}, 1, v{cR+24}
v_and_b32 v{vT0}, v{vT0}, v{cR+25}
v_cmp_ne_u32 vcc, 0x01010101, v{vT0}
s_waitcnt lgkmcnt(0)
s_cbranch_vccnz L_fin0""")
stamp_at(kst + 1)
for i in range(8):
    a.e(f"v_add_f32 v{cA+i}, v{cA+i}, v{cR+i}\nv_add_f32 v{cR+8+i}, v{cR+8+i}, v{cR+16+i}")
for i in range(8): a.e(f"v_add_f32 v{cA+i}, v{cA+i}, v{cR+8+i}")
SCALE = math.log2(math.e) / math.sqrt(20.0)
SCX = f"0x{struct.unpack('<I', struct.pack('<f', SCALE))[0]:08x}"
a.e(f"s_bitcmp1_b32 s{sHG}, 0\ns_cbranch_scc1 L_stv")
for i in range(8): a.e(f"v_mul_f32 v{cA+i}, {SCX}, v{cA+i}")
for i in range(4): a.e(f"v_cvt_pk_bf16_f32 v{cR+i}, v{cA+2*i}, v{cA+2*i+1}")
a.e("s_mov_b32 exec_hi, 0xffff\ns_branch L_std")
a.label("L_stv")
for i in range(4): a.e(f"v_cvt_pk_bf16_f32 v{cR+i}, v{cA+2*i}, v{cA+2*i+1}")
a.e(f"s_nop 1\nv_permlane32_swap_b32 v{cR}, v{cR+2}\nv_permlane32_swap_b32 v{cR+1}, v{cR+3}")
a.e("s_mov_b64 exec, 0x30003000")
for i in range(4): a.e(f"v_mov_b32 v{cR+i}, 0x3f803f80")
a.e("s_mov_b32 exec_lo, 0xc000c000")
for i in range(4): a.e(f"v_mov_b32 v{cR+i}, 0")
a.e("s_mov_b32 exec_lo, -1\ns_mov_b32 exec_hi, 0x00ff00ff")
a.label("L_std")
a.e(f"""buffer_store_dwordx4 {vr(cR,4)}, v{vSt}, {sr(sWS,4)}, s{sT0} offen sc1
s_mov_b64 exec, 1
s_lshl_b32 s{sT0}, s{sTB}, 3
s_add_u32 s{sT0}, s{sT0}, s{sHG}
s_lshl_b32 s{sT0}, s{sT0}, 7
s_add_u32 s{sT0}, s{sT0}, {A_F1}
v_mov_b32 v{vT1}, s{sTAG}
s_waitcnt vmcnt(0)
buffer_store_dword v{vT1}, v{vL16}, {sr(sWS,4)}, s{sT0} offen sc1
s_mov_b64 exec, -1""")
stamp_at(kst + 2)
a.label("L_bx")
a.lg = []; a.vm = []
a.e("s_barrier")
stamp("Bx")
def kslot(t): return vKr + 6 * (t % 3)
def vslot(t): return vVr + 8 * (t % 3)
def k_loads(t):
    b = kslot(t)
    return [(f"buffer_load_dwordx4 {vr(b,4)}, v{vL16}, {sr(sWS,4)}, s{sKV} offen sc1", ("k", t)),
            (f"buffer_load_dwordx2 {vr(b+4,2)}, v{vK1a}, {sr(sWS,4)}, s{sKV} offen offset:1024 sc1", ("k", t))]
def v_loads(t):
    b = vslot(t)
    return [(f"buffer_load_dwordx4 {vr(b,4)}, v{vVa}, {sr(sWS,4)}, s{sKV} offen offset:1536 sc1", ("v", t)),
            (f"buffer_load_dwordx4 {vr(b+4,4)}, v{vVa}, {sr(sWS,4)}, s{sKV} offen offset:2304 sc1", ("v", t))]
def kv_advance(t):
    if t % 2 == 0: a.e(f"s_add_u32 s{sKV}, s{sKV}, 4096")
    else: a.e(f"s_add_u32 s{sKV}, s{sKV}, {32768-4096}\ns_and_b32 s{sKV}, s{sKV}, 0x3ffff")
FLOAD = f"buffer_load_dword v{vFlag}, v{vFa}, {sr(sWS,4)}, 0 offen sc1"
def flag_cmp(): a.e(f"v_cmp_ne_u32 {sr(sMSK,2)}, s{sTAG}, v{vFlag}")
def chunk_check(c):
    a.e(f"s_and_b32 s{sT0}, s{sMSK + c//4}, 0x{0xff << (8*(c%4)):x}\ns_cbranch_scc1 L_slow{c}")
    a.label(f"L_back{c}")
    slow_stubs.append(c)
nref = [0]
def flag_refresh():
    k = nref[0]; nref[0] += 1
    a.e(f"s_or_b32 s{sT0}, s{sMSK}, s{sMSK+1}\ns_cbranch_scc0 L_ref{k}\ns_mov_b64 exec, {sr(sMSK,2)}\n{FLOAD}\ns_mov_b64 exec, -1")
    a.label(f"L_ref{k}")
for i in range(10): a.lds(f"ds_read_b128 {vr(vXf+4*i,4)}, v{vXa+i//2} offset:{1024*(i%2)}", ("x", i))
for rho in range(5):
    if rho:
        if rho == 1: a.e("s_waitcnt vmcnt(4)")
        elif rho < 4: a.wait_vm(("w", rho))
        else: a.wait_vm0()
        a.e("s_barrier")
        stamp(f"S{rho}")
    js = [(2 * rho + e, t) for e in range(2) for t in range(5)]
    fb = vFr + 40 * (rho % 2)
    for j, (i, t) in enumerate(js[:6]): trd(fb + 4 * j, i, t, ("fr", i, t))
    if rho == 4:
        flag_cmp(); a.e("s_nop 0"); chunk_check(0)
        for t in range(2):
            for x in k_loads(t) + v_loads(t): a.vload(*x)
            kv_advance(t)
        flag_refresh()
    for j, (i, t) in enumerate(js):
        if j + 6 < 10: trd(fb + 4 * (j + 6), *js[j + 6], ("fr",) + js[j + 6])
        if rho + 2 < 5 and j % 2 == 0 and j < 8:
            sl = j // 2
            a.e(f"s_add_u32 m0, s{sM0B}, {L_W + (rho+2)*20480 + sl*5120}\ns_add_u32 s{sT0}, s{sRG+rho+2}, s{sWQB}\ns_add_u32 s{sT0}, s{sT0}, {((sl>>1)*10+(sl&1))*40960}\ns_mov_b32 exec_hi, 0xff")
            a.vload(f"buffer_load_dwordx4 v{vW40}, {sr(sWQ,4)}, s{sT0} offen lds", ("w", rho + 2))
            a.e("s_mov_b32 exec_hi, -1")
            if rho == 2 and sl == 3: a.vload(FLOAD, ("flag",))
        a.wait_lg(("fr", i, t))
        c = "0" if i == 0 else vr(vAcc + 4 * t, 4)
        a.e(f"v_mfma_f32_16x16x32_bf16 {vr(vAcc+4*t,4)}, {vr(fb+4*j,4)}, {vr(vXf+4*i,4)}, {c}")
stamp("qgemm")
vPart = vFr; vPk = vFr + 12
a.e(f"s_cmp_eq_u32 s{sKH}, 0\ns_cbranch_scc0 L_q1")
for kh in range(2):
    if kh: a.label("L_q1")
    keep = [vAcc + 8 * kh + i for i in range(8)] + [vAcc + 16 + 2 * kh, vAcc + 17 + 2 * kh]
    so = 8 * (1 - kh)
    a.e("s_nop 3" if kh else "s_nop 5")
    a.e(f"ds_write_b128 v{vM1w}, {vr(vAcc+so,4)}\nds_write_b128 v{vM1w}, {vr(vAcc+so+4,4)} offset:1024")
    a.e(f"v_sub_u32 v{vT0}, v{vM1w}, v{vL8}\nv_sub_u32 v{vT1}, v{vM1r}, v{vL8}\ns_nop 1")
    a.e(f"ds_write_b64 v{vT0}, {vr(vAcc+16+2*(1-kh),2)} offset:2048")
    a.e("s_waitcnt lgkmcnt(0)\ns_barrier")
    a.e(f"ds_read_b128 {vr(vPart,4)}, v{vM1r}\nds_read_b128 {vr(vPart+4,4)}, v{vM1r} offset:1024\nds_read_b64 {vr(vPart+8,2)}, v{vT1} offset:2048")
    for blk, (lo, hi) in enumerate(((0, 4), (4, 8), (8, 10))):
        a.e(f"s_waitcnt lgkmcnt({2-blk})")
        for i in range(lo, hi): a.e(f"v_add_f32 v{vPart+i}, v{vPart+i}, v{keep[i]}")
    if not kh: a.e("s_branch L_q2")
a.label("L_q2")
for i in range(5): a.e(f"v_cvt_pk_bf16_f32 v{vPk+i}, v{vPart+2*i}, v{vPart+2*i+1}")
a.e(f"ds_write_b128 v{vM2w}, {vr(vPk,4)}\nds_write_b32 v{vM2h}, v{vPk+4} offset:2048")
a.e("s_waitcnt lgkmcnt(0)\ns_barrier")
stamp("E2")
a.lds(f"ds_read_b64 {vr(vQH[0],2)}, v{vQa+4} offset:2048", ("q", 0))
a.lds(f"ds_read_b128 {vr(vQ[0],4)}, v{vQa}", ("q", 0))
a.lds(f"ds_read_b128 {vr(vQ[1],4)}, v{vQa+1}", ("q", 0))
a.lds(f"ds_read_b64 {vr(vQH[1],2)}, v{vQa+5} offset:2048", ("q", 1))
a.lds(f"ds_read_b128 {vr(vQ[2],4)}, v{vQa+2}", ("q", 1))
a.lds(f"ds_read_b128 {vr(vQ[3],4)}, v{vQa+3}", ("q", 1))
seq = [(t, p) for t in range(14) for p in range(2)] + [(14, 1), (15, 1), (14, 0), (15, 0)]
NS = 32
def s2b(n): t, p = seq[n]; S = vS[n % 2]; return f"v_mfma_f32_32x32x4_2b_bf16 {vr(S,32)}, {vr(kslot(t)+4,2)}, {vr(vQH[p],2)}, 0"
def s16(n, x): t, p = seq[n]; S = vS[n % 2] + 16 * x; return f"v_mfma_f32_32x32x16_bf16 {vr(S,16)}, {vr(kslot(t),4)}, {vr(vQ[2*p+x],4)}, {vr(S,16)}"
def pv(n, g):
    t, p = seq[n]; O = vO + 16 * (2 * p + g // 2)
    c = "0" if (t == 0 and g % 2 == 0) else vr(O, 16)
    return f"v_mfma_f32_32x32x16_bf16 {vr(O,16)}, {vr(vslot(t)+4*(g%2),4)}, {vr(vP+4*g,4)}, {c}"
a.wait_vm(("k", 0))
a.wait_lg(("q", 0))
stamp("kv0")
a.e(s2b(0))
a.e(f"v_mov_b32 v{vR1}, -1\nv_mov_b32 v{vR1+1}, -1\nv_mov_b32 v{vR1+2}, -1\nv_mov_b32 v{vR1+3}, -1\ns_xor_b32 s{sT0}, s{sTAG}, s{sXCC}\nv_mov_b32 v{vR1+4}, s{sT0}")
a.e("s_nop 11"); a.e(s16(0, 0)); a.e(s16(0, 1)); a.wait_lg0(); a.e("s_nop 9")
vSum = vO + 16
for n in range(NS):
    t, p = seq[n]
    a.c(f"half-step {n}: tile {t} pair {p}")
    if n in opt.prio: a.e(f"s_setprio {opt.prio[n]}")
    if n in (4, 8, 16, 24): stamp(f"step{n}")
    S = vS[n % 2]
    ex = [f"v_exp_f32 v{S+i}, v{S+i}" for i in range(32)]
    cv = [f"v_cvt_pk_bf16_f32 v{vP+i}, v{S+2*i}, v{S+2*i+1}" for i in range(16)]
    E = lambda lo, hi: [a.e(x) for x in ex[lo:hi]]
    C = lambda lo, hi: [a.e(x) for x in cv[lo:hi]]
    tl = n // 2 + 2
    L = [] if tl >= 16 else (k_loads(tl) if n % 2 == 0 else v_loads(tl))
    def LD(i):
        if i < len(L): a.vload(*L[i])
    nxt = n + 1 < NS
    E(0, 2)
    if n > 0: a.e(pv(n - 1, 3))
    E(2, 6)
    if nxt:
        a.wait_vm_if(("k", seq[n + 1][0]))
        a.e(s2b(n + 1))
    if n == 31:
        a.e("s_waitcnt lgkmcnt(0)\ns_barrier")
        for i in range(6): a.lds(f"ds_read_b128 {vr(vR1+4*i,4)}, v{vAa} offset:{1024*i}", ("r1", i // 3))
    E(6, 8)
    if n == 0:
        flag_cmp()
    if n == 4:
        flag_cmp()
    C(0, 4)
    if L and n % 4 == 0: chunk_check(tl // 2)
    LD(0); E(8, 12); LD(1)
    if L and n % 2 == 1: kv_advance(tl)
    if n == 1: flag_refresh()
    E(12, 13)
    a.wait_vm_if(("v", t))
    a.e(pv(n, 0))
    E(13, 16)
    if n == 2:
        a.e(f"buffer_store_dwordx4 {vr(vR1,4)}, v{vL16}, {sr(sWS,4)}, s{sO0} offen sc1")
        a.e(f"buffer_store_dword v{vR1}, v{vL8}, {sr(sWS,4)}, s{sO1} offen sc1")
    if n == 8:
        a.e(f"s_mov_b64 exec, 1\nbuffer_store_dword v{vR1+4}, v{vL16}, {sr(sWS,4)}, s{sF2} offen sc1\ns_mov_b64 exec, -1")
    if n == 26:
        a.e(f"v_and_b32 v{vT0}, 15, v{vLane}\nv_lshlrev_b32 v{vT0}, 7, v{vT0}\ns_and_b32 s{sF2}, s{sF2}, 0xfffff800")
        a.vload(f"buffer_load_dword v{vT1}, v{vT0}, {sr(sWS,4)}, s{sF2} offen sc1", ("f2",))
    if n == 30:
        for i in range(3): a.e(f"ds_write_b128 v{vAown}, {vr(vO+32+4*i,4)} offset:{1024*i}")
    C(4, 8); E(16, 18)
    a.e(pv(n, 1))
    E(18, 22)
    if nxt: a.e(s16(n + 1, 0))
    E(22, 24)
    s = n - opt.wo0
    if 0 <= s < 20:
        khs, i = divmod(s, 10); pp, u = divmod(i, 5)
        rowb = (4 * khs + 2 * pp) * 80 + (40 * u if u < 4 else 0)
        a.e(f"s_add_u32 m0, s{sM0B}, {L_W + (i//2)*20480 + khs*10240 + (i%2)*5120}\ns_add_u32 s{sT2}, s{sHGO}, {rowb*1280}\ns_mov_b32 exec_hi, 0xff")
        a.vload(f"buffer_load_dwordx4 v{vWoA if u < 4 else vWoB}, {sr(sWO,4)}, s{sT2} offen lds", ("wo", s))
        a.e("s_mov_b32 exec_hi, -1")
    if n == 30:
        for i in range(3): a.e(f"ds_write_b128 v{vAown}, {vr(vO+48+4*i,4)} offset:{3072+1024*i}")
        a.wait_vm0()
    C(8, 12); E(24, 26)
    a.e(pv(n, 2))
    if n == 31:
        a.wait_lg0()
        for i in range(11): a.e(f"v_add_f32 v{vO+i}, v{vO+i}, v{vR1+i}")
        for i in range(3): a.e(f"ds_write_b128 v{vAa}, {vr(vO+4*i,4)} offset:{1024*i}")
    E(26, 30)
    if nxt: a.e(s16(n + 1, 1))
    E(30, 32); C(12, 16)
a.e("s_nop 1")
a.e(pv(NS - 1, 3))
stamp("loop end")
vRecv = 38
vOF = 52
vAcc2 = 18
a.e("s_waitcnt lgkmcnt(0)\ns_barrier")
for i in range(3): a.e(f"ds_read_b128 {vr(vRecv+4*i,4)}, v{vAb} offset:{1024*i}")
a.label("L_f2")
a.e(f"""v_xor_b32 v{vT1}, s{sTAG}, v{vT1}
v_cmp_lt_u32 vcc, 7, v{vT1}
s_cbranch_vccnz L_slowf2
v_cmp_ne_u32 {sr(sMSK,2)}, s{sXCC}, v{vT1}
s_waitcnt lgkmcnt(0)""")
for i in range(11): a.e(f"v_add_f32 v{vRecv+i}, v{vRecv+i}, v{vR1+12+i}")
for i in range(11): a.e(f"v_add_f32 v{vSum+i}, v{vSum+i}, v{vRecv+i}")
a.e(f"v_add_f32 v{vRecv}, abs(v{vSum}), abs(v{vSum+1})")
for i in range(2, 10): a.e(f"v_add_f32 v{vRecv}, v{vRecv}, abs(v{vSum+i})")
a.e(f"""s_mov_b32 s{sT0}, 0x21800000
s_mov_b32 s{sT1}, 0x5d800000
s_mov_b32 s{sT2}, 0x7f800000
v_cmp_nle_f32 vcc, s{sT0}, v{vSum+10}
v_cmp_nge_f32 {sr(sC0,2)}, s{sT1}, v{vSum+10}
s_or_b64 vcc, vcc, {sr(sC0,2)}
v_cmp_ngt_f32 {sr(sC0,2)}, s{sT2}, v{vRecv}
s_or_b64 vcc, vcc, {sr(sC0,2)}""")
a.e("s_branch L_fallback" if opt.force_fallback else "s_cbranch_vccnz L_fallback")
a.label("L_norm")
a.e(f"v_rcp_f32 v{vSum+10}, v{vSum+10}\ns_nop 0")
for i in range(10): a.e(f"v_mul_f32 v{vSum+i}, v{vSum+i}, v{vSum+10}")
for i in range(5): a.e(f"v_cvt_pk_bf16_f32 v{vRecv+i}, v{vSum+2*i}, v{vSum+2*i+1}")
for i in range(5): a.e(f"v_min_u32 v{vRecv+i}, -2, v{vRecv+i}")
def ostore(pol):
    a.e(f"buffer_store_dwordx4 {vr(vRecv,4)}, v{vL16}, {sr(sWS,4)}, s{sO0} offen{pol}")
    a.e(f"buffer_store_dword v{vRecv+4}, v{vL8}, {sr(sWS,4)}, s{sO1} offen{pol}")
if opt.fast:
    a.e(f"s_or_b32 s{sT0}, s{sMSK}, s{sMSK+1}\ns_cbranch_scc1 L_osc")
    ostore("")
    a.e("s_branch L_osd")
    a.label("L_osc")
ostore(" sc1")
a.label("L_osd")
stamp("O stored")
vRing2 = 92; NRING2 = 41
def oregs(j):
    pp, jj = divmod(j, 2); base = vOF + 20 * pp
    return base + 8 * jj, base + 16 + 2 * jj
def opoll(j):
    b, l = oregs(j)
    a.e(f"s_add_u32 s{sT0}, s{sOB}, {2560*j}")
    a.e(f"buffer_load_dwordx4 {vr(b,4)}, v{vL16}, {sr(sWS,4)}, s{sT0} offen sc1")
    a.e(f"buffer_load_dwordx4 {vr(b+4,4)}, v{vL16}, {sr(sWS,4)}, s{sT0} offen offset:1024 sc1")
    a.e(f"buffer_load_dwordx2 {vr(l,2)}, v{vL8}, {sr(sWS,4)}, s{sT0} offen offset:2048 sc1")
def ocheck(j):
    b, l = oregs(j)
    a.label(f"L_ochk{j}")
    a.e(f"v_max_u32 v{vT0}, v{l}, v{l+1}")
    for i in range(0, 8, 2): a.e(f"v_max3_u32 v{vT0}, v{vT0}, v{b+i}, v{b+i+1}")
    a.e(f"v_cmp_eq_u32 vcc, -1, v{vT0}\ns_cbranch_vccnz L_oslow{j}")
js = [(i, t) for i in range(10) for t in range(5)]
for j in range(4): opoll(j)
for j in range(opt.npre): trd(vRing2 + 4 * j, *js[j], ("fr",) + js[j])
issued = opt.npre
for j, (i, t) in enumerate(js):
    if t == 0 and i % 5 in (0, 2):
        pj = 2 * (i // 5) + (i % 5) // 2
        a.e(f"s_waitcnt vmcnt({9 - 3*pj})")
        ocheck(pj)
        if pj in (0, 3): stamp(f"O poll{pj}")
    while issued < len(js) and issued < j + NRING2:
        trd(vRing2 + 4 * (issued % NRING2), *js[issued], ("fr",) + js[issued]); issued += 1
    a.wait_lg(("fr", i, t))
    c = "0" if i == 0 else vr(vAcc2 + 4 * t, 4)
    a.e(f"v_mfma_f32_16x16x32_bf16 {vr(vAcc2+4*t,4)}, {vr(vRing2+4*(j%NRING2),4)}, {vr(vOF+4*i,4)}, {c}")
stamp("ogemm")
a.e(f"""v_and_b32 v{vT0}, 15, v{vLane}
v_mul_u32_u24 v{vT0}, 1280, v{vT0}
v_lshrrev_b32 v{vT1}, 4, v{vLane}
v_mul_u32_u24 v{vT1}, 40, v{vT1}
v_add_u32 v{vT0}, v{vT0}, v{vT1}
s_mul_i32 s{sT1}, s{sT}, 20480
s_add_u32 s{sT1}, s{sT1}, s{sHGO}
s_nop 1""")
a.e(f"s_cmp_eq_u32 s{sKH}, 0\ns_cbranch_scc0 L_o1")
for t in (3, 4): a.e(f"ds_write_b128 v{vAa}, {vr(vAcc2+4*t,4)} offset:{3072+1024*(t-3)}")
a.e("s_waitcnt lgkmcnt(0)\ns_barrier")
for t in range(3): a.e(f"ds_read_b128 {vr(vOF+4*t,4)}, v{vAb} offset:{3072+1024*t}")
a.e("s_waitcnt lgkmcnt(0)")
for i in range(12): a.e(f"v_add_f32 v{vAcc2+i}, v{vAcc2+i}, v{vOF+i}")
for i in range(6): a.e(f"v_cvt_pk_bf16_f32 v{vOF+16+i}, v{vAcc2+2*i}, v{vAcc2+2*i+1}")
a.e(f"buffer_store_dwordx4 {vr(vOF+16,4)}, v{vT0}, {sr(sOUT,4)}, s{sT1} offen")
a.e(f"buffer_store_dwordx2 {vr(vOF+20,2)}, v{vT0}, {sr(sOUT,4)}, s{sT1} offen offset:16")
a.e("s_branch L_fin")
a.label("L_o1")
for t in range(3): a.e(f"ds_write_b128 v{vAa}, {vr(vAcc2+4*t,4)} offset:{3072+1024*t}")
a.e("s_waitcnt lgkmcnt(0)\ns_barrier")
for t in range(2): a.e(f"ds_read_b128 {vr(vOF+4*t,4)}, v{vAb} offset:{3072+1024*t}")
a.e("s_waitcnt lgkmcnt(0)")
for i in range(8): a.e(f"v_add_f32 v{vAcc2+12+i}, v{vAcc2+12+i}, v{vOF+i}")
for i in range(4): a.e(f"v_cvt_pk_bf16_f32 v{vOF+16+i}, v{vAcc2+12+2*i}, v{vAcc2+12+2*i+1}")
a.e(f"buffer_store_dwordx4 {vr(vOF+16,4)}, v{vT0}, {sr(sOUT,4)}, s{sT1} offen offset:24")
a.label("L_fin")
a.e(f"s_or_b32 s{sT0}, s2, s{sW}\ns_cmp_eq_u32 s{sT0}, 0\ns_cbranch_scc0 L_noep")
a.e(f"s_mov_b64 exec, 1\nv_mov_b32 v{vT1}, s{sTAG}\nv_mov_b32 v{vT0}, {A_EP}\nbuffer_store_dword v{vT1}, v{vT0}, {sr(sWS,4)}, 0 offen sc1\ns_mov_b64 exec, -1")
a.label("L_noep")
if opt.debug:
    a.e("s_waitcnt vmcnt(0)")
    stamp("end")
    a.e(f"s_lshl_b32 s{sT0}, s2, 3\ns_add_u32 s{sT0}, s{sT0}, s{sW}\ns_lshl_b32 s{sT0}, s{sT0}, 8\ns_add_u32 s{sT0}, s{sT0}, {A_DBG}")
    a.e(f"v_writelane_b32 v17, s{sSPIN}, 31\nv_lshlrev_b32 v{vT0}, 2, v{vLane}")
    a.e(f"buffer_store_dword v17, v{vT0}, {sr(sWS,4)}, s{sT0} offen")
    if opt.dbgout:
        assert nstamp[0] <= 15
        srd(sX, 16, 256)
        a.e(f"v_subrev_u32 v{vT1}, s94, v17\nv_cmp_eq_u32 vcc, 0, v17\nv_cndmask_b32 v{vT1}, v{vT1}, v17, vcc\ns_not_b32 s{sT0}, s94\ns_and_b32 s{sT0}, s{sT0}, 0xffffff\ns_and_b32 s98, s98, 0xffffff\nv_writelane_b32 v{vT1}, s{sT0}, 0\nv_writelane_b32 v{vT1}, s98, 15")
        a.e(f"s_mov_b64 exec, 0xffff\nbuffer_atomic_umax v{vT1}, v{vT0}, {sr(sX,4)}, 0 offen")
a.label("L_end")
a.e("s_endpgm")
for c in slow_stubs:
    a.label(f"L_slow{c}")
    a.e(f"s_add_u32 s{sSPIN}, s{sSPIN}, 1\ns_cmp_lt_u32 s{sSPIN}, 400000\ns_cbranch_scc0 L_end")
    a.e(f"s_mov_b64 exec, {sr(sMSK,2)}\n{FLOAD}\ns_mov_b64 exec, -1\ns_waitcnt vmcnt(0)")
    flag_cmp()
    a.e(f"s_nop 0\ns_and_b32 s{sT0}, s{sMSK + c//4}, 0x{0xff << (8*(c%4)):x}\ns_cbranch_scc1 L_slow{c}\ns_branch L_back{c}")
for j in range(4):
    a.label(f"L_oslow{j}")
    a.e(f"s_add_u32 s{sSPIN}, s{sSPIN}, 1\ns_cmp_lt_u32 s{sSPIN}, 400000\ns_cbranch_scc0 L_end")
    opoll(j)
    a.e(f"s_waitcnt vmcnt(0)\ns_branch L_ochk{j}")
a.label("L_slowf2")
a.e(f"s_add_u32 s{sSPIN}, s{sSPIN}, 1\ns_cmp_lt_u32 s{sSPIN}, 400000\ns_cbranch_scc0 L_end")
a.e(f"buffer_load_dword v{vT1}, v{vT0}, {sr(sWS,4)}, s{sF2} offen sc1\ns_waitcnt vmcnt(0)\ns_branch L_f2")
a.label("L_fallback")
fS = 70; fM = 50; fK = vKr; fV = vVr
def f_scores():
    a.e(f"buffer_load_dwordx4 {vr(fK,4)}, v{vL16}, {sr(sWS,4)}, s{sT0} offen sc1")
    a.e(f"buffer_load_dwordx2 {vr(fK+4,2)}, v{vK1a}, {sr(sWS,4)}, s{sT0} offen offset:1024 sc1")
    a.e(f"buffer_load_dwordx4 {vr(fV,4)}, v{vVa}, {sr(sWS,4)}, s{sT0} offen offset:1536 sc1")
    a.e(f"buffer_load_dwordx4 {vr(fV+4,4)}, v{vVa}, {sr(sWS,4)}, s{sT0} offen offset:2304 sc1")
    a.e("s_waitcnt vmcnt(0)")
    a.e(f"v_mfma_f32_32x32x4_2b_bf16 {vr(fS,32)}, {vr(fK+4,2)}, {vr(vQH[0],2)}, 0\ns_nop 15\ns_nop 1")
    a.e(f"v_mfma_f32_32x32x16_bf16 {vr(fS+16,16)}, {vr(fK,4)}, {vr(vQ[1],4)}, {vr(fS+16,16)}\ns_nop 11")
a.e(f"v_mov_b32 v{fM}, 0xff800000\ns_mov_b32 s{sT0}, 0")
a.label("L_fb1")
f_scores()
for i in range(0, 16, 2): a.e(f"v_max3_f32 v{fM}, v{fM}, v{fS+16+i}, v{fS+17+i}")
a.e(f"s_add_u32 s{sT0}, s{sT0}, 4096\ns_cmp_lt_u32 s{sT0}, 262144\ns_cbranch_scc1 L_fb1")
a.e(f"v_mov_b32 v{fM+1}, v{fM}\ns_nop 1\nv_permlane32_swap_b32 v{fM}, v{fM+1}\ns_nop 1\nv_max_f32 v{fM}, v{fM}, v{fM+1}")
for i in range(16): a.e(f"v_mov_b32 v{vSum+i}, 0")
a.e(f"s_mov_b32 s{sT0}, 0")
a.label("L_fb2")
f_scores()
for i in range(16): a.e(f"v_sub_f32 v{fS+16+i}, v{fS+16+i}, v{fM}")
for i in range(16): a.e(f"v_exp_f32 v{fS+16+i}, v{fS+16+i}")
a.e("s_nop 0")
for i in range(8): a.e(f"v_cvt_pk_bf16_f32 v{vP+i}, v{fS+16+2*i}, v{fS+17+2*i}")
a.e("s_nop 1")
for g in range(2):
    a.e(f"v_mfma_f32_32x32x16_bf16 {vr(vSum,16)}, {vr(fV+4*g,4)}, {vr(vP+4*g,4)}, {vr(vSum,16)}")
a.e(f"s_add_u32 s{sT0}, s{sT0}, 4096\ns_cmp_lt_u32 s{sT0}, 262144\ns_cbranch_scc1 L_fb2")
a.e("s_nop 15\ns_branch L_norm")
a.raw(open("footer.txt").read())
txt = a.text()
for p in check(txt): print("HAZARD", p, file=sys.stderr)
open(sys.argv[1], "w").write(txt)
if opt.debug: open(sys.argv[1] + ".stamps", "w").write("\n".join(STAMPS))
```

```python
import sys, math, struct
from asmlib import *

class Opt:
    debug = False
    prio = {0: 3, 16: 2, 24: 1, 28: 0}
    force_fallback = False
    fast = True
    touch = 2
    wo0 = 1
    only = None
    dbgout = False
    pad = None
    wsched = {[0, 1, 3, 4, 6, 7, 9, 10, 12, 13, 15, 16][k]: [(2 + k // 4, k % 4)] for k in range(12)}
    flag_at = 22
    k0_at = 40
    ahead = 7
    ahead4 = 0
    poll_at = 36
    npre_e = 10
    prl = 1
    pre = 3
    outpol = ""
    opol = {"e": "", "l": ""}
    epar = 0
    cpf = True
    pk = False
    chk1 = True
    npre = 40
opt = Opt()
for x in sys.argv[2:]:
    k, v = x.split("=", 1)
    setattr(opt, k, eval(v))

A_KV = 0
A_F1 = 262144
A_EP = A_F1 + 65536
A_F2 = 524288
A_O = 1 << 20
A_DBG = 4 << 20
WS_BYTES = 8 << 20
OOB = 0x40000000
L_W = 0
L_FLG = 20480 + 8448
L_X = 102400
L_S = 102400
XSLOT = 6144
L_Q2 = L_S + 8 * 2560
L_FL = L_S + 49152
LDS_BYTES = 163840
sX, sWQ, sWKV, sWO, sOUT, sWS = 20, 24, 28, 32, 36, 40
sW, sTT, sKH, sHG, sTB, sT, sTK, sTAG, sXCD, sR = 44, 45, 46, 47, 48, 49, 50, 51, 52, 53
sT0, sT1, sT2, sT3 = 54, 55, 56, 57
sKV = 58
sXCC = 59
sO0, sO1 = 60, 61
sHGO = 62
sM0B = 63
sSPIN = 64
sOB = 65
sWQB = 66
sRG = 67
sMSK = 72
sC0 = 74
sF2 = 76
sJH, sJE, sCA, sCX = 77, 78, 79, 80
sJ, sU, sPAR, sISS, sDEF = 81, 82, 83, 84, 85
sPJ = 86
sOJ = 67
sCC = 71
vLane, vL16, vK1a, vVa, vFa, vWoA, vWoB, vTr, vA0, vA1, vE0, vL0, vFlag, vT0, vT1, vL8 = range(1, 17)
vQ = [18, 22, 26, 30]; vQH = [34, 36]
vS = [38, 70]
vP = 102
vO = 118
vKr = 182
vVr = 200
vR1 = 224
vXf = 38; vAcc = 78; vFr = 98
vW40, vXp = 224, 225
vXa = 226
vQa = 231
vCx, vCw = 237, 238
vSt = 240
vT2, vT3 = 241, 242
vM1w, vM1r, vM2w, vM2h = 243, 244, 245, 246

a = Asm()
nstamp = [0]
STAMPS = []
def stamp(name):
    if opt.pad == name: a.e("s_memrealtime s[92:93]")
    if not opt.debug: return
    if opt.only is not None and name not in opt.only and not (name.startswith("A:") and "A" in opt.only): return
    i = nstamp[0]; nstamp[0] += 1
    a.c(f"stamp {i}: {name}")
    a.e("s_memrealtime s[98:99]\ns_memtime s[100:101]")
    a.wait_lg0()
    a.e(f"v_writelane_b32 v17, s98, {i}\nv_writelane_b32 v17, s100, {32+i}")
    STAMPS.append(name)
def stamp_at(i):
    if not opt.debug: return
    if opt.only is not None and "A" not in opt.only: return
    a.e("s_memrealtime s[98:99]\ns_memtime s[100:101]")
    a.wait_lg0()
    a.e(f"v_writelane_b32 v17, s98, {i}\nv_writelane_b32 v17, s100, {32+i}")
def srd(base, lo, nbytes):
    a.e(f"s_mov_b32 s{base}, s{lo}\ns_mov_b32 s{base+1}, s{lo+1}\ns_mov_b32 s{base+2}, {nbytes}\ns_mov_b32 s{base+3}, 0x00020000")
def trd(f, i, t, tag):
    off = i * 5120 + 8 * t
    base = vTr
    for q in range(2):
        a.lds(f"ds_read_b64_tr_b16 {vr(f+2*q,2)}, v{base} offset:{off+q*2560}", tag)
slow_stubs = []

a.raw(open("header.txt").read().replace("@LDS@", str(LDS_BYTES)))
a.e("s_cmp_ge_u32 s2, 256\ns_cbranch_scc1 L_end")
a.e("s_load_dwordx16 s[4:19], s[0:1], 0")
if opt.pad == "start": a.e("s_memrealtime s[92:93]")
if opt.debug:
    a.e("v_mov_b32 v17, 0\ns_memrealtime s[94:95]\ns_memtime s[96:97]"); nstamp[0] = 1; STAMPS.append("start")
def xbase(dst, tile, half, tmp):
    a.e(f"""s_mul_i32 s{dst}, s{tile}, 20480
s_mul_i32 s{tmp}, s{half}, 10240
s_add_u32 s{dst}, s{dst}, s{tmp}
s_add_u32 s{dst}, s{dst}, {L_X}
s_mul_i32 s{tmp}, s{half}, 51200
s_add_u32 s{tmp}, s{tmp}, 40960
s_cmp_eq_u32 s{tile}, 3
s_cselect_b32 s{dst}, s{tmp}, s{dst}""")
def xoffs(tile):
    xbase(sT1, tile, sJH, sT2)
    a.e(f"""s_add_u32 s{sT1}, s{sT1}, s{sJE}
s_lshl_b32 s{sT0}, s{sTB}, 2
s_add_u32 s{sT0}, s{sT0}, s{tile}
s_mul_i32 s{sT0}, s{sT0}, 20480
s_mul_i32 s{sT2}, s{sJ}, 320
s_add_u32 s{sT0}, s{sT0}, s{sT2}""")
def xdma(soff, m0b):
    for i in range(5):
        a.e(f"s_add_u32 m0, s{m0b}, {960*i}\ns_nop 0")
        a.e(f"buffer_load_dwordx4 v{vXp}, {sr(sX,4)}, s{soff} offen offset:{64*i} lds")
a.e(f"""v_lshrrev_b32 v{vT0}, 6, v0
v_and_b32 v{vLane}, 63, v0
s_and_b32 s{sXCD}, s2, 7
s_lshr_b32 s{sT0}, s2, 3
v_readfirstlane_b32 s{sW}, v{vT0}
s_and_b32 s{sHG}, s{sT0}, 7
s_lshr_b32 s{sR}, s{sT0}, 3
s_lshl_b32 s{sTB}, s{sXCD}, 2
s_add_u32 s{sTB}, s{sTB}, s{sR}
s_and_b32 s{sJ}, s{sW}, 3
s_lshr_b32 s{sTK}, s{sHG}, 1
s_lshr_b32 s{sJH}, s{sJ}, 1
s_and_b32 s{sJE}, s{sJ}, 1
s_mul_i32 s{sJE}, s{sJE}, 5120
v_lshrrev_b32 v{vT0}, 4, v{vLane}
v_sub_u32 v{vT0}, 4, v{vT0}
v_xor_b32 v{vT0}, v{vT0}, v{vLane}
v_and_b32 v{vT0}, 3, v{vT0}
v_lshrrev_b32 v{vXp}, 2, v{vLane}
v_mul_u32_u24 v{vXp}, 1280, v{vXp}
v_lshl_add_u32 v{vXp}, v{vT0}, 4, v{vXp}
v_lshlrev_b32 v{vL16}, 4, v{vLane}
s_mov_b32 s{sX+2}, 2621440
s_mov_b32 s{sX+3}, 0x00020000
s_cmp_lt_u32 s{sW}, 4
s_cbranch_scc0 L_b1""")
xoffs(sTK)
a.e(f"""s_mul_i32 s{sCA}, s{sJH}, 51200
s_lshl_b32 s{sT2}, s{sJE}, 1
s_add_u32 s{sCA}, s{sCA}, s{sT2}
s_add_u32 s{sCA}, s{sCA}, 20480
s_mov_b32 s{sCX}, s{sT1}
s_mov_b32 s{sWKV+2}, 25600
s_mov_b32 s{sWKV+3}, 0x00020000
s_waitcnt lgkmcnt(0)
s_mov_b32 s{sX}, s4
s_mov_b32 s{sX+1}, s5""")
xdma(sT0, sT1)
a.e(f"""s_load_dword s{sTAG}, s[18:19], {A_EP}
s_bitcmp1_b32 s{sHG}, 0
s_cselect_b32 s{sWKV}, s10, s8
s_cselect_b32 s{sWKV+1}, s11, s9
s_mul_i32 s{sT0}, s{sJ}, 6400
s_mov_b32 m0, s{sCA}
s_barrier""")
for i in range(4): a.e(f"buffer_load_dwordx4 v{vL16}, {sr(sWKV,4)}, s{sT0} offen offset:{1024*i} lds")
a.e(f"s_add_u32 m0, s{sCA}, 4096\ns_add_u32 s{sT0}, s{sT0}, 4096")
for i in range(2): a.e(f"buffer_load_dwordx4 v{vL16}, {sr(sWKV,4)}, s{sT0} offen offset:{1024*i} lds")
a.e(f"s_mov_b64 exec, 0xffff\nbuffer_load_dwordx4 v{vL16}, {sr(sWKV,4)}, s{sT0} offen offset:2048 lds\ns_mov_b64 exec, -1")
a.e("s_branch L_setup")
a.label("L_b1")
if opt.cpf:
    a.e(f"s_getpc_b64 {sr(sC0,2)}")
    a.label("L_pc")
    a.e(f"""s_lshr_b32 s{sT0}, s2, 3
s_lshl_b32 s{sT0}, s{sT0}, 2
s_and_b32 s{sT1}, s{sW}, 3
s_add_u32 s{sT0}, s{sT0}, s{sT1}
s_lshl_b32 s{sT0}, s{sT0}, 8
v_lshlrev_b32 v{vT0}, 7, v{vLane}
v_add_u32 v{vT0}, s{sT0}, v{vT0}
v_min_u32 v{vT0}, L_last-L_pc, v{vT0}
s_mov_b64 exec, 3
global_load_dword v{vT2}, v{vT0}, {sr(sC0,2)}
s_mov_b64 exec, -1""")
a.e(f"""v_mov_b32 v{vAcc}, 0
v_mov_b32 v{vAcc+1}, 0
v_mov_b32 v{vT1}, {L_FLG}
s_mov_b64 exec, 1
ds_write_b64 v{vT1}, {vr(vAcc,2)}
s_mov_b64 exec, -1
s_waitcnt lgkmcnt(0)
s_mov_b32 s{sX}, s4
s_mov_b32 s{sX+1}, s5
s_load_dword s{sTAG}, s[18:19], {A_EP}
s_barrier""")
a.label("L_setup")
if opt.debug: a.e("v_writelane_b32 v17, s94, 0\nv_writelane_b32 v17, s96, 32")
srd(sWQ, 6, 819200); srd(sWS, 18, WS_BYTES); srd(sWO, 12, 819200); srd(sOUT, 14, 2621440)
a.e(f"""s_lshr_b32 s{sU}, s{sW}, 2
s_xor_b32 s{sPAR}, s{sU}, {opt.epar}
s_and_b32 s{sKH}, s{sW}, 1
s_and_b32 s{sTT}, s{sW}, 2
s_or_b32 s{sTT}, s{sTT}, s{sPAR}
s_mov_b32 s{sISS}, 0
s_mov_b32 s{sDEF}, 0
s_lshl_b32 s{sT}, s{sTB}, 2
s_add_u32 s{sT}, s{sT}, s{sTT}
s_mul_i32 s{sHGO}, s{sHG}, 160
s_mul_i32 s{sM0B}, s{sW}, 640
s_getreg_b32 s{sXCC}, hwreg(HW_REG_XCC_ID, 0, 3)
s_mov_b32 s{sSPIN}, 0""")
a.e(f"""v_mul_u32_u24 v{vT0}, 6554, v{vLane}
v_lshrrev_b32 v{vT0}, 16, v{vT0}
v_mul_u32_u24 v{vT1}, 10, v{vT0}
v_sub_u32 v{vT1}, v{vLane}, v{vT1}
v_lshlrev_b32 v{vT1}, 4, v{vT1}
v_mul_u32_u24 v{vW40}, 1280, v{vT0}
v_add_u32 v{vW40}, v{vW40}, v{vT1}
v_lshrrev_b32 v{vWoB}, 1, v{vT0}
v_mul_u32_u24 v{vWoB}, 38, v{vWoB}
v_add_u32 v{vWoB}, v{vWoB}, v{vT0}
v_mul_u32_u24 v{vWoB}, 1280, v{vWoB}
v_add_u32 v{vWoB}, v{vWoB}, v{vT1}""")
a.e(f"""s_lshl_b32 s{sT2}, s{sT}, 3
s_mul_i32 s{sOB}, s{sT2}, 2560
s_add_u32 s{sOB}, s{sOB}, {A_O}
s_mul_i32 s{sT2}, s{sHG}, 2560
s_add_u32 s{sT2}, s{sT2}, s{sOB}
s_lshl_b32 s{sT3}, s{sKH}, 10
s_add_u32 s{sO0}, s{sT2}, s{sT3}
s_lshl_b32 s{sT3}, s{sKH}, 2
s_add_u32 s{sO1}, s{sT2}, s{sT3}
s_add_u32 s{sO1}, s{sO1}, 2048
s_mul_i32 s{sT3}, s{sKH}, 10240
s_add_u32 s{sOB}, s{sOB}, s{sT3}""")
for rho in range(5):
    a.e(f"s_add_u32 s{sT0}, s{sR}, {rho}\ns_sub_u32 s{sT1}, s{sT0}, 5\ns_cmp_ge_u32 s{sT0}, 5\ns_cselect_b32 s{sRG+rho}, s{sT1}, s{sT0}")
a.e(f"""v_bfe_u32 v{vT0}, v{vLane}, 2, 2
v_sub_u32 v{vT0}, 4, v{vT0}
v_lshrrev_b32 v{vT1}, 4, v{vLane}
v_xor_b32 v{vT0}, v{vT0}, v{vT1}
v_and_b32 v{vT0}, 3, v{vT0}
v_and_b32 v{vT1}, 15, v{vLane}
v_lshlrev_b32 v{vT1}, 6, v{vT1}
v_lshl_add_u32 v{vT0}, v{vT0}, 4, v{vT1}
v_add_u32 v{vCx}, s{sCX}, v{vT0}
s_mul_i32 s{sT1}, s{sKH}, 51200
v_mul_u32_u24 v{vTr}, 40, v{vLane}
v_add_u32 v{vTr}, s{sT1}, v{vTr}""")
xbase(sT0, sTT, sKH, sT2)
for rho in range(5):
    a.e(f"s_lshl_b32 s{sT2}, s{sRG+rho}, 11\ns_add_u32 s{sT2}, s{sT2}, s{sT0}\nv_add_u32 v{vXa+rho}, s{sT2}, v{vT0}\ns_mul_i32 s{sRG+rho}, s{sRG+rho}, 81920")
a.e(f"""s_lshl_b32 s{sT0}, s{sJ}, 3
s_lshl_b32 s{sT1}, s{sU}, 2
s_add_u32 s{sT0}, s{sT0}, s{sT1}
s_mul_i32 s{sT0}, s{sT0}, 1280
s_add_u32 s{sWQB}, s{sT0}, s{sHGO}""")
a.e(f"""s_and_b32 s{sT0}, s{sJ}, 1
s_mul_i32 s{sT0}, s{sT0}, 20
s_and_b32 s{sT1}, s{sJ}, 2
s_lshl_b32 s{sT2}, s{sT1}, 1
s_add_u32 s{sT2}, s{sT2}, s{sT0}
s_lshl_b32 s{sT3}, s{sU}, 3
s_add_u32 s{sT2}, s{sT2}, s{sT3}
s_mul_i32 s{sT2}, s{sT2}, 1280
v_add_u32 v{vWoA}, s{sT2}, v{vW40}
s_add_u32 s{sT0}, s{sT0}, s{sT1}
s_xor_b32 s{sT3}, s{sU}, s{sHG}
s_andn2_b32 s{sT3}, 1, s{sT3}
s_mul_i32 s{sT3}, s{sT3}, 80
s_add_u32 s{sT0}, s{sT0}, s{sT3}
s_add_u32 s{sT0}, s{sT0}, 16
s_mul_i32 s{sT0}, s{sT0}, 1280
v_add_u32 v{vWoB}, s{sT0}, v{vWoB}""")
for j in range(4):
    a.e(f"s_xor_b32 s{sT0}, s{sHG}, {j ^ 3}\ns_and_b32 s{sT0}, s{sT0}, 3\ns_mul_i32 s{sT0}, s{sT0}, 102400\ns_add_u32 s{sPJ+j}, s{sT0}, s{sHGO}")
a.e(f"""v_lshrrev_b32 v{vT0}, 4, v{vLane}
v_bfe_u32 v{vT1}, v{vLane}, 2, 2
v_lshl_add_u32 v{vT0}, v{vT0}, 3, v{vT1}
v_mul_u32_u24 v{vT0}, 40, v{vT0}
v_add_u32 v{vT0}, s{sCA}, v{vT0}
v_and_b32 v{vT1}, 3, v{vLane}
v_lshlrev_b32 v{vT1}, 4, v{vT1}
v_min_u32 v{vCw}, 32, v{vT1}
v_add_u32 v{vCw}, v{vCw}, v{vT0}
v_add_u32 v{vT1}, 8, v{vT1}
v_min_u32 v{vCw+1}, 32, v{vT1}
v_add_u32 v{vCw+1}, v{vCw+1}, v{vT0}""")
a.e(f"""v_and_b32 v{vT0}, 31, v{vLane}
v_lshlrev_b32 v{vK1a}, 4, v{vT0}
v_lshrrev_b32 v{vT1}, 5, v{vLane}
v_mul_u32_u24 v{vT1}, 384, v{vT1}
v_add_u32 v{vVa}, v{vK1a}, v{vT1}
v_mov_b32 v{vT1}, {OOB}
s_mov_b32 vcc_lo, 0xff880000
s_mov_b32 vcc_hi, 0xff880000
v_cndmask_b32 v{vVa}, v{vVa}, v{vT1}, vcc
v_lshlrev_b32 v{vL8}, 3, v{vLane}
s_and_b32 s{sT0}, s{sTT}, 1
s_lshl_b32 s{sT0}, s{sT0}, 1
s_add_u32 s{sT0}, s{sT0}, s{sKH}
s_lshl_b32 s{sKV}, s{sXCD}, 15
s_lshl_b32 s{sT1}, s{sT0}, 13
s_add_u32 s{sKV}, s{sKV}, s{sT1}
v_lshrrev_b32 v{vFa}, 3, v{vLane}
v_add_u32 v{vFa}, s{sXCD}, v{vFa}
v_and_b32 v{vFa}, 7, v{vFa}
v_lshlrev_b32 v{vFa}, 5, v{vFa}
v_and_b32 v{vT1}, 7, v{vLane}
v_add_u32 v{vFa}, v{vFa}, v{vT1}
v_lshlrev_b32 v{vFa}, 7, v{vFa}
s_lshl_b32 s{sT1}, s{sT0}, 10
s_add_u32 s{sT1}, s{sT1}, {A_F1}
v_add_u32 v{vFa}, s{sT1}, v{vFa}""")
a.e(f"""s_mul_i32 s{sT0}, s{sJ}, 12288
s_add_u32 s{sT0}, s{sT0}, {L_S}
v_add_u32 v{vA0}, s{sT0}, v{vL16}
s_xor_b32 s{sT0}, s{sJ}, 1
s_mul_i32 s{sT0}, s{sT0}, 12288
s_add_u32 s{sT0}, s{sT0}, {L_S}
v_add_u32 v{vA1}, s{sT0}, v{vL16}
s_mul_i32 s{sT0}, s{sPAR}, 6144
v_add_u32 v{vE0}, s{sT0}, v{vA1}
s_mul_i32 s{sT0}, s{sPAR}, 9216
v_add_u32 v{vL0}, s{sT0}, v{vA0}
s_mul_i32 s{sT0}, s{sW}, 2560
s_add_u32 s{sT0}, s{sT0}, {L_S}
v_add_u32 v{vM1w}, s{sT0}, v{vL16}
s_xor_b32 s{sT0}, s{sW}, 1
s_mul_i32 s{sT0}, s{sT0}, 2560
s_add_u32 s{sT0}, s{sT0}, {L_S}
v_add_u32 v{vM1r}, s{sT0}, v{vL16}""")
a.e(f"""s_mul_i32 s{sT0}, s{sTT}, 2560
s_add_u32 s{sT0}, s{sT0}, {L_Q2}
s_lshl_b32 s{sT2}, s{sKH}, 10
s_add_u32 s{sT2}, s{sT2}, s{sT0}
v_add_u32 v{vM2w}, s{sT2}, v{vL16}
s_lshl_b32 s{sT2}, s{sKH}, 2
s_add_u32 s{sT2}, s{sT2}, s{sT0}
v_add_u32 v{vM2h}, s{sT2}, v{vL8}
s_and_b32 s{sT0}, s{sTT}, 2
s_mul_i32 s{sT0}, s{sT0}, 2560
s_add_u32 s{sT0}, s{sT0}, {L_Q2}
s_add_u32 s{sT1}, s{sT0}, 2560
v_lshrrev_b32 v{vT0}, 5, v{vLane}
v_lshl_add_u32 v{vT0}, v{vT0}, 10, v{vK1a}
s_lshl_b32 s{sT2}, s{sKH}, 9
s_xor_b32 s{sT3}, s{sT2}, 512
v_add_u32 v{vT1}, s{sT3}, v{vT0}
v_add_u32 v{vQa}, s{sT0}, v{vT1}
v_add_u32 v{vQa+2}, s{sT1}, v{vT1}
v_add_u32 v{vT1}, s{sT2}, v{vT0}
v_add_u32 v{vQa+1}, s{sT0}, v{vT1}
v_add_u32 v{vQa+3}, s{sT1}, v{vT1}
s_lshr_b32 s{sT3}, s{sT3}, 1
v_xor_b32 v{vT1}, s{sT3}, v{vL8}
v_add_u32 v{vQa+4}, s{sT0}, v{vT1}
v_add_u32 v{vQa+5}, s{sT1}, v{vT1}""")
a.e(f"""s_lshl_b32 s{sF2}, s{sT}, 4
s_lshl_b32 s{sT0}, s{sHG}, 1
s_add_u32 s{sT0}, s{sT0}, s{sKH}
s_add_u32 s{sF2}, s{sF2}, s{sT0}
s_lshl_b32 s{sF2}, s{sF2}, 7
s_add_u32 s{sF2}, s{sF2}, {A_F2}""")
def tagwait(): a.e(f"s_waitcnt lgkmcnt(0)\ns_mul_i32 s{sTAG}, s{sTAG}, 1664525\ns_add_u32 s{sTAG}, s{sTAG}, 1013904223")
a.e(f"s_add_u32 s{sT1}, s{sW}, {L_FLG}\nv_mov_b32 v{vT3}, s{sT1}\nv_mov_b32 v{vFlag}, 1")
a.e(f"s_cmp_lt_u32 s{sW}, 4\ns_cbranch_scc1 L_a2")
if opt.touch == 1:
    a.e(f"""s_sub_u32 s{sT0}, s{sO0}, 3072
v_mul_u32_u24 v{vT0}, s{sT0}, v{vLane}
s_mul_i32 s{sT0}, s{sT}, 20480
s_add_u32 s{sT0}, s{sT0}, s{sHGO}
s_mov_b64 exec, 3
buffer_load_dword v{vT2}, v{vT0}, {sr(sWS,4)}, 0 offen offset:3072 sc1
s_mov_b64 exec, 1
buffer_load_dword v{vT2}, v{vL16}, {sr(sOUT,4)}, s{sT0} offen
buffer_load_dword v{vT2}, v{vL16}, {sr(sWO,4)}, s{sHGO} offen
s_mov_b64 exec, -1""")
if opt.touch == 2:
    a.e(f"""s_mul_i32 s{sT0}, s{sT}, 20480
s_add_u32 s{sT0}, s{sT0}, s{sHGO}
s_load_dword s{sC0}, s[18:19], s{sO0}
s_load_dword s{sC0}, s[14:15], s{sT0}
s_load_dword s{sC0}, s[12:13], s{sHGO}""")
def wround_b(rho):
    a.e(f"""s_mul_i32 s{sT3}, s{sJH}, 409600
s_lshl_b32 s{sT1}, s{sJE}, 3
s_add_u32 s{sT3}, s{sT3}, s{sT1}
s_add_u32 s{sT3}, s{sT3}, s{sHGO}
s_add_u32 s{sT2}, s{sRG+rho}, s{sT3}
s_mul_i32 s{sT1}, s{sJH}, 51200
s_add_u32 s{sT1}, s{sT1}, s{sJE}
s_mov_b32 exec_hi, 0xff""")
    for u in range(8):
        a.e(f"s_add_u32 m0, s{sT1}, {L_W + rho*10240 + u*640}\ns_add_u32 s{sT0}, s{sT2}, {(8*(u&3)+4*(u>>2))*1280}")
        a.e(f"buffer_load_dwordx4 v{vW40}, {sr(sWQ,4)}, s{sT0} offen lds")
    a.e("s_mov_b32 exec_hi, -1")
wround_b(0)
tagwait()
a.e(f"s_mov_b64 exec, 1\nds_write_b8 v{vT3}, v{vFlag}\ns_mov_b64 exec, -1")
for j in (1, 2, 3):
    a.e(f"s_add_u32 s{sT3}, s{sTK}, {j}\ns_and_b32 s{sT3}, s{sT3}, 3")
    xoffs(sT3)
    xdma(sT0, sT1)
wround_b(1)
kst = nstamp[0]
stamp("A:data B:issued")
stamp("A:chain B:-")
stamp("A:pub B:x")
a.e("s_waitcnt vmcnt(8)")
stamp_at(kst + 2)
a.e("s_branch L_bx")
a.label("L_a2")
cX, cW, cA, cR = 38, 98, 78, 138
a.e(f"""s_bitcmp1_b32 s{sHG}, 0
s_cbranch_scc1 L_ofv
v_lshrrev_b32 v{vT0}, 4, v{vLane}
v_and_b32 v{vT1}, 15, v{vLane}
v_lshlrev_b32 v{vT1}, 4, v{vT1}
v_lshl_add_u32 v{vSt}, v{vT0}, 9, v{vT1}
s_and_b32 s{sT1}, s{sTK}, 1
s_lshl_b32 s{sT1}, s{sT1}, 8
s_branch L_ofd""")
a.label("L_ofv")
a.e(f"""v_and_b32 v{vT0}, 7, v{vLane}
v_lshlrev_b32 v{vT0}, 2, v{vT0}
v_mov_b32 v{vT1}, 0x73625410
v_lshrrev_b32 v{vT0}, v{vT0}, v{vT1}
v_and_b32 v{vT0}, 7, v{vT0}
v_add_u32 v{vT0}, 16, v{vT0}
v_and_b32 v{vT1}, 4, v{vLane}
v_lshlrev_b32 v{vT1}, 1, v{vT1}
v_and_b32 v{vT2}, 3, v{vLane}
v_add_u32 v{vT1}, v{vT1}, v{vT2}
v_lshrrev_b32 v{vT2}, 5, v{vLane}
v_lshl_add_u32 v{vT1}, v{vT2}, 2, v{vT1}
s_mov_b32 vcc_lo, 0xff00ff00
s_mov_b32 vcc_hi, 0xff00ff00
v_cndmask_b32 v{vT0}, v{vT1}, v{vT0}, vcc
v_bfe_u32 v{vT1}, v{vLane}, 4, 1
v_mul_u32_u24 v{vT1}, 384, v{vT1}
v_lshl_add_u32 v{vSt}, v{vT0}, 4, v{vT1}
s_and_b32 s{sT1}, s{sTK}, 1
s_mul_i32 s{sT1}, s{sT1}, 768
s_add_u32 s{sT1}, s{sT1}, 1536""")
a.label("L_ofd")
a.e(f"""s_lshl_b32 s{sT0}, s{sTB}, 13
s_lshr_b32 s{sT2}, s{sTK}, 1
s_lshl_b32 s{sT2}, s{sT2}, 12
s_add_u32 s{sT0}, s{sT0}, s{sT2}
s_add_u32 s{sT0}, s{sT0}, s{sT1}
s_add_u32 s{sT1}, s{sCA}, 6400
v_add_u32 v{vT2}, s{sT1}, v{vL16}""")
tagwait()
a.e("s_waitcnt vmcnt(7)")
for i in range(5): a.lds(f"ds_read_b128 {vr(cX+4*i,4)}, v{vCx} offset:{1024*i}", ("cx", i))
a.e("s_waitcnt vmcnt(0)")
stamp_at(kst)
def cw_read(i):
    for h in range(2):
        for q in range(2):
            a.lds(f"ds_read_b64_tr_b16 {vr(cW+8*i+4*h+2*q,2)}, v{vCw+h} offset:{i*1280+q*160}", ("cw", i, h))
for i in range(5): cw_read(i)
a.e(f"s_bitcmp1_b32 s{sHG}, 0\ns_cbranch_scc1 L_chv")
save = list(a.lg)
for mat in range(2):
    a.lg = list(save)
    if mat: a.label("L_chv")
    for i in range(5):
        for h in range(2):
            a.wait_lg(("cw", i, h))
            W, X = vr(cW + 8 * i + 4 * h, 4), vr(cX + 4 * i, 4)
            c = "0" if i == 0 else vr(cA + 4 * h, 4)
            a.e(f"v_mfma_f32_16x16x32_bf16 {vr(cA+4*h,4)}, {W if not mat else X}, {X if not mat else W}, {c}")
    if not mat: a.e("s_branch L_chd")
a.label("L_chd")
a.e(f"s_cmp_eq_u32 s{sW}, 0\ns_cbranch_scc1 L_fin0\ns_nop 5")
a.e(f"ds_write_b128 v{vT2}, {vr(cA,4)}\nds_write_b128 v{vT2}, {vr(cA+4,4)} offset:1024")
a.e(f"s_mov_b64 exec, 1\nds_write_b8 v{vT3}, v{vFlag}\ns_mov_b64 exec, -1")
stamp_at(kst + 1)
a.e("s_branch L_bx")
a.label("L_fin0")
a.e(f"ds_read_b64 {vr(cR+24,2)}, v{vT3}")
for j in range(1, 4):
    for h in range(2): a.e(f"ds_read_b128 {vr(cR+8*(j-1)+4*h,4)}, v{vT2} offset:{51200*(j>>1)+10240*(j&1)+1024*h}")
a.e(f"""s_add_u32 s{sSPIN}, s{sSPIN}, 1
s_cmp_lt_u32 s{sSPIN}, 1000000
s_cbranch_scc0 L_end
s_waitcnt lgkmcnt(6)
v_or_b32 v{vT0}, 1, v{cR+24}
v_and_b32 v{vT0}, v{vT0}, v{cR+25}
v_cmp_ne_u32 vcc, 0x01010101, v{vT0}
s_waitcnt lgkmcnt(0)
s_cbranch_vccnz L_fin0""")
stamp_at(kst + 1)
for i in range(8):
    a.e(f"v_add_f32 v{cA+i}, v{cA+i}, v{cR+i}\nv_add_f32 v{cR+8+i}, v{cR+8+i}, v{cR+16+i}")
for i in range(8): a.e(f"v_add_f32 v{cA+i}, v{cA+i}, v{cR+8+i}")
SCALE = math.log2(math.e) / math.sqrt(20.0)
SCX = f"0x{struct.unpack('<I', struct.pack('<f', SCALE))[0]:08x}"
a.e(f"s_bitcmp1_b32 s{sHG}, 0\ns_cbranch_scc1 L_stv")
for i in range(8): a.e(f"v_mul_f32 v{cA+i}, {SCX}, v{cA+i}")
for i in range(4): a.e(f"v_cvt_pk_bf16_f32 v{cR+i}, v{cA+2*i}, v{cA+2*i+1}")
a.e("s_mov_b32 exec_hi, 0xffff\ns_branch L_std")
a.label("L_stv")
for i in range(4): a.e(f"v_cvt_pk_bf16_f32 v{cR+i}, v{cA+2*i}, v{cA+2*i+1}")
a.e(f"v_add_f32 v{vT0}, abs(v{cA}), abs(v{cA+1})")
for i in range(2, 8): a.e(f"v_add_f32 v{vT0}, v{vT0}, abs(v{cA+i})")
a.e(f"v_permlane32_swap_b32 v{cR}, v{cR+2}\nv_permlane32_swap_b32 v{cR+1}, v{cR+3}")
a.e(f"v_cmp_nge_f32 vcc, 0x5c000000, v{vT0}\ns_mov_b32 s{sT1}, 0x3f803f80\ns_nop 0\ns_cmp_lg_u64 vcc, 0\ns_cselect_b32 s{sT1}, 0x7f807f80, s{sT1}")
a.e("s_mov_b64 exec, 0x30003000")
for i in range(4): a.e(f"v_mov_b32 v{cR+i}, s{sT1}")
a.e("s_mov_b32 exec_lo, 0xc000c000")
for i in range(4): a.e(f"v_mov_b32 v{cR+i}, 0")
a.e("s_mov_b32 exec_lo, -1\ns_mov_b32 exec_hi, 0x00ff00ff")
a.label("L_std")
a.e(f"""buffer_store_dwordx4 {vr(cR,4)}, v{vSt}, {sr(sWS,4)}, s{sT0} offen sc1
s_mov_b64 exec, 1
s_lshl_b32 s{sT0}, s{sTB}, 3
s_add_u32 s{sT0}, s{sT0}, s{sHG}
s_lshl_b32 s{sT0}, s{sT0}, 7
s_add_u32 s{sT0}, s{sT0}, {A_F1}
v_mov_b32 v{vT1}, s{sTAG}
s_waitcnt vmcnt(0)
buffer_store_dword v{vT1}, v{vL16}, {sr(sWS,4)}, s{sT0} offen sc1
s_mov_b64 exec, -1""")
stamp_at(kst + 2)
a.label("L_bx")
a.lg = []; a.vm = []
a.e("s_barrier")
stamp("Bx")
def kslot(t): return vKr + 6 * (t % 3)
def vslot(t): return vVr + 8 * (t % 3)
def k_loads(t):
    b = kslot(t)
    return [(f"buffer_load_dwordx4 {vr(b,4)}, v{vL16}, {sr(sWS,4)}, s{sKV} offen sc1", ("k", t)),
            (f"buffer_load_dwordx2 {vr(b+4,2)}, v{vK1a}, {sr(sWS,4)}, s{sKV} offen offset:1024 sc1", ("k", t))]
def v_loads(t):
    b = vslot(t)
    return [(f"buffer_load_dwordx4 {vr(b,4)}, v{vVa}, {sr(sWS,4)}, s{sKV} offen offset:1536 sc1", ("v", t)),
            (f"buffer_load_dwordx4 {vr(b+4,4)}, v{vVa}, {sr(sWS,4)}, s{sKV} offen offset:2304 sc1", ("v", t))]
def kv_advance(t):
    if t % 2 == 0: a.e(f"s_add_u32 s{sKV}, s{sKV}, 4096")
    else: a.e(f"s_add_u32 s{sKV}, s{sKV}, {32768-4096}\ns_and_b32 s{sKV}, s{sKV}, 0x3ffff")
FLOAD = f"buffer_load_dword v{vFlag}, v{vFa}, {sr(sWS,4)}, 0 offen sc1"
def flag_cmp(): a.e(f"v_cmp_ne_u32 {sr(sMSK,2)}, s{sTAG}, v{vFlag}")
def chunk_check(c):
    a.e(f"s_and_b32 s{sT0}, s{sMSK + c//4}, 0x{0xff << (8*(c%4)):x}\ns_cbranch_scc1 L_slow{c}")
    a.label(f"L_back{c}")
    slow_stubs.append(c)
nref = [0]
def flag_refresh():
    k = nref[0]; nref[0] += 1
    a.e(f"s_or_b32 s{sT0}, s{sMSK}, s{sMSK+1}\ns_cbranch_scc0 L_ref{k}\ns_mov_b64 exec, {sr(sMSK,2)}\n{FLOAD}\ns_mov_b64 exec, -1")
    a.label(f"L_ref{k}")
for i in range(10): a.lds(f"ds_read_b128 {vr(vXf+4*i,4)}, v{vXa+i//2} offset:{1024*(i%2)}", ("x", i))
js = [(i, t) for i in range(10) for t in range(5)]
NR1 = 20
issued = 0
def stage_sync(rho):
    if rho == 1: a.e(f"s_waitcnt vmcnt({len(a.vm)})")
    else: a.wait_vm(("w", rho))
    a.e("s_barrier")
    stamp(f"S{rho}")
for j, (i, t) in enumerate(js):
    while issued < 50 and issued < j + opt.ahead:
        if issued % 10 == 0 and issued:
            if issued == 40 and j < 40 - opt.ahead4: break
            stage_sync(issued // 10)
        trd(vFr + 4 * (issued % NR1), *js[issued], ("fr",) + js[issued]); issued += 1
    for (r2, sl) in opt.wsched.get(j, ()):
        assert r2 < 4 or issued > 10
        a.e(f"s_add_u32 m0, s{sM0B}, {L_W + (sl>>1)*51200 + (2*r2+(sl&1))*5120}\ns_add_u32 s{sT0}, s{sRG+r2}, s{sWQB}\ns_add_u32 s{sT0}, s{sT0}, {((sl>>1)*10+(sl&1))*40960}\ns_mov_b32 exec_hi, 0xff")
        a.vload(f"buffer_load_dwordx4 v{vW40}, {sr(sWQ,4)}, s{sT0} offen lds", ("w", r2))
        a.e("s_mov_b32 exec_hi, -1")
    if j == opt.flag_at:
        a.e(f"s_not_b32 s{sT0}, s{sTAG}\nv_mov_b32 v{vFlag}, s{sT0}\ns_mov_b64 exec, 0xffff")
        a.vload(FLOAD, ("flag",))
        a.e("s_mov_b64 exec, -1")
    if j == opt.k0_at:
        a.wait_vm(("flag",))
        flag_cmp(); a.e("s_nop 0"); chunk_check(0)
        for x in k_loads(0): a.vload(*x)
    a.wait_lg(("fr", i, t))
    c = "0" if i == 0 else vr(vAcc + 4 * t, 4)
    a.e(f"v_mfma_f32_16x16x32_bf16 {vr(vAcc+4*t,4)}, {vr(vFr+4*(j%NR1),4)}, {vr(vXf+4*i,4)}, {c}")
stamp("qgemm")
vPart = vFr; vPk = vFr + 12
a.e(f"s_cmp_eq_u32 s{sKH}, 0\ns_cbranch_scc0 L_q1")
for kh in range(2):
    if kh: a.label("L_q1")
    keep = [vAcc + 8 * kh + i for i in range(8)] + [vAcc + 16 + 2 * kh, vAcc + 17 + 2 * kh]
    so = 8 * (1 - kh)
    a.e("s_nop 3" if kh else "s_nop 5")
    a.e(f"ds_write_b128 v{vM1w}, {vr(vAcc+so,4)}\nds_write_b128 v{vM1w}, {vr(vAcc+so+4,4)} offset:1024")
    a.e(f"v_sub_u32 v{vT0}, v{vM1w}, v{vL8}\nv_sub_u32 v{vT1}, v{vM1r}, v{vL8}\ns_nop 1")
    a.e(f"ds_write_b64 v{vT0}, {vr(vAcc+16+2*(1-kh),2)} offset:2048")
    for x in v_loads(0):
        if kh: a.vload(*x)
        else: a.e(x[0])
    kv_advance(0)
    a.e("s_waitcnt lgkmcnt(0)\ns_barrier")
    a.e(f"ds_read_b128 {vr(vPart,4)}, v{vM1r}\nds_read_b128 {vr(vPart+4,4)}, v{vM1r} offset:1024\nds_read_b64 {vr(vPart+8,2)}, v{vT1} offset:2048")
    for blk, (lo, hi) in enumerate(((0, 4), (4, 8), (8, 10))):
        a.e(f"s_waitcnt lgkmcnt({2-blk})")
        for i in range(lo, hi): a.e(f"v_add_f32 v{vPart+i}, v{vPart+i}, v{keep[i]}")
    if not kh: a.e("s_branch L_q2")
a.label("L_q2")
for i in range(5): a.e(f"v_cvt_pk_bf16_f32 v{vPk+i}, v{vPart+2*i}, v{vPart+2*i+1}")
a.e(f"ds_write_b128 v{vM2w}, {vr(vPk,4)}\nds_write_b32 v{vM2h}, v{vPk+4} offset:2048")
for x in k_loads(1): a.vload(*x)
a.e("s_waitcnt lgkmcnt(0)\ns_barrier")
stamp("E2")
a.lds(f"ds_read_b64 {vr(vQH[0],2)}, v{vQa+4} offset:2048", ("q", 0))
a.lds(f"ds_read_b128 {vr(vQ[0],4)}, v{vQa}", ("q", 0))
a.lds(f"ds_read_b128 {vr(vQ[1],4)}, v{vQa+1}", ("q", 0))
a.lds(f"ds_read_b64 {vr(vQH[1],2)}, v{vQa+5} offset:2048", ("q", 1))
a.lds(f"ds_read_b128 {vr(vQ[2],4)}, v{vQa+2}", ("q", 1))
a.lds(f"ds_read_b128 {vr(vQ[3],4)}, v{vQa+3}", ("q", 1))
seq = [(t, p) for t in range(13) for p in range(2)] + [(t, p) for p in range(2) for t in (13, 14, 15)]
NS = 32
def s2b(n): t, p = seq[n]; S = vS[n % 2]; return f"v_mfma_f32_32x32x4_2b_bf16 {vr(S,32)}, {vr(kslot(t)+4,2)}, {vr(vQH[p],2)}, 0"
def s16(n, x): t, p = seq[n]; S = vS[n % 2] + 16 * x; return f"v_mfma_f32_32x32x16_bf16 {vr(S,16)}, {vr(kslot(t),4)}, {vr(vQ[2*p+x],4)}, {vr(S,16)}"
def pv(n, g):
    t, p = seq[n]; O = vO + 16 * (2 * p + g // 2)
    c = "0" if (t == 0 and g % 2 == 0) else vr(O, 16)
    return f"v_mfma_f32_32x32x16_bf16 {vr(O,16)}, {vr(vslot(t)+4*(g%2),4)}, {vr(vP+4*g,4)}, {c}"
a.wait_vm(("k", 0))
a.wait_lg(("q", 0))
stamp("kv0")
a.e(s2b(0))
a.e(f"v_mov_b32 v{vR1}, -1\nv_mov_b32 v{vR1+1}, -1\nv_mov_b32 v{vR1+2}, -1\nv_mov_b32 v{vR1+3}, -1\ns_xor_b32 s{sT0}, s{sTAG}, s{sXCC}\nv_mov_b32 v{vR1+4}, s{sT0}")
for x in v_loads(1): a.vload(*x)
kv_advance(1)
a.e("s_nop 7"); a.e(s16(0, 0)); a.e(s16(0, 1)); a.wait_lg0(); a.e("s_nop 9")
vOF = [vO + 4 * i for i in range(4)] + [248] + [vO + 16 + 4 * i for i in range(4)] + [252]
vAcc2 = 18
vRdy = vR1 + 22
def normalize(S, T, fail):
    a.e(f"v_subrev_u32 v{T}, 0x21800000, v{S+10}\nv_cmp_lt_u32 vcc, 0x3c000000, v{T}")
    a.e(f"s_branch {fail}" if opt.force_fallback else f"s_cbranch_vccnz {fail}")
ostubs = []
def ostore(T, pol):
    a.e(f"buffer_store_dwordx4 {vr(T,4)}, v{vL16}, {sr(sWS,4)}, s{sO0} offen{pol}")
    a.e(f"buffer_store_dword v{T+4}, v{vL8}, {sr(sWS,4)}, s{sO1} offen{pol}")
def scale(S, T):
    a.e(f"v_rcp_f32 v{S+10}, v{S+10}\ns_or_b32 s{sT0}, s{sMSK}, s{sMSK+1}")
    if opt.pk:
        for i in range(0, 10, 2): a.e(f"v_pk_mul_f32 {vr(S+i,2)}, {vr(S+i,2)}, {vr(S+10,2)} op_sel_hi:[1,0]")
    else:
        for i in range(10): a.e(f"v_mul_f32 v{S+i}, v{S+i}, v{S+10}")
    for i in range(5): a.e(f"v_cvt_pk_bf16_f32 v{T+i}, v{S+2*i}, v{S+2*i+1}")
def finish(S, T, tag):
    scale(S, T)
    a.label(f"L_ost{tag}")
    if opt.fast:
        a.e(f"s_cbranch_scc1 L_osc{tag}")
        ostore(T, opt.opol[tag])
        ostubs.append((T, tag))
    else: ostore(T, " sc1")
    a.label(f"L_osd{tag}")
def opoll(j):
    pp, jj = divmod(j, 2)
    a.e(f"buffer_load_dwordx4 {vr(vOF[5*pp+2*jj],4)}, v{vL16}, {sr(sWS,4)}, s{sOJ+j} offen sc1")
    a.e(f"buffer_load_dwordx4 {vr(vOF[5*pp+2*jj+1],4)}, v{vL16}, {sr(sWS,4)}, s{sOJ+j} offen offset:1024 sc1")
    a.e(f"buffer_load_dwordx2 {vr(vOF[5*pp+4]+2*jj,2)}, v{vL8}, {sr(sWS,4)}, s{sOJ+j} offen offset:2048 sc1")
RDY = f"s_mov_b64 exec, 15\nbuffer_load_dwordx2 {vr(vRdy,2)}, v{vT1}, {sr(sWS,4)}, s{sOB} offen offset:2552 sc1\ns_mov_b64 exec, -1"
RDYC = f"s_waitcnt vmcnt(0)\nv_max_u32 v{vT0}, v{vRdy}, v{vRdy+1}\nv_cmp_eq_u32 {sr(sC0,2)}, -1, v{vT0}\ns_nop 0"
def SETF(off): return f"s_mov_b64 exec, 1\nds_write_b8 v{vFa}, v{vFlag} offset:{off}\ns_mov_b64 exec, -1"
vPkd = vR1 + 12
ring = list(range(38, 118, 4)) + list(range(150, vR1 - 3, 4))
NRING2 = len(ring)
nblk = [0]
class only_par:
    def __init__(s_, par): s_.par = par
    def __enter__(s_):
        s_.k = nblk[0]; nblk[0] += 1
        a.e(f"s_cmp_eq_u32 s{sPAR}, {s_.par}\ns_cbranch_scc0 L_blk{s_.k}")
    def __exit__(s_, *x): a.label(f"L_blk{s_.k}")
def wr3(addr, off, src):
    for i in range(3): a.e(f"ds_write_b128 v{addr}, {vr(src+4*i,4)} offset:{off+1024*i}")
def rd3(addr, off, dst):
    for i in range(3): a.e(f"ds_read_b128 {vr(dst+4*i,4)}, v{addr} offset:{off+1024*i}")
def add11(dst, src):
    if opt.pk:
        for i in range(0, 10, 2): a.e(f"v_pk_add_f32 {vr(dst+i,2)}, {vr(dst+i,2)}, {vr(src+i,2)}")
        a.e(f"v_add_f32 v{dst+10}, v{dst+10}, v{src+10}")
    else:
        for i in range(11): a.e(f"v_add_f32 v{dst+i}, v{dst+i}, v{src+i}")
vRc = [vO, vO + 12, vR1]
def lreads():
    a.e(f"ds_read_b32 v{vRdy}, v{vT0}")
    rd3(vA1, 0, vRc[0]); rd3(vA1, 9216, vRc[1]); rd3(vA0, 3072, vRc[2])
ksched = {2 * t - 4: t for t in range(2, 15)}; vsched = {2 * t - 3: t for t in range(2, 15)}
for n in range(NS):
    t, p = seq[n]
    a.c(f"half-step {n}: tile {t} pair {p}")
    if n in opt.prio: a.e(f"s_setprio {opt.prio[n]}")
    if n in (4, 8, 16, 24, 29, 30, 31): stamp(f"step{n}")
    S = vS[n % 2]
    ex = [f"v_exp_f32 v{S+i}, v{S+i}" for i in range(32)]
    cv = [f"v_cvt_pk_bf16_f32 v{vP+i}, v{S+2*i}, v{S+2*i+1}" for i in range(16)]
    E = lambda lo, hi: [a.e(x) for x in ex[lo:hi]]
    C = lambda lo, hi: [a.e(x) for x in cv[lo:hi]]
    L = k_loads(ksched[n]) if n in ksched else v_loads(vsched[n]) if n in vsched else v_loads(15) if n == 26 else []
    def LD(i):
        if i < len(L): a.vload(*L[i])
    nxt = n + 1 < NS
    E(0, 2)
    if n > 0: a.e(pv(n - 1, 3))
    E(2, 6)
    if nxt:
        a.wait_vm_if(("k", seq[n + 1][0]))
        a.e(s2b(n + 1))
    if n == 30:
        a.wait_vm0()
        a.e("s_waitcnt lgkmcnt(0)\ns_barrier")
        a.e(f"s_setprio {opt.prl}")
        with only_par(0):
            a.e(f"s_setprio {opt.pre}")
            rd3(vA0, 0, vR1); rd3(vA0, 3072, vR1 + 12)
    E(6, 8)
    if n in (4, 8):
        flag_cmp()
    C(0, 4)
    if n in ksched and ksched[n] % 2 == 0: chunk_check(ksched[n] // 2)
    LD(0); E(8, 12); LD(1)
    if n in vsched: kv_advance(vsched[n])
    if n in (1, 5): flag_refresh()
    E(12, 13)
    a.wait_vm_if(("v", t))
    a.e(pv(n, 0))
    E(13, 16)
    if n == 2:
        a.e(f"buffer_store_dwordx4 {vr(vR1,4)}, v{vL16}, {sr(sWS,4)}, s{sO0} offen sc1")
        a.e(f"buffer_store_dword v{vR1}, v{vL8}, {sr(sWS,4)}, s{sO1} offen sc1")
    if n == 3:
        a.e(f"v_mov_b32 v{vR1+8}, 0\nv_mov_b32 v{vR1+9}, 0\nv_mov_b32 v{vR1+10}, 0\nv_mov_b32 v{vR1+11}, 0\nv_mov_b32 v{vT0}, {L_FL}")
        a.e(f"s_mov_b64 exec, 1\nds_write_b128 v{vT0}, {vr(vR1+8,4)}\ns_mov_b64 exec, -1")
        for j in range(4):
            a.e(f"s_xor_b32 s{sT0}, s{sHG}, {j ^ 3}\ns_and_b32 s{sT0}, s{sT0}, 3\ns_mul_i32 s{sT0}, s{sT0}, 2560\ns_add_u32 s{sOJ+j}, s{sT0}, s{sOB}")
    if n == 27:
        a.e(f"s_and_b32 s{sT0}, s{sW}, 2\ns_add_u32 s{sT0}, s{sT0}, s{sPAR}\ns_lshl_b32 s{sT0}, s{sT0}, 1\ns_add_u32 s{sT0}, s{sT0}, s{sKH}\ns_add_u32 s{sT0}, s{sT0}, {L_FL}\nv_mov_b32 v{vFa}, s{sT0}\nv_mov_b32 v{vFlag}, 1")
    if n == 8:
        a.e(f"s_mov_b64 exec, 1\nbuffer_store_dword v{vR1+4}, v{vL16}, {sr(sWS,4)}, s{sF2} offen sc1\ns_mov_b64 exec, -1")
    if n == 23:
        a.e(f"v_and_b32 v{vT0}, 15, v{vLane}\nv_lshlrev_b32 v{vT0}, 7, v{vT0}\ns_and_b32 s{sF2}, s{sF2}, 0xfffff800")
        a.vload(f"buffer_load_dword v{vT1}, v{vT0}, {sr(sWS,4)}, s{sF2} offen sc1", ("f2",))
    if n == 25:
        for x in k_loads(15): a.vload(*x)
    if n == 28:
        assert ("f2",) not in a.vm
        a.label("L_f2")
        a.e(f"""v_xor_b32 v{vT1}, s{sTAG}, v{vT1}
v_cmp_lt_u32 vcc, 7, v{vT1}
s_cbranch_vccnz L_slowf2
v_cmp_ne_u32 {sr(sMSK,2)}, s{sXCC}, v{vT1}
v_and_b32 v{vT0}, -4, v{vFa}""")
    if n == 29: wr3(vE0, 0, vO)
    if n == 31:
        for j in range(8): trd(ring[j], *js[j], ("fr",) + js[j])
    if n == 30:
        with only_par(0):
            a.e("s_waitcnt lgkmcnt(3)"); add11(vO + 16, vR1)
            rd3(vA0, 6144, vR1)
            a.e("s_waitcnt lgkmcnt(3)"); add11(vO + 16, vR1 + 12)
    C(4, 8); E(16, 18)
    a.e(pv(n, 1))
    E(18, 22)
    if nxt: a.e(s16(n + 1, 0))
    E(22, 24)
    s = n - opt.wo0
    if 0 <= s < 20:
        khs, i = divmod(s, 10); pp, u = divmod(i, 5)
        if u < 4: so = f"s_add_u32 s{sT2}, s{sPJ + 2*pp + u//2}, {(320*khs + 40*(u%2))*1280}"
        else: so = f"s_min_u32 s{sT2}, s{sPJ+2*pp}, s{sPJ+2*pp+1}\ns_add_u32 s{sT2}, s{sT2}, {320*khs*1280}"
        a.e(f"s_add_u32 m0, s{sM0B}, {L_W + khs*51200 + i*5120}\n{so}\ns_mov_b32 exec_hi, 0xff")
        a.vload(f"buffer_load_dwordx4 v{vWoA if u < 4 else vWoB}, {sr(sWO,4)}, s{sT2} offen lds", ("wo", s))
        a.e("s_mov_b32 exec_hi, -1")
    if n == 29:
        with only_par(1): wr3(vA0, 3072, vO + 16)
    if n == 30:
        with only_par(0):
            a.e("s_waitcnt lgkmcnt(0)"); add11(vO + 16, vR1)
            normalize(vO + 16, vR1 + 12, "L_defer")
            finish(vO + 16, vR1 + 12, "e")
            a.label("L_deferred")
    C(8, 12); E(24, 26)
    a.e(pv(n, 2))
    if n == 31:
        wr3(vL0, 0, vO + 32)
        with only_par(1): a.e(SETF(0))
    E(26, 30)
    if n == 31:
        with only_par(1): lreads()
    if nxt: a.e(s16(n + 1, 1))
    E(30, 32); C(12, 16)
a.e("s_nop 1")
a.e(pv(NS - 1, 3))
stamp("loop end")
vSum = vO + 48
def ocheck(j, r):
    pp, jj = divmod(j, 2)
    b0, b1, l = vOF[5*pp+2*jj], vOF[5*pp+2*jj+1], vOF[5*pp+4] + 2*jj
    a.label(f"L_ochk{j}{r}")
    a.e(f"v_max_u32 v{vT0}, v{l}, v{l+1}")
    if opt.chk1: a.e(f"v_max3_u32 v{vT0}, v{vT0}, v{b0+3}, v{b1+3}")
    else:
        for b in (b0, b0 + 2, b1, b1 + 2): a.e(f"v_max3_u32 v{vT0}, v{vT0}, v{b}, v{b+1}")
    a.e(f"v_cmp_eq_u32 vcc, -1, v{vT0}\ns_cbranch_vccnz L_oslow{j}{r}")
def gemm_out(r, issued, npre):
    for j, (i, t) in enumerate(js):
        while issued < len(js) and issued < j + npre:
            trd(ring[issued % NRING2], *js[issued], ("fr",) + js[issued]); issued += 1
        if t == 0 and i % 5 in (0, 2):
            pj = 2 * (i // 5) + (i % 5) // 2
            a.e(f"s_waitcnt vmcnt({9 - 3*pj})")
            ocheck(pj, r)
            if r == "l": stamp(f"chk{pj}")
        a.wait_lg(("fr", i, t))
        c = "0" if i == 0 else vr(vAcc2 + 4 * t, 4)
        a.e(f"v_mfma_f32_16x16x32_bf16 {vr(vAcc2+4*t,4)}, {vr(ring[j%NRING2],4)}, {vr(vOF[i],4)}, {c}")
a.e(f"s_cmp_eq_u32 s{sPAR}, 0\ns_cbranch_scc1 L_early")
a.label("L_lrd")
a.e(f"s_waitcnt lgkmcnt(9)\nv_cmp_ne_u32 vcc, 0x01010101, v{vRdy}\ns_cbranch_vccnz L_lslow")
stamp("L rd")
a.e("s_waitcnt lgkmcnt(3)")
add11(vRc[0], vRc[1])
a.e("s_waitcnt lgkmcnt(0)")
add11(vRc[0], vRc[2])
add11(vSum, vRc[0])
normalize(vSum, vRc[0], "L_fallback")
finish(vSum, vPkd, "l")
stamp("O stored")
a.lg = []
for j in range(8, opt.poll_at): trd(ring[j], *js[j], ("fr",) + js[j])
for j in range(4): opoll(j)
stamp("O issued")
gemm_out("l", opt.poll_at, min(opt.npre, NRING2 - 1))
a.label("L_reduce")
stamp("ogemm")
vG = 38
a.e(f"""v_and_b32 v{vT0}, 15, v{vLane}
v_mul_u32_u24 v{vT0}, 1280, v{vT0}
v_lshrrev_b32 v{vT1}, 4, v{vLane}
v_mul_u32_u24 v{vT1}, 40, v{vT1}
v_add_u32 v{vT0}, v{vT0}, v{vT1}
s_mul_i32 s{sT1}, s{sT}, 20480
s_add_u32 s{sT1}, s{sT1}, s{sHGO}
s_mul_i32 s{sT2}, s{sPAR}, 3072
v_subrev_u32 v{vA0}, s{sT2}, v{vA0}
v_subrev_u32 v{vA1}, s{sT2}, v{vA1}
v_xor_b32 v{vT1}, 1, v{vFa}""")
a.e(f"s_cmp_eq_u32 s{sKH}, 0\ns_cbranch_scc0 L_o1")
for t in (3, 4): a.e(f"ds_write_b128 v{vA0}, {vr(vAcc2+4*t,4)} offset:{6144+1024*(t-3)}")
a.e(SETF(8))
a.label("L_prd0")
a.e(f"ds_read_u8 v{vRdy}, v{vT1} offset:8")
for t in range(3): a.e(f"ds_read_b128 {vr(vG+4*t,4)}, v{vA1} offset:{6144+1024*t}")
a.e(f"s_add_u32 s{sSPIN}, s{sSPIN}, 1\ns_cmp_lt_u32 s{sSPIN}, 1000000\ns_cbranch_scc0 L_end\ns_waitcnt lgkmcnt(0)\nv_cmp_ne_u32 vcc, 1, v{vRdy}\ns_cbranch_vccnz L_prd0")
for i in range(12): a.e(f"v_add_f32 v{vAcc2+i}, v{vAcc2+i}, v{vG+i}")
for i in range(6): a.e(f"v_cvt_pk_bf16_f32 v{vG+16+i}, v{vAcc2+2*i}, v{vAcc2+2*i+1}")
a.e(f"buffer_store_dwordx4 {vr(vG+16,4)}, v{vT0}, {sr(sOUT,4)}, s{sT1} offen{opt.outpol}")
a.e(f"buffer_store_dwordx2 {vr(vG+20,2)}, v{vT0}, {sr(sOUT,4)}, s{sT1} offen offset:16{opt.outpol}")
a.e("s_branch L_fin")
a.label("L_o1")
for t in range(3): a.e(f"ds_write_b128 v{vA0}, {vr(vAcc2+4*t,4)} offset:{6144+1024*t}")
a.e(SETF(8))
a.label("L_prd1")
a.e(f"ds_read_u8 v{vRdy}, v{vT1} offset:8")
for t in range(2): a.e(f"ds_read_b128 {vr(vG+4*t,4)}, v{vA1} offset:{6144+1024*t}")
a.e(f"s_add_u32 s{sSPIN}, s{sSPIN}, 1\ns_cmp_lt_u32 s{sSPIN}, 1000000\ns_cbranch_scc0 L_end\ns_waitcnt lgkmcnt(0)\nv_cmp_ne_u32 vcc, 1, v{vRdy}\ns_cbranch_vccnz L_prd1")
for i in range(8): a.e(f"v_add_f32 v{vAcc2+12+i}, v{vAcc2+12+i}, v{vG+i}")
for i in range(4): a.e(f"v_cvt_pk_bf16_f32 v{vG+16+i}, v{vAcc2+12+2*i}, v{vAcc2+12+2*i+1}")
a.e(f"buffer_store_dwordx4 {vr(vG+16,4)}, v{vT0}, {sr(sOUT,4)}, s{sT1} offen offset:24{opt.outpol}")
a.label("L_fin")
stamp("out st")
a.e(f"s_or_b32 s{sT0}, s2, s{sW}\ns_cmp_eq_u32 s{sT0}, 0\ns_cbranch_scc0 L_noep")
a.e(f"s_mov_b64 exec, 1\nv_mov_b32 v{vT1}, s{sTAG}\nv_mov_b32 v{vT0}, {A_EP}\nbuffer_store_dword v{vT1}, v{vT0}, {sr(sWS,4)}, 0 offen sc1\ns_mov_b64 exec, -1")
a.label("L_noep")
if opt.debug:
    a.e("s_waitcnt vmcnt(0)")
    stamp("end")
    a.e(f"s_lshl_b32 s{sT0}, s2, 3\ns_add_u32 s{sT0}, s{sT0}, s{sW}\ns_lshl_b32 s{sT0}, s{sT0}, 8\ns_add_u32 s{sT0}, s{sT0}, {A_DBG}")
    a.e(f"v_writelane_b32 v17, s{sSPIN}, 31\nv_lshlrev_b32 v{vT0}, 2, v{vLane}")
    a.e(f"buffer_store_dword v17, v{vT0}, {sr(sWS,4)}, s{sT0} offen")
    if opt.dbgout:
        assert nstamp[0] <= 15
        srd(sX, 16, 256)
        a.e(f"v_subrev_u32 v{vT1}, s94, v17\nv_cmp_eq_u32 vcc, 0, v17\nv_cndmask_b32 v{vT1}, v{vT1}, v17, vcc\ns_not_b32 s{sT0}, s94\ns_and_b32 s{sT0}, s{sT0}, 0xffffff\ns_and_b32 s98, s98, 0xffffff\nv_writelane_b32 v{vT1}, s{sT0}, 0\nv_writelane_b32 v{vT1}, s98, 15")
        a.e(f"s_mov_b64 exec, 0xffff\nbuffer_atomic_umax v{vT1}, v{vT0}, {sr(sX,4)}, 0 offen")
if opt.pad:
    if opt.pad == "end": a.e("s_waitcnt vmcnt(0)\ns_memrealtime s[92:93]")
    a.label("L_pad")
    a.e("s_memrealtime s[90:91]\ns_waitcnt lgkmcnt(0)\ns_sub_u32 s90, s90, s92\ns_cmp_lt_u32 s90, 6000\ns_cbranch_scc1 L_pad")
a.label("L_end")
a.e("s_endpgm")
a.label("L_early")
a.e("s_nop 9")
wr3(vA0, 3072, vO + 48)
a.e(SETF(0))
a.e(f"s_setprio 0\ns_waitcnt lgkmcnt(0)\ns_cmp_eq_u32 s{sDEF}, 0\ns_cbranch_scc0 L_dfb")
a.lg = []
for j in range(4): opoll(j)
a.label("L_egemm")
gemm_out("e", 8, opt.npre_e)
a.e("s_branch L_reduce")
a.label("L_dfb")
for i in range(4): a.e(f"v_mov_b32 v{vQ[3]+i}, v{vQ[1]+i}")
for i in range(2): a.e(f"v_mov_b32 v{vQH[1]+i}, v{vQH[0]+i}")
a.e("s_branch L_fallback")
for c in slow_stubs:
    a.label(f"L_slow{c}")
    a.e(f"s_add_u32 s{sSPIN}, s{sSPIN}, 1\ns_cmp_lt_u32 s{sSPIN}, 1000000\ns_cbranch_scc0 L_end")
    a.e(f"s_mov_b64 exec, {sr(sMSK,2)}\n{FLOAD}\ns_mov_b64 exec, -1\ns_waitcnt vmcnt(0)")
    flag_cmp()
    a.e(f"s_nop 0\ns_and_b32 s{sT0}, s{sMSK + c//4}, 0x{0xff << (8*(c%4)):x}\ns_cbranch_scc1 L_slow{c}\ns_branch L_back{c}")
for r in "el":
    for j in range(4):
        a.label(f"L_oslow{j}{r}")
        a.e(f"s_add_u32 s{sSPIN}, s{sSPIN}, 1\ns_cmp_lt_u32 s{sSPIN}, 1000000\ns_cbranch_scc0 L_end")
        opoll(j)
        a.e(f"s_waitcnt vmcnt(0)\ns_branch L_ochk{j}{r}")
a.label("L_lslow")
a.e(f"s_add_u32 s{sSPIN}, s{sSPIN}, 1\ns_cmp_lt_u32 s{sSPIN}, 1000000\ns_cbranch_scc0 L_end")
a.e(f"ds_read_b32 v{vRdy}, v{vT0}\ns_waitcnt lgkmcnt(0)\nv_cmp_ne_u32 vcc, 0x01010101, v{vRdy}\ns_cbranch_vccnz L_lslow")
lreads()
a.e("s_branch L_lrd")
for T, tag in ostubs:
    a.label(f"L_osc{tag}")
    ostore(T, " sc1")
    a.e(f"s_branch L_osd{tag}")
a.label("L_defer")
a.e(f"s_mov_b32 s{sDEF}, 1\ns_branch L_deferred")
a.label("L_slowf2")
a.e(f"s_add_u32 s{sSPIN}, s{sSPIN}, 1\ns_cmp_lt_u32 s{sSPIN}, 1000000\ns_cbranch_scc0 L_end")
a.e(f"buffer_load_dword v{vT1}, v{vT0}, {sr(sWS,4)}, s{sF2} offen sc1\ns_waitcnt vmcnt(0)\ns_branch L_f2")
a.label("L_fallback")
fS = 70; fM = vR1 + 20; fK = vKr; fV = vVr
def f_scores():
    a.e(f"buffer_load_dwordx4 {vr(fK,4)}, v{vL16}, {sr(sWS,4)}, s{sT0} offen sc1")
    a.e(f"buffer_load_dwordx2 {vr(fK+4,2)}, v{vK1a}, {sr(sWS,4)}, s{sT0} offen offset:1024 sc1")
    a.e(f"buffer_load_dwordx4 {vr(fV,4)}, v{vVa}, {sr(sWS,4)}, s{sT0} offen offset:1536 sc1")
    a.e(f"buffer_load_dwordx4 {vr(fV+4,4)}, v{vVa}, {sr(sWS,4)}, s{sT0} offen offset:2304 sc1")
    a.e("s_waitcnt vmcnt(0)\ns_mov_b32 exec_lo, 0x00440000\ns_mov_b32 exec_hi, 0x00440000")
    for i in range(8): a.e(f"v_mov_b32 v{fV+i}, 0x3f803f80")
    a.e("s_mov_b64 exec, -1")
    a.e(f"v_mfma_f32_32x32x4_2b_bf16 {vr(fS,32)}, {vr(fK+4,2)}, {vr(vQH[1],2)}, 0\ns_nop 15\ns_nop 1")
    a.e(f"v_mfma_f32_32x32x16_bf16 {vr(fS+16,16)}, {vr(fK,4)}, {vr(vQ[3],4)}, {vr(fS+16,16)}\ns_nop 11")
a.e(f"v_mov_b32 v{fM}, 0xff800000\ns_mov_b32 s{sT0}, 0")
a.label("L_fb1")
f_scores()
for i in range(0, 16, 2): a.e(f"v_max3_f32 v{fM}, v{fM}, v{fS+16+i}, v{fS+17+i}")
a.e(f"s_add_u32 s{sT0}, s{sT0}, 4096\ns_cmp_lt_u32 s{sT0}, 262144\ns_cbranch_scc1 L_fb1")
a.e(f"v_mov_b32 v{fM+1}, v{fM}\ns_nop 1\nv_permlane32_swap_b32 v{fM}, v{fM+1}\ns_nop 1\nv_max_f32 v{fM}, v{fM}, v{fM+1}")
for i in range(16): a.e(f"v_mov_b32 v{vSum+i}, 0")
a.e(f"s_mov_b32 s{sT0}, 0")
a.label("L_fb2")
f_scores()
for i in range(16): a.e(f"v_sub_f32 v{fS+16+i}, v{fS+16+i}, v{fM}")
for i in range(16): a.e(f"v_exp_f32 v{fS+16+i}, v{fS+16+i}")
a.e("s_nop 0")
for i in range(8): a.e(f"v_cvt_pk_bf16_f32 v{vP+i}, v{fS+16+2*i}, v{fS+17+2*i}")
a.e("s_nop 1")
for g in range(2):
    a.e(f"v_mfma_f32_32x32x16_bf16 {vr(vSum,16)}, {vr(fV+4*g,4)}, {vr(vP+4*g,4)}, {vr(vSum,16)}")
a.e(f"s_add_u32 s{sT0}, s{sT0}, 4096\ns_cmp_lt_u32 s{sT0}, 262144\ns_cbranch_scc1 L_fb2")
a.e("s_nop 15")
scale(vSum, vPkd)
for i in range(5): a.e(f"v_min_u32 v{vPkd+i}, -2, v{vPkd+i}")
a.label("L_last")
a.e("s_branch L_ostl")
a.raw(open("footer.txt").read())
txt = a.text()
for p in check(txt): print("HAZARD", p, file=sys.stderr)
open(sys.argv[1], "w").write(txt)
if opt.debug: open(sys.argv[1] + ".stamps", "w").write("\n".join(STAMPS))
```

```python
import sys, math, struct
from asmlib import *

class Opt:
    debug = False
    prio = {0: 3, 16: 2, 24: 1, 28: 0}
    force_fallback = False
    fast = True
    touch = 2
    wo0 = 1
    only = None
    dbgout = False
    pad = None
    syncs = (1, 3, 5, 7, 9, 11, 13, 15, 17, 19)
    lead = 4
    fl_at = 15
    bk = 15
    pub_at = 1
    drain = 20
    ahead = 7
    hrot = 2
    w64 = True
    dskip = 5
    kv_at = {17: (0,), 19: (1,), 20: (2,)}
    kv_a = {21: (0, 1, 2)}
    skv = 2
    head = "kKp12w3ssss"
    upers = 2
    bprio = 2
    dmode = ""
    align = 8
    dry = False
    xfirst = True
    poll_at = 36
    npre_e = 10
    prl = 1
    pre = 3
    outpol = ""
    opol = {"e": "", "l": ""}
    epar = 0
    cpf = True
    pk = False
    chk1 = True
    npre = 40
opt = Opt()
for x in sys.argv[2:]:
    k, v = x.split("=", 1)
    setattr(opt, k, eval(v))

A_KV = 0
A_F1 = 262144
A_EP = A_F1 + 65536
A_F2 = 524288
A_O = 1 << 20
A_DBG = 4 << 20
WS_BYTES = 8 << 20
OOB = 0x40000000
L_W = 0
P_R = [81920, 102400, 122880, 0, 20480]
P_KVW = 122880
L_S = 102400
L_Q2 = 143360
L_FLG = 153600
L_F01 = 153632
L_FL = 153616
LDS_BYTES = 163840
sX, sWQ, sWKV, sWO, sOUT, sWS = 20, 24, 28, 32, 36, 40
sW, sTT, sKH, sHG, sTB, sT, sTK, sTAG, sXCD, sR = 44, 45, 46, 47, 48, 49, 50, 51, 52, 53
sT0, sT1, sT2, sT3 = 54, 55, 56, 57
sKV = 58
sXCC = 59
sO0, sO1 = 60, 61
sHGO = 62
sM0B = 63
sSPIN = 64
sOB = 65
sWQB = 66
sRG = 67
sMSK = 72
sC0 = 74
sF2 = 76
sJH, sJE, sCA, sCX = 77, 78, 79, 80
sJ, sU, sPAR, sISS, sDEF = 81, 82, 83, 84, 85
sPJ = 86
sOJ = 67
sCC = 3
vLane, vL16, vK1a, vVa, vFa, vWoA, vWoB, vTr, vA0, vA1, vE0, vL0, vFlag, vT0, vT1, vL8 = range(1, 17)
vQ = [18, 22, 26, 30]; vQH = [34, 36]
vS = [38, 70]
vP = 102
vO = 118
vKr = 182
vVr = 200
vR1 = 224
vXf = 38; vAcc = 118; vFr = 138
vW40, vXp = 224, 225
vXa = 226
vQa = 231
vCx, vCw = 237, 238
vCx2, vXp1 = 247, 248
vSt = 240
vT2, vT3 = 241, 242
vTq0, vTq1, vM2w, vM2h = 243, 244, 245, 246

a = Asm()
nstamp = [0]
STAMPS = []
def stamp(name):
    if opt.pad == name: a.e("s_memrealtime s[92:93]")
    if not opt.debug: return
    if opt.only is not None and name not in opt.only and not (name.startswith("A:") and "A" in opt.only): return
    i = nstamp[0]; nstamp[0] += 1
    a.c(f"stamp {i}: {name}")
    a.e("s_memrealtime s[98:99]\ns_memtime s[100:101]")
    a.wait_lg0()
    a.e(f"v_writelane_b32 v17, s98, {i}\nv_writelane_b32 v17, s100, {32+i}")
    STAMPS.append(name)
def stamp_at(i):
    if not opt.debug: return
    if opt.only is not None and "A" not in opt.only: return
    a.e("s_memrealtime s[98:99]\ns_memtime s[100:101]")
    a.wait_lg0()
    a.e(f"v_writelane_b32 v17, s98, {i}\nv_writelane_b32 v17, s100, {32+i}")
LIGHT = {}
def light(name):
    if not opt.debug or opt.only is None or name not in opt.only: return
    if name not in LIGHT: LIGHT[name] = [0, 4, 6, 8, 10, 16][len(LIGHT)]
    a.e(f"s_memtime {sr(LIGHT[name],2)}")
def srd(base, lo, nbytes):
    a.e(f"s_mov_b32 s{base}, s{lo}\ns_mov_b32 s{base+1}, s{lo+1}\ns_mov_b32 s{base+2}, {nbytes}\ns_mov_b32 s{base+3}, 0x00020000")
def trd(f, i, t, tag):
    off = i * 5120 + 8 * t
    base = vTr
    for q in range(2):
        a.lds(f"ds_read_b64_tr_b16 {vr(f+2*q,2)}, v{base} offset:{off+q*2560}", tag)
slow_stubs = []

a.raw(open("header.txt").read().replace("@LDS@", str(LDS_BYTES)).replace(".p2align 8", f".p2align {opt.align}"))
a.e("s_cmp_ge_u32 s2, 256\ns_cbranch_scc1 L_end")
a.e("s_load_dwordx16 s[4:19], s[0:1], 0")
if opt.pad == "start": a.e("s_memrealtime s[92:93]")
if opt.debug:
    a.e("v_mov_b32 v17, 0\ns_memrealtime s[94:95]\ns_memtime s[96:97]"); nstamp[0] = 2; STAMPS.append("start"); STAMPS.append("karg")
def xtile(j):
    if j: a.e(f"s_add_u32 s{sT3}, s{sTK}, {j}\ns_and_b32 s{sT3}, s{sT3}, 3\ns_mul_i32 s{sT1}, s{sT3}, 20480\ns_add_u32 s{sT0}, s{sT1}, s{sJH}\ns_add_u32 s{sT1}, s{sT1}, s{sJE}")
    for i in range(5):
        a.e(f"s_add_u32 m0, s{sT1}, {1920*i}\ns_nop 0")
        a.vload(f"buffer_load_dwordx4 v{vXp}, {sr(sX,4)}, s{sT0} offen offset:{128*i} lds", ("x",))
def skv(role):
    if role == "B" or opt.skv == 1: a.e(f"""s_bitcmp1_b32 s{sHG}, 0
s_cselect_b32 s{sWKV}, s10, s8
s_cselect_b32 s{sWKV+1}, s11, s9""")
    if opt.skv == 2 and role == "B":
        a.e(f"s_mov_b64 exec, 15\nbuffer_load_dword v{vT2}, v{vT3}, {sr(sWKV,4)}, s{sCC} offen\ns_mov_b64 exec, -1")
    if opt.skv == 1:
        a.e(f"s_add_u32 s{sMSK}, s{sWKV}, s{sCC}\ns_addc_u32 s{sMSK+1}, s{sWKV+1}, 0")
        for o in (0, 64, 128, 196): a.e(f"s_load_dword s{sISS}, {sr(sMSK,2)}, {o}")
    a.e(f"s_load_dword s{sTAG}, s[18:19], {A_EP}")
    if opt.debug: a.e("v_writelane_b32 v17, s94, 0\nv_writelane_b32 v17, s96, 32")
def tagwait():
    a.e(f"s_waitcnt lgkmcnt(0)\ns_mul_i32 s{sTAG}, s{sTAG}, 1664525\ns_add_u32 s{sTAG}, s{sTAG}, 1013904223")
    if opt.debug: a.e("v_writelane_b32 v17, s90, 1\nv_writelane_b32 v17, s92, 33")
def su0():
    srd(sWS, 18, WS_BYTES); srd(sWO, 12, 819200); srd(sOUT, 14, 2621440)
    a.e(f"""s_lshr_b32 s{sU}, s{sW}, 2
s_xor_b32 s{sPAR}, s{sU}, {opt.epar}
s_and_b32 s{sKH}, s{sW}, 1
s_and_b32 s{sTT}, s{sW}, 2
s_or_b32 s{sTT}, s{sTT}, s{sPAR}
s_mov_b32 s{sDEF}, 0
s_lshl_b32 s{sT}, s{sTB}, 2
s_add_u32 s{sT}, s{sT}, s{sTT}
s_mul_i32 s{sM0B}, s{sW}, 640
s_getreg_b32 s{sXCC}, hwreg(HW_REG_XCC_ID, 0, 3)
s_mov_b32 s{sSPIN}, 0""")
def su1():
    a.e(f"""s_mul_i32 s{sOB}, s{sT}, 20480
s_add_u32 s{sOB}, s{sOB}, {A_O}
s_lshl_b32 s{sT2}, s{sHGO}, 4
s_add_u32 s{sT2}, s{sT2}, s{sOB}
s_lshl_b32 s{sT3}, s{sKH}, 10
s_add_u32 s{sO0}, s{sT2}, s{sT3}
s_lshl_b32 s{sT3}, s{sKH}, 2
s_add_u32 s{sO1}, s{sT2}, s{sT3}
s_add_u32 s{sO1}, s{sO1}, 2048
s_mul_i32 s{sT3}, s{sKH}, 10240
s_add_u32 s{sOB}, s{sOB}, s{sT3}
s_lshl_b32 s{sF2}, s{sT}, 4
s_lshl_b32 s{sT0}, s{sHG}, 1
s_add_u32 s{sT0}, s{sT0}, s{sKH}
s_add_u32 s{sF2}, s{sF2}, s{sT0}
s_lshl_b32 s{sF2}, s{sF2}, 7
s_add_u32 s{sF2}, s{sF2}, {A_F2}
s_mul_i32 s{sT1}, s{sKH}, 51200
v_mul_u32_u24 v{vTq0}, 40, v{vLane}
v_add_u32 v{vTr}, s{sT1}, v{vTq0}""")
def su2():
    a.e(f"""v_mul_u32_u24 v{vT0}, 6554, v{vLane}
v_lshrrev_b32 v{vT0}, 16, v{vT0}
v_mul_u32_u24 v{vT1}, 10, v{vT0}
v_sub_u32 v{vT1}, v{vLane}, v{vT1}
v_lshlrev_b32 v{vT1}, 4, v{vT1}
v_mul_u32_u24 v{vWoA}, 1280, v{vT0}
v_add_u32 v{vWoA}, v{vWoA}, v{vT1}
v_lshrrev_b32 v{vWoB}, 1, v{vT0}
v_mul_u32_u24 v{vWoB}, 38, v{vWoB}
v_add_u32 v{vWoB}, v{vWoB}, v{vT0}
v_mul_u32_u24 v{vWoB}, 1280, v{vWoB}
v_add_u32 v{vWoB}, v{vWoB}, v{vT1}
s_and_b32 s{sT0}, s{sJ}, 1
s_mul_i32 s{sT0}, s{sT0}, 20
s_and_b32 s{sT1}, s{sJ}, 2
s_lshl_b32 s{sT2}, s{sT1}, 1
s_add_u32 s{sT2}, s{sT2}, s{sT0}
s_lshl_b32 s{sT3}, s{sU}, 3
s_add_u32 s{sT2}, s{sT2}, s{sT3}
s_mul_i32 s{sT2}, s{sT2}, 1280
v_add_u32 v{vWoA}, s{sT2}, v{vWoA}
s_add_u32 s{sT0}, s{sT0}, s{sT1}
s_xor_b32 s{sT3}, s{sU}, s{sHG}
s_andn2_b32 s{sT3}, 1, s{sT3}
s_mul_i32 s{sT3}, s{sT3}, 80
s_add_u32 s{sT0}, s{sT0}, s{sT3}
s_add_u32 s{sT0}, s{sT0}, 16
s_mul_i32 s{sT0}, s{sT0}, 1280
v_add_u32 v{vWoB}, s{sT0}, v{vWoB}""")
def su3():
    for j in range(4):
        a.e(f"s_xor_b32 s{sT0}, s{sHG}, {j ^ 3}\ns_and_b32 s{sT0}, s{sT0}, 3\ns_mul_i32 s{sT0}, s{sT0}, 102400\ns_add_u32 s{sPJ+j}, s{sT0}, s{sHGO}")
    a.e(f"""s_mul_i32 s{sT0}, s{sJ}, 12288
s_add_u32 s{sT0}, s{sT0}, {L_S}
v_add_u32 v{vA0}, s{sT0}, v{vL16}
s_xor_b32 s{sT0}, s{sJ}, 1
s_mul_i32 s{sT0}, s{sT0}, 12288
s_add_u32 s{sT0}, s{sT0}, {L_S}
v_add_u32 v{vA1}, s{sT0}, v{vL16}
s_mul_i32 s{sT0}, s{sPAR}, 6144
v_add_u32 v{vE0}, s{sT0}, v{vA1}
s_mul_i32 s{sT0}, s{sPAR}, 9216
v_add_u32 v{vL0}, s{sT0}, v{vA0}""")
def su4():
    a.e(f"""v_and_b32 v{vT0}, 31, v{vLane}
v_lshlrev_b32 v{vK1a}, 4, v{vT0}
v_lshrrev_b32 v{vT1}, 5, v{vLane}
v_mul_u32_u24 v{vT1}, 384, v{vT1}
v_add_u32 v{vVa}, v{vK1a}, v{vT1}
v_mov_b32 v{vT1}, {OOB}
s_mov_b32 vcc_lo, 0xff880000
s_mov_b32 vcc_hi, 0xff880000
v_cndmask_b32 v{vVa}, v{vVa}, v{vT1}, vcc
v_lshlrev_b32 v{vL8}, 3, v{vLane}
s_lshl_b32 s{sT0}, s{sPAR}, 1
s_add_u32 s{sT0}, s{sT0}, s{sKH}
s_lshl_b32 s{sKV}, s{sXCD}, 15
s_lshl_b32 s{sT1}, s{sT0}, 13
s_add_u32 s{sKV}, s{sKV}, s{sT1}
v_lshrrev_b32 v{vFa}, 3, v{vLane}
v_add_u32 v{vFa}, s{sXCD}, v{vFa}
v_and_b32 v{vFa}, 7, v{vFa}
v_lshlrev_b32 v{vFa}, 5, v{vFa}
v_and_b32 v{vT1}, 7, v{vLane}
v_add_u32 v{vFa}, v{vFa}, v{vT1}
v_lshlrev_b32 v{vFa}, 7, v{vFa}
s_lshl_b32 s{sT1}, s{sT0}, 10
s_add_u32 s{sT1}, s{sT1}, {A_F1}
v_add_u32 v{vFa}, s{sT1}, v{vFa}
s_lshl_b32 s{sT1}, s{sT0}, 6
s_add_u32 s{sT1}, s{sT1}, {L_F01}
v_lshl_add_u32 v{vXp1}, v{vLane}, 2, s{sT1}""")
def su5():
    a.e(f"""s_and_b32 s{sT0}, s{sTT}, 2
s_mul_i32 s{sT0}, s{sT0}, 2560
s_add_u32 s{sT0}, s{sT0}, {L_Q2}
s_add_u32 s{sT1}, s{sT0}, 2560
v_lshrrev_b32 v{vT0}, 5, v{vLane}
v_lshl_add_u32 v{vT0}, v{vT0}, 10, v{vK1a}
s_lshl_b32 s{sT2}, s{sKH}, 9
s_xor_b32 s{sT3}, s{sT2}, 512
v_add_u32 v{vT1}, s{sT3}, v{vT0}
v_add_u32 v{vQa}, s{sT0}, v{vT1}
v_add_u32 v{vQa+2}, s{sT1}, v{vT1}
v_add_u32 v{vT1}, s{sT2}, v{vT0}
v_add_u32 v{vQa+1}, s{sT0}, v{vT1}
v_add_u32 v{vQa+3}, s{sT1}, v{vT1}
s_lshr_b32 s{sT3}, s{sT3}, 1
v_xor_b32 v{vT1}, s{sT3}, v{vL8}
v_add_u32 v{vQa+4}, s{sT0}, v{vT1}
v_add_u32 v{vQa+5}, s{sT1}, v{vT1}""")
def touch():
    if opt.touch == 2:
        a.e(f"""s_mul_i32 s{sT0}, s{sT}, 20480
s_add_u32 s{sT0}, s{sT0}, s{sHGO}
s_load_dword s{sISS}, s[18:19], s{sO0}
s_load_dword s{sISS}, s[14:15], s{sT0}
s_load_dword s{sISS}, s[12:13], s{sHGO}""")
def sub():
    a.e(f"v_and_b32 v{vSt}, 0xfffff3ff, v{vFa}\nv_or_b32 v{vSt}, s{sWQB}, v{vSt}")
    a.e(f"s_lshl_b32 s{sT0}, s{sJ}, 6\ns_add_u32 s{sT0}, s{sT0}, {L_F01}\nv_lshl_add_u32 v{vCx}, v{vLane}, 2, s{sT0}")
SU = [su0, su1, su2, su3, su4, su5]
def kslot(t): return vKr + 6 * (t % 3)
def vslot(t): return vVr + 8 * (t % 3)
def k_loads(t):
    b = kslot(t)
    return [(f"buffer_load_dwordx4 {vr(b,4)}, v{vL16}, {sr(sWS,4)}, s{sKV} offen sc1", ("k", t)),
            (f"buffer_load_dwordx2 {vr(b+4,2)}, v{vK1a}, {sr(sWS,4)}, s{sKV} offen offset:1024 sc1", ("k", t))]
def v_loads(t):
    b = vslot(t)
    return [(f"buffer_load_dwordx4 {vr(b,4)}, v{vVa}, {sr(sWS,4)}, s{sKV} offen offset:1536 sc1", ("v", t)),
            (f"buffer_load_dwordx4 {vr(b+4,4)}, v{vVa}, {sr(sWS,4)}, s{sKV} offen offset:2304 sc1", ("v", t))]
def kv_advance(t):
    if t % 2 == 0: a.e(f"s_add_u32 s{sKV}, s{sKV}, 4096")
    else: a.e(f"s_add_u32 s{sKV}, s{sKV}, {32768-4096}\ns_and_b32 s{sKV}, s{sKV}, 0x3ffff")
FLOAD = f"buffer_load_dword v{vFlag}, v{vFa}, {sr(sWS,4)}, 0 offen sc1"
def flag_cmp(): a.e(f"v_cmp_ne_u32 {sr(sMSK,2)}, s{sTAG}, v{vFlag}")
def chunk_check(c):
    a.e(f"s_and_b32 s{sT0}, s{sMSK + c//4}, 0x{0xff << (8*(c%4)):x}\ns_cbranch_scc1 L_slow{c}")
    a.label(f"L_back{c}")
    slow_stubs.append(c)
nref = [0]
def flag_refresh():
    k = nref[0]; nref[0] += 1
    a.e(f"s_or_b32 s{sT0}, s{sMSK}, s{sMSK+1}\ns_cbranch_scc0 L_ref{k}\ns_mov_b64 exec, {sr(sMSK,2)}\n{FLOAD}\ns_mov_b64 exec, -1")
    a.label(f"L_ref{k}")
def first_kv(part):
    if part == 0:
        for x in k_loads(0): a.vload(*x)
        return
    if part == 1:
        for x in v_loads(0): a.vload(*x)
        kv_advance(0)
        return
    for x in k_loads(1): a.vload(*x)
a.e(f"""v_lshrrev_b32 v{vT0}, 6, v0
v_and_b32 v{vLane}, 63, v0
s_and_b32 s{sXCD}, s2, 7
s_lshr_b32 s{sT0}, s2, 3
v_readfirstlane_b32 s{sW}, v{vT0}
s_and_b32 s{sHG}, s{sT0}, 7
s_lshr_b32 s{sR}, s{sT0}, 3
s_lshl_b32 s{sTB}, s{sXCD}, 2
s_add_u32 s{sTB}, s{sTB}, s{sR}
v_lshrrev_b32 v{vT0}, 4, v0
v_xor_b32 v{vT0}, v{vT0}, v0
v_and_b32 v{vT0}, 7, v{vT0}
v_bfe_u32 v{vXp}, v0, 3, 4
v_mul_u32_u24 v{vXp}, 1280, v{vXp}
v_lshl_add_u32 v{vXp}, v{vT0}, 4, v{vXp}
s_and_b32 s{sJ}, s{sW}, 3
s_lshr_b32 s{sTK}, s{sHG}, 1
s_lshr_b32 s{sT1}, s{sJ}, 1
s_mul_i32 s{sT1}, s{sT1}, 640
s_mul_i32 s{sJH}, s{sTB}, 81920
s_add_u32 s{sJH}, s{sJH}, s{sT1}
s_and_b32 s{sJE}, s{sJ}, 1
s_lshl_b32 s{sJE}, s{sJE}, 6
s_add_u32 s{sJE}, s{sJE}, s{sT1}
s_lshl_b32 s{sJE}, s{sJE}, 4
v_lshlrev_b32 v{vL16}, 4, v{vLane}
s_mov_b32 s{sX+2}, 2621440
s_mov_b32 s{sX+3}, 0x00020000
""" + (f"""s_lshr_b32 s{sCC}, s2, 4
s_lshl_b32 s{sCC}, s{sCC}, 3
s_add_u32 s{sCC}, s{sCC}, s{sW}
s_mul_i32 s{sCC}, s{sCC}, 200
""" if opt.skv == 1 else "") + f"""s_mul_i32 s{sCA}, s{sJ}, 6400
s_mul_i32 s{sHGO}, s{sHG}, 160
s_cmp_lt_u32 s{sW}, 4
s_cbranch_scc0 L_b1""")
a.e(f"""s_mul_i32 s{sCX}, s{sTK}, 20480
s_add_u32 s{sT0}, s{sCX}, s{sJH}
s_add_u32 s{sT1}, s{sCX}, s{sJE}
s_waitcnt lgkmcnt(0)
s_mov_b32 s{sX}, s4
s_mov_b32 s{sX+1}, s5""")
if opt.debug: a.e("s_memrealtime s[90:91]\ns_memtime s[92:93]")
xtile(0)
skv("A")
light("d0")
a.e("s_branch L_a2")
a.label("L_b1")
a.vm = []
if opt.cpf:
    a.e(f"s_getpc_b64 {sr(sC0,2)}")
    a.label("L_pc")
    a.e(f"""s_lshr_b32 s{sT0}, s2, 3
s_lshl_b32 s{sT0}, s{sT0}, 2
s_add_u32 s{sT0}, s{sT0}, s{sJ}
s_lshl_b32 s{sT0}, s{sT0}, 8
v_lshlrev_b32 v{vT0}, 7, v{vLane}
v_add_u32 v{vT0}, s{sT0}, v{vT0}
v_min_u32 v{vT0}, L_last-L_pc, v{vT0}
s_mov_b64 exec, 3
global_load_dword v{vT2}, v{vT0}, {sr(sC0,2)}
s_mov_b64 exec, -1""")
vWa = 38
def waddr():
    a.e(f"v_and_b32 v{vWa+5}, 255, v0\ns_movk_i32 s{sT0}, 1120\ns_movk_i32 s{sT1}, 1280\ns_movk_i32 s{sT2}, -960")
    for m in range(5):
        d = vWa + m
        if m: a.e(f"v_add_u32 v{vWa+5}, 256, v{vWa+5}")
        a.e(f"""v_mul_u32_u24 v{vT1}, 6554, v{vWa+5}
v_lshlrev_b32 v{d}, 4, v{vWa+5}
v_lshrrev_b32 v{vT1}, 16, v{vT1}
v_mad_u32_u24 v{d}, v{vT1}, s{sT0}, v{d}
v_and_b32 v{vT0}, 12, v{vT1}
v_mad_u32_u24 v{d}, v{vT0}, s{sT1}, v{d}
v_and_b32 v{vT0}, 16, v{vT1}
v_mad_i32_i24 v{d}, v{vT0}, s{sT2}, v{d}""")
def slab_b(sl):
    rho, e = divmod(sl, 4)
    if e == 0 and rho: a.e(f"s_add_u32 s{sRG}, s{sRG}, 163840\ns_sub_u32 s{sRG+1}, s{sRG}, 819200\ns_min_u32 s{sRG}, s{sRG}, s{sRG+1}")
    for m in ((0, 1) if e == 0 else (e + 1,)):
        a.e(f"s_add_u32 m0, s{sWQB}, {P_R[rho] + 4096*m}\ns_nop 0")
        a.vload(f"buffer_load_dwordx4 v{vWa+m}, {sr(sWQ,4)}, s{sRG} offen lds", ("w", sl))
def wkv_dma(half):
    if half == 0:
        a.e(f"s_add_u32 m0, s{sCA}, {P_KVW}\ns_nop 0")
        for i in range(4): a.vload(f"buffer_load_dwordx4 v{vL16}, {sr(sWKV,4)}, s{sCA} offen offset:{1024*i} lds", ("kv",))
        return
    a.e(f"s_add_u32 m0, s{sCA}, {P_KVW+4096}\ns_add_u32 s{sT0}, s{sCA}, 4096")
    for i in range(3):
        if i == 2: a.e("s_mov_b64 exec, 0xffff")
        a.vload(f"buffer_load_dwordx4 v{vL16}, {sr(sWKV,4)}, s{sT0} offen offset:{1024*i} lds", ("kv",))
    a.e("s_mov_b64 exec, -1")
a.e(f"""s_mov_b32 s{sWKV+2}, 25600
s_mov_b32 s{sWKV+3}, 0x00020000
s_mov_b32 s{sWQ+2}, 819200
s_mov_b32 s{sWQ+3}, 0x00020000
s_lshl_b32 s{sWQB}, s{sJ}, 10
s_mul_i32 s{sRG}, s{sR}, 163840
s_add_u32 s{sRG}, s{sRG}, s{sHGO}""")
if opt.skv == 2: a.e(f"v_lshlrev_b32 v{vT3}, 7, v{vLane}\ns_lshr_b32 s{sCC}, s2, 4\ns_lshl_b32 s{sCC}, s{sCC}, 2\ns_add_u32 s{sCC}, s{sCC}, s{sJ}\ns_lshl_b32 s{sCC}, s{sCC}, 9")
if "a" not in opt.head: waddr()
a.e("s_waitcnt lgkmcnt(0)")
if opt.debug: a.e("s_memrealtime s[90:91]\ns_memtime s[92:93]")
skv("B")
a.e(f"s_mov_b32 s{sX}, s4\ns_mov_b32 s{sX+1}, s5\ns_mov_b32 s{sWQ}, s6\ns_mov_b32 s{sWQ+1}, s7")
kst = nstamp[0]
if opt.debug and (opt.only is None or "A" in opt.only):
    nstamp[0] += 3; STAMPS += ["A:data B:x", "A:chain B:k", "A:pub B:last"]
F0 = f"s_mov_b64 exec, 0xffff\nbuffer_load_dword v{vT1}, v{vSt}, {sr(sWS,4)}, 0 offen sc1\ns_mov_b64 exec, -1"
nsl = 0
todo = SU[:2] + [touch] + SU[2:] + [sub]
for k, ch in enumerate(opt.head):
    if ch == "k": light("cA"); wkv_dma(0)
    elif ch == "K": wkv_dma(1); light("c0")
    elif ch == "a": waddr()
    elif ch == "p": a.e(f"s_setprio {opt.bprio}")
    elif ch in "123": xtile(int(ch))
    elif ch == "s": slab_b(nsl); nsl += 1
    elif ch == "u": todo.pop(0)()
    elif ch == "w": light("c1"); a.wait_vm(("kv",)); light("c2"); a.e("s_barrier")
assert nsl <= 8
light("c3")
tagwait()
a.wait_vm(("x",)); light("c4"); stamp_at(kst); a.e("s_barrier")
for sl in range(20 + opt.lead):
    if nsl <= sl < 20: slab_b(sl)
    if sl == opt.fl_at:
        assert not todo
        a.e(F0); a.vm.append(("f0",))
    d = sl - opt.lead
    if d in opt.syncs:
        for k in range(opt.upers):
            if todo: todo.pop(0)()
        for p in opt.kv_at.get(d, ()): first_kv(p)
        a.wait_vm_if(("w", d))
        if d == opt.bk:
            assert sl >= 19
            a.wait_vm_if(("f0",))
            a.label("L_f0")
            a.e(f"s_mov_b64 exec, 0xff\nv_cmp_ne_u32 vcc, s{sTAG}, v{vT1}\ns_cbranch_vccnz L_slowf0\ns_mov_b64 exec, 0xffff\nds_write_b32 v{vCx}, v{vT1}\ns_mov_b64 exec, -1")
            stamp_at(kst + 1)
        if d == 19: stamp_at(kst + 2)
        a.e("s_barrier")
for p in opt.kv_at.get(20, ()): first_kv(p)
vm_join = list(a.vm)
a.e("s_waitcnt lgkmcnt(0)\ns_barrier")
a.e("s_branch L_bq")
a.label("L_a2")
cX, cW, cA, cR = 38, 98, 78, 138
light("d1")
for f in SU: f()
a.e(f"""s_add_u32 s{sCA}, s{sCA}, {P_KVW}
v_bfe_u32 v{vT0}, v{vLane}, 1, 3
v_lshrrev_b32 v{vT1}, 4, v{vLane}
v_xor_b32 v{vT0}, v{vT0}, v{vT1}
v_and_b32 v{vT1}, 15, v{vLane}
v_lshlrev_b32 v{vT1}, 7, v{vT1}
v_lshl_add_u32 v{vT0}, v{vT0}, 4, v{vT1}
s_lshl_b32 s{sT2}, s{sKH}, 6
v_xor_b32 v{vCx}, s{sT2}, v{vT0}
s_mul_i32 s{sT2}, s{sKH}, 3072
s_add_u32 s{sT2}, s{sT2}, s{sJE}
s_add_u32 s{sT2}, s{sT2}, s{sCX}
v_add_u32 v{vCx}, s{sT2}, v{vCx}
s_lshl_b32 s{sT2}, s{sKH}, 11
v_xor_b32 v{vCx2}, 64, v{vCx}
v_add_u32 v{vCx2}, s{sT2}, v{vCx2}
v_add_u32 v{vTq1}, {P_R[0]}, v{vTq0}
s_mul_i32 s{sT0}, s{sJ}, 20480
v_add_u32 v{vT0}, s{sT0}, v{vT0}
s_lshl_b32 s{sT0}, s{sR}, 12""")
for rho in range(5):
    if rho: a.e(f"s_add_u32 s{sT0}, s{sT0}, 4096\ns_sub_u32 s{sT1}, s{sT0}, 20480\ns_min_u32 s{sT0}, s{sT0}, s{sT1}")
    a.e(f"v_add_u32 v{vXa+rho}, s{sT0}, v{vT0}")
a.e(f"""v_lshrrev_b32 v{vT0}, 4, v{vLane}
v_bfe_u32 v{vT1}, v{vLane}, 2, 2
v_lshl_add_u32 v{vT0}, v{vT0}, 3, v{vT1}
v_mul_u32_u24 v{vT0}, 40, v{vT0}
v_add_u32 v{vT0}, s{sCA}, v{vT0}
v_and_b32 v{vT1}, 3, v{vLane}
v_lshlrev_b32 v{vT1}, 4, v{vT1}
v_min_u32 v{vCw}, 32, v{vT1}
v_add_u32 v{vCw}, v{vCw}, v{vT0}
v_add_u32 v{vT1}, 8, v{vT1}
v_min_u32 v{vCw+1}, 32, v{vT1}
v_add_u32 v{vCw+1}, v{vCw+1}, v{vT0}
s_mul_i32 s{sT0}, s{sJ}, 2560
s_add_u32 s{sT0}, s{sT0}, {L_Q2}
v_add_u32 v{vM2w}, s{sT0}, v{vL16}
v_add_u32 v{vM2h}, s{sT0}, v{vL8}
s_add_u32 s{sT1}, s{sW}, {L_FLG}
v_mov_b32 v{vT3}, s{sT1}
v_mov_b32 v{vFlag}, 0
s_mov_b64 exec, 1
ds_write_b8 v{vT3}, v{vFlag}
s_mov_b64 exec, -1
v_mov_b32 v{vFlag}, 1""")
a.e(f"""s_bitcmp1_b32 s{sHG}, 0
s_cbranch_scc1 L_ofv
v_lshrrev_b32 v{vT0}, 4, v{vLane}
v_and_b32 v{vT1}, 15, v{vLane}
v_lshlrev_b32 v{vT1}, 4, v{vT1}
v_lshl_add_u32 v{vSt}, v{vT0}, 9, v{vT1}
s_and_b32 s{sT1}, s{sTK}, 1
s_lshl_b32 s{sT1}, s{sT1}, 8
s_branch L_ofd""")
a.label("L_ofv")
a.e(f"""v_and_b32 v{vT0}, 7, v{vLane}
v_lshlrev_b32 v{vT0}, 2, v{vT0}
v_mov_b32 v{vT1}, 0x73625410
v_lshrrev_b32 v{vT0}, v{vT0}, v{vT1}
v_and_b32 v{vT0}, 7, v{vT0}
v_add_u32 v{vT0}, 16, v{vT0}
v_and_b32 v{vT1}, 4, v{vLane}
v_lshlrev_b32 v{vT1}, 1, v{vT1}
v_and_b32 v{vT2}, 3, v{vLane}
v_add_u32 v{vT1}, v{vT1}, v{vT2}
v_lshrrev_b32 v{vT2}, 5, v{vLane}
v_lshl_add_u32 v{vT1}, v{vT2}, 2, v{vT1}
s_mov_b32 vcc_lo, 0xff00ff00
s_mov_b32 vcc_hi, 0xff00ff00
v_cndmask_b32 v{vT0}, v{vT1}, v{vT0}, vcc
v_bfe_u32 v{vT1}, v{vLane}, 4, 1
v_mul_u32_u24 v{vT1}, 384, v{vT1}
v_lshl_add_u32 v{vSt}, v{vT0}, 4, v{vT1}
s_and_b32 s{sT1}, s{sTK}, 1
s_mul_i32 s{sT1}, s{sT1}, 768
s_add_u32 s{sT1}, s{sT1}, 1536""")
a.label("L_ofd")
a.e(f"""s_lshl_b32 s{sT0}, s{sTB}, 13
s_lshr_b32 s{sT2}, s{sTK}, 1
s_lshl_b32 s{sT2}, s{sT2}, 12
s_add_u32 s{sT0}, s{sT0}, s{sT2}
s_add_u32 s{sT0}, s{sT0}, s{sT1}
v_add_u32 v{vT2}, s{sCA}, v{vL16}""")
light("d2")
tagwait()
light("d3")
a.e("s_waitcnt vmcnt(0)")
light("cA")
a.e("s_barrier")
stamp_at(kst)
light("c0")
def cw_read(i):
    a.lds(f"ds_read_b128 {vr(cX+4*i,4)}, v{vCx2 if i%2 else vCx} offset:{2048*(i//2)}", ("cx", i))
    for h in range(2):
        for q in range(2):
            a.lds(f"ds_read_b64_tr_b16 {vr(cW+8*i+4*h+2*q,2)}, v{vCw+h} offset:{i*1280+q*160}", ("cw", i, h))
for i in range(5): cw_read(i)
light("c1")
a.e(f"s_bitcmp1_b32 s{sHG}, 0\ns_cbranch_scc1 L_chv")
save = list(a.lg)
for mat in range(2):
    a.lg = list(save)
    if mat: a.label("L_chv")
    for i in range(5):
        for h in range(2):
            a.wait_lg(("cw", i, h))
            W, X = vr(cW + 8 * i + 4 * h, 4), vr(cX + 4 * i, 4)
            c = "0" if i == 0 else vr(cA + 4 * h, 4)
            a.e(f"v_mfma_f32_16x16x32_bf16 {vr(cA+4*h,4)}, {W if not mat else X}, {X if not mat else W}, {c}")
    if not mat: a.e("s_branch L_chd")
a.label("L_chd")
light("c2")
a.e(f"s_cmp_eq_u32 s{sW}, 0\ns_cbranch_scc1 L_fin0\ns_nop 5")
a.e(f"ds_write_b128 v{vT2}, {vr(cA,4)}\nds_write_b128 v{vT2}, {vr(cA+4,4)} offset:1024")
a.e(f"s_mov_b64 exec, 1\nds_write_b8 v{vT3}, v{vFlag}\ns_mov_b64 exec, -1")
stamp_at(kst + 1)
a.e("s_branch L_bx")
a.label("L_fin0")
a.e(f"ds_read_b32 v{cR+24}, v{vT3}")
for j in range(1, 4):
    for h in range(2): a.e(f"ds_read_b128 {vr(cR+8*(j-1)+4*h,4)}, v{vT2} offset:{6400*j+1024*h}")
a.e(f"""s_add_u32 s{sSPIN}, s{sSPIN}, 1
s_cmp_lt_u32 s{sSPIN}, 1000000
s_cbranch_scc0 L_end
s_waitcnt lgkmcnt(6)
v_cmp_ne_u32 vcc, 0x01010100, v{cR+24}
s_waitcnt lgkmcnt(0)
s_cbranch_vccnz L_fin0""")
light("c3")
stamp_at(kst + 1)
for i in range(8):
    a.e(f"v_add_f32 v{cA+i}, v{cA+i}, v{cR+i}\nv_add_f32 v{cR+8+i}, v{cR+8+i}, v{cR+16+i}")
for i in range(8): a.e(f"v_add_f32 v{cA+i}, v{cA+i}, v{cR+8+i}")
SCALE = math.log2(math.e) / math.sqrt(20.0)
SCX = f"0x{struct.unpack('<I', struct.pack('<f', SCALE))[0]:08x}"
a.e(f"s_bitcmp1_b32 s{sHG}, 0\ns_cbranch_scc1 L_stv")
for i in range(8): a.e(f"v_mul_f32 v{cA+i}, {SCX}, v{cA+i}")
for i in range(4): a.e(f"v_cvt_pk_bf16_f32 v{cR+i}, v{cA+2*i}, v{cA+2*i+1}")
a.e("s_mov_b32 exec_hi, 0xffff\ns_branch L_std")
a.label("L_stv")
for i in range(4): a.e(f"v_cvt_pk_bf16_f32 v{cR+i}, v{cA+2*i}, v{cA+2*i+1}")
a.e(f"v_add_f32 v{vT0}, abs(v{cA}), abs(v{cA+1})")
for i in range(2, 8): a.e(f"v_add_f32 v{vT0}, v{vT0}, abs(v{cA+i})")
a.e(f"v_permlane32_swap_b32 v{cR}, v{cR+2}\nv_permlane32_swap_b32 v{cR+1}, v{cR+3}")
a.e(f"v_cmp_nge_f32 vcc, 0x5c000000, v{vT0}\ns_mov_b32 s{sT1}, 0x3f803f80\ns_nop 0\ns_cmp_lg_u64 vcc, 0\ns_cselect_b32 s{sT1}, 0x7f807f80, s{sT1}")
a.e("s_mov_b64 exec, 0x30003000")
for i in range(4): a.e(f"v_mov_b32 v{cR+i}, s{sT1}")
a.e("s_mov_b32 exec_lo, 0xc000c000")
for i in range(4): a.e(f"v_mov_b32 v{cR+i}, 0")
a.e("s_mov_b32 exec_lo, -1\ns_mov_b32 exec_hi, 0x00ff00ff")
a.label("L_std")
a.e(f"""buffer_store_dwordx4 {vr(cR,4)}, v{vSt}, {sr(sWS,4)}, s{sT0} offen sc1
s_mov_b64 exec, -1
s_lshl_b32 s{sCC}, s{sTB}, 3
s_add_u32 s{sCC}, s{sCC}, s{sHG}
s_lshl_b32 s{sCC}, s{sCC}, 7
s_add_u32 s{sCC}, s{sCC}, {A_F1}
v_mov_b32 v{vT1}, s{sTAG}""")
def publish():
    a.e(f"s_cmp_eq_u32 s{sW}, 0\ns_cbranch_scc0 L_pubd\ns_mov_b64 exec, 1\ns_waitcnt vmcnt(0)\nbuffer_store_dword v{vT1}, v{vL16}, {sr(sWS,4)}, s{sCC} offen sc1\ns_mov_b64 exec, -1")
    keep = list(a.lg); stamp_at(kst + 2); a.lg = keep
    a.label("L_pubd")
a.label("L_bx")
light("c4")
a.lg = []; a.vm = []
a.e("s_barrier")
stamp("Bx")
for e in range(2):
    for i in range(e, 20, 2):
        a.lds(f"ds_read_b128 {vr(vXf+4*i,4)}, v{vXa+i//4} offset:{2048*(i%4//2)}", ("x", i))
        if e == 0 and i % 4 == 2: a.e(f"v_xor_b32 v{vXa+i//4}, 64, v{vXa+i//4}")
js = [(i, t) for i in range(10) for t in range(5)]
qs = [(i, t) for i in range(20) for t in range(opt.dskip)]
for i in range(4 * opt.dskip, 20): a.e(f"v_mov_b32 v{vAcc+i}, 0")
NR1 = 11
assert opt.pub_at in opt.syncs and opt.bk in opt.syncs and 19 in opt.syncs and opt.pub_at < opt.bk
issued = 0
avail = -1
def trq(f, i, t):
    if opt.dmode == "m" and t and i > 2: return
    rho, e = divmod(i, 4)
    base, off = (vTq1, P_R[rho] - P_R[0]) if rho < 3 else (vTq0, P_R[rho])
    for q in range(2):
        a.lds(f"ds_read_b64_tr_b16 {vr(f+2*q,2)}, v{base} offset:{off + e*5120 + 8*t + q*2560}", ("fr", i, t))
for j, (i, t) in enumerate(qs):
    while issued < len(qs) and issued < j + opt.ahead:
        if qs[issued][0] > avail:
            if qs[issued][0] >= opt.drain and issued > j: break
            nxt_s = min(x for x in opt.syncs if x > avail)
            if avail < 0: a.wait_lg(("x", 19))
            if nxt_s == opt.pub_at: publish()
            for p in opt.kv_a.get(nxt_s, ()): first_kv(p)
            a.e("s_barrier")
            avail = nxt_s
            stamp(f"S{avail}")
        trq(vFr + 4 * (issued % NR1), *qs[issued]); issued += 1
    a.wait_lg(("fr", i, t))
    c = "0" if i == 0 else vr(vAcc + 4 * t, 4)
    if opt.dmode == "r" and t and 0 < i < 19: continue
    a.e(f"v_mfma_f32_16x16x32_bf16 {vr(vAcc+4*t,4)}, {vr(vFr+4*(j%NR1),4)}, {vr(vXf+4*i,4)}, {c}")
stamp("qgemm")
vPk = vXf
a.e("s_nop 3")
for i in range(4): a.e(f"v_cvt_pk_bf16_f32 v{vPk+i}, v{vAcc+2*i}, v{vAcc+2*i+1}")
a.e(f"ds_write_b128 v{vM2w}, {vr(vPk,4)}")
for i in range(4, 8): a.e(f"v_cvt_pk_bf16_f32 v{vPk+i}, v{vAcc+2*i}, v{vAcc+2*i+1}")
a.e(f"ds_write_b128 v{vM2w}, {vr(vPk+4,4)} offset:1024")
for i in range(8, 10): a.e(f"v_cvt_pk_bf16_f32 v{vPk+i}, v{vAcc+2*i}, v{vAcc+2*i+1}")
a.e(f"ds_write_b64 v{vM2h}, {vr(vPk+8,2)} offset:2048")
for p in opt.kv_a.get(20, ()): first_kv(p)
a.e("s_waitcnt lgkmcnt(0)\ns_barrier")
for p in opt.kv_a.get(21, ()): first_kv(p)
assert a.vm == vm_join, (a.vm, vm_join)
for kv in (opt.kv_at, opt.kv_a): assert min(kv) > opt.bk and all(k in opt.syncs or k >= 20 for k in kv)
a.label("L_bq")
a.lg = []
stamp("E2")
a.lds(f"ds_read_b64 {vr(vQH[0],2)}, v{vQa+4} offset:2048", ("q", 0))
a.lds(f"ds_read_b128 {vr(vQ[0],4)}, v{vQa}", ("q", 0))
a.lds(f"ds_read_b128 {vr(vQ[1],4)}, v{vQa+1}", ("q", 0))
a.lds(f"ds_read_b64 {vr(vQH[1],2)}, v{vQa+5} offset:2048", ("q", 1))
a.lds(f"ds_read_b128 {vr(vQ[2],4)}, v{vQa+2}", ("q", 1))
a.lds(f"ds_read_b128 {vr(vQ[3],4)}, v{vQa+3}", ("q", 1))
a.e(f"s_not_b32 s{sT0}, s{sTAG}\nv_mov_b32 v{vFlag}, s{sT0}\ns_mov_b64 exec, 0xffff")
a.lds(f"ds_read_b32 v{vFlag}, v{vXp1}", ("q", 1))
a.e("s_mov_b64 exec, -1")
seq = [(t, p) for t in range(13) for p in range(2)] + [(t, p) for p in range(2) for t in (13, 14, 15)]
NS = 32
def s2b(n): t, p = seq[n]; S = vS[n % 2]; return f"v_mfma_f32_32x32x4_2b_bf16 {vr(S,32)}, {vr(kslot(t)+4,2)}, {vr(vQH[p],2)}, 0"
def s16(n, x): t, p = seq[n]; S = vS[n % 2] + 16 * x; return f"v_mfma_f32_32x32x16_bf16 {vr(S,16)}, {vr(kslot(t),4)}, {vr(vQ[2*p+x],4)}, {vr(S,16)}"
def pv(n, g):
    t, p = seq[n]; O = vO + 16 * (2 * p + g // 2)
    c = "0" if (t == 0 and g % 2 == 0) else vr(O, 16)
    return f"v_mfma_f32_32x32x16_bf16 {vr(O,16)}, {vr(vslot(t)+4*(g%2),4)}, {vr(vP+4*g,4)}, {c}"
a.wait_vm(("k", 0))
a.wait_lg(("q", 0))
stamp("kv0")
a.e(s2b(0))
a.e(f"v_mov_b32 v{vR1}, -1\nv_mov_b32 v{vR1+1}, -1\nv_mov_b32 v{vR1+2}, -1\nv_mov_b32 v{vR1+3}, -1\ns_xor_b32 s{sT0}, s{sTAG}, s{sXCC}\nv_mov_b32 v{vR1+4}, s{sT0}")
for x in v_loads(1): a.vload(*x)
kv_advance(1)
a.e("s_nop 7"); a.e(s16(0, 0)); a.e(s16(0, 1)); a.wait_lg0(); a.e("s_nop 9")
vOF = [vO + 4 * i for i in range(4)] + [248] + [vO + 16 + 4 * i for i in range(4)] + [252]
vAcc2 = 18
vRdy = vR1 + 22
def normalize(S, T, fail):
    a.e(f"v_subrev_u32 v{T}, 0x21800000, v{S+10}\nv_cmp_lt_u32 vcc, 0x3c000000, v{T}")
    a.e(f"s_branch {fail}" if opt.force_fallback else f"s_cbranch_vccnz {fail}")
ostubs = []
def ostore(T, pol):
    a.e(f"buffer_store_dwordx4 {vr(T,4)}, v{vL16}, {sr(sWS,4)}, s{sO0} offen{pol}")
    a.e(f"buffer_store_dword v{T+4}, v{vL8}, {sr(sWS,4)}, s{sO1} offen{pol}")
def scale(S, T):
    a.e(f"v_rcp_f32 v{S+10}, v{S+10}\ns_or_b32 s{sT0}, s{sMSK}, s{sMSK+1}")
    if opt.pk:
        for i in range(0, 10, 2): a.e(f"v_pk_mul_f32 {vr(S+i,2)}, {vr(S+i,2)}, {vr(S+10,2)} op_sel_hi:[1,0]")
    else:
        for i in range(10): a.e(f"v_mul_f32 v{S+i}, v{S+i}, v{S+10}")
    for i in range(5): a.e(f"v_cvt_pk_bf16_f32 v{T+i}, v{S+2*i}, v{S+2*i+1}")
def finish(S, T, tag):
    scale(S, T)
    a.label(f"L_ost{tag}")
    if opt.fast:
        a.e(f"s_cbranch_scc1 L_osc{tag}")
        ostore(T, opt.opol[tag])
        ostubs.append((T, tag))
    else: ostore(T, " sc1")
    a.label(f"L_osd{tag}")
def opoll(j):
    pp, jj = divmod(j, 2)
    a.e(f"buffer_load_dwordx4 {vr(vOF[5*pp+2*jj],4)}, v{vL16}, {sr(sWS,4)}, s{sOJ+j} offen sc1")
    a.e(f"buffer_load_dwordx4 {vr(vOF[5*pp+2*jj+1],4)}, v{vL16}, {sr(sWS,4)}, s{sOJ+j} offen offset:1024 sc1")
    a.e(f"buffer_load_dwordx2 {vr(vOF[5*pp+4]+2*jj,2)}, v{vL8}, {sr(sWS,4)}, s{sOJ+j} offen offset:2048 sc1")
RDY = f"s_mov_b64 exec, 15\nbuffer_load_dwordx2 {vr(vRdy,2)}, v{vT1}, {sr(sWS,4)}, s{sOB} offen offset:2552 sc1\ns_mov_b64 exec, -1"
RDYC = f"s_waitcnt vmcnt(0)\nv_max_u32 v{vT0}, v{vRdy}, v{vRdy+1}\nv_cmp_eq_u32 {sr(sC0,2)}, -1, v{vT0}\ns_nop 0"
def SETF(off): return f"s_mov_b64 exec, 1\nds_write_b8 v{vFa}, v{vFlag} offset:{off}\ns_mov_b64 exec, -1"
vPkd = vR1 + 12
ring = list(range(38, 118, 4)) + list(range(150, vR1 - 3, 4))
NRING2 = len(ring)
nblk = [0]
class only_par:
    def __init__(s_, par): s_.par = par
    def __enter__(s_):
        s_.k = nblk[0]; nblk[0] += 1
        a.e(f"s_cmp_eq_u32 s{sPAR}, {s_.par}\ns_cbranch_scc0 L_blk{s_.k}")
    def __exit__(s_, *x): a.label(f"L_blk{s_.k}")
def wr3(addr, off, src):
    for i in range(3): a.e(f"ds_write_b128 v{addr}, {vr(src+4*i,4)} offset:{off+1024*i}")
def rd3(addr, off, dst):
    for i in range(3): a.e(f"ds_read_b128 {vr(dst+4*i,4)}, v{addr} offset:{off+1024*i}")
def add11(dst, src):
    if opt.pk:
        for i in range(0, 10, 2): a.e(f"v_pk_add_f32 {vr(dst+i,2)}, {vr(dst+i,2)}, {vr(src+i,2)}")
        a.e(f"v_add_f32 v{dst+10}, v{dst+10}, v{src+10}")
    else:
        for i in range(11): a.e(f"v_add_f32 v{dst+i}, v{dst+i}, v{src+i}")
vRc = [vO, vO + 12, vR1]
def lreads():
    a.e(f"ds_read_b32 v{vRdy}, v{vT0}")
    rd3(vA1, 0, vRc[0]); rd3(vA1, 9216, vRc[1]); rd3(vA0, 3072, vRc[2])
ksched = {2 * t - 4: t for t in range(2, 15)}; vsched = {2 * t - 3: t for t in range(2, 15)}
for n in range(NS):
    t, p = seq[n]
    a.c(f"half-step {n}: tile {t} pair {p}")
    if n in opt.prio: a.e(f"s_setprio {opt.prio[n]}")
    if n in (4, 8, 16, 24, 29, 30, 31): stamp(f"step{n}")
    S = vS[n % 2]
    ex = [f"v_exp_f32 v{S+i}, v{S+i}" for i in range(32)]
    cv = [f"v_cvt_pk_bf16_f32 v{vP+i}, v{S+2*i}, v{S+2*i+1}" for i in range(16)]
    E = lambda lo, hi: [a.e(x) for x in ex[lo:hi]]
    C = lambda lo, hi: [a.e(x) for x in cv[lo:hi]]
    L = k_loads(ksched[n]) if n in ksched else v_loads(vsched[n]) if n in vsched else v_loads(15) if n == 26 else []
    def LD(i):
        if i < len(L): a.vload(*L[i])
    nxt = n + 1 < NS
    E(0, 2)
    if n > 0: a.e(pv(n - 1, 3))
    E(2, 6)
    if nxt:
        a.wait_vm_if(("k", seq[n + 1][0]))
        a.e(s2b(n + 1))
    if n == 30:
        a.wait_vm0()
        a.e("s_waitcnt lgkmcnt(0)\ns_barrier")
        a.e(f"s_setprio {opt.prl}")
        with only_par(0):
            a.e(f"s_setprio {opt.pre}")
            rd3(vA0, 0, vR1); rd3(vA0, 3072, vR1 + 12)
    E(6, 8)
    if n in (0, 4, 8):
        a.wait_vm_if(("flag",))
        flag_cmp()
    C(0, 4)
    if n in ksched and ksched[n] % 2 == 0: chunk_check(ksched[n] // 2)
    LD(0); E(8, 12); LD(1)
    if n in vsched: kv_advance(vsched[n])
    if n in (1, 5): flag_refresh()
    E(12, 13)
    a.wait_vm_if(("v", t))
    a.e(pv(n, 0))
    E(13, 16)
    if n == 2:
        a.e(f"buffer_store_dwordx4 {vr(vR1,4)}, v{vL16}, {sr(sWS,4)}, s{sO0} offen sc1")
        a.e(f"buffer_store_dword v{vR1}, v{vL8}, {sr(sWS,4)}, s{sO1} offen sc1")
    if n == 3:
        a.e(f"v_mov_b32 v{vR1+8}, 0\nv_mov_b32 v{vR1+9}, 0\nv_mov_b32 v{vR1+10}, 0\nv_mov_b32 v{vR1+11}, 0\nv_mov_b32 v{vT0}, {L_FL}")
        a.e(f"s_mov_b64 exec, 1\nds_write_b128 v{vT0}, {vr(vR1+8,4)}\ns_mov_b64 exec, -1")
        for j in range(4):
            a.e(f"s_xor_b32 s{sT0}, s{sHG}, {j ^ 3}\ns_and_b32 s{sT0}, s{sT0}, 3\ns_mul_i32 s{sT0}, s{sT0}, 2560\ns_add_u32 s{sOJ+j}, s{sT0}, s{sOB}")
    if n == 27:
        a.e(f"s_and_b32 s{sT0}, s{sW}, 2\ns_add_u32 s{sT0}, s{sT0}, s{sPAR}\ns_lshl_b32 s{sT0}, s{sT0}, 1\ns_add_u32 s{sT0}, s{sT0}, s{sKH}\ns_add_u32 s{sT0}, s{sT0}, {L_FL}\nv_mov_b32 v{vFa}, s{sT0}\nv_mov_b32 v{vFlag}, 1")
    if n == 8:
        a.e(f"s_mov_b64 exec, 1\nbuffer_store_dword v{vR1+4}, v{vL16}, {sr(sWS,4)}, s{sF2} offen sc1\ns_mov_b64 exec, -1")
    if n == 23:
        a.e(f"v_and_b32 v{vT0}, 15, v{vLane}\nv_lshlrev_b32 v{vT0}, 7, v{vT0}\ns_and_b32 s{sF2}, s{sF2}, 0xfffff800")
        a.vload(f"buffer_load_dword v{vT1}, v{vT0}, {sr(sWS,4)}, s{sF2} offen sc1", ("f2",))
    if n == 25:
        for x in k_loads(15): a.vload(*x)
    if n == 28:
        assert ("f2",) not in a.vm
        a.label("L_f2")
        a.e(f"""v_xor_b32 v{vT1}, s{sTAG}, v{vT1}
v_cmp_lt_u32 vcc, 7, v{vT1}
s_cbranch_vccnz L_slowf2
v_cmp_ne_u32 {sr(sMSK,2)}, s{sXCC}, v{vT1}
v_and_b32 v{vT0}, -4, v{vFa}""")
    if n == 29: wr3(vE0, 0, vO)
    if n == 31:
        for j in range(8): trd(ring[j], *js[j], ("fr",) + js[j])
    if n == 30:
        with only_par(0):
            a.e("s_waitcnt lgkmcnt(3)"); add11(vO + 16, vR1)
            rd3(vA0, 6144, vR1)
            a.e("s_waitcnt lgkmcnt(3)"); add11(vO + 16, vR1 + 12)
    C(4, 8); E(16, 18)
    a.e(pv(n, 1))
    E(18, 22)
    if nxt: a.e(s16(n + 1, 0))
    E(22, 24)
    s = n - opt.wo0
    if 0 <= s < 20:
        khs, i = divmod(s, 10); pp, u = divmod(i, 5)
        if u < 4: so = f"s_add_u32 s{sT2}, s{sPJ + 2*pp + u//2}, {(320*khs + 40*(u%2))*1280}"
        else: so = f"s_min_u32 s{sT2}, s{sPJ+2*pp}, s{sPJ+2*pp+1}\ns_add_u32 s{sT2}, s{sT2}, {320*khs*1280}"
        a.e(f"s_add_u32 m0, s{sM0B}, {L_W + khs*51200 + i*5120}\n{so}\ns_mov_b32 exec_hi, 0xff")
        a.vload(f"buffer_load_dwordx4 v{vWoA if u < 4 else vWoB}, {sr(sWO,4)}, s{sT2} offen lds", ("wo", s))
        a.e("s_mov_b32 exec_hi, -1")
    if n == 29:
        with only_par(1): wr3(vA0, 3072, vO + 16)
    if n == 30:
        with only_par(0):
            a.e("s_waitcnt lgkmcnt(0)"); add11(vO + 16, vR1)
            normalize(vO + 16, vR1 + 12, "L_defer")
            finish(vO + 16, vR1 + 12, "e")
            a.label("L_deferred")
    C(8, 12); E(24, 26)
    a.e(pv(n, 2))
    if n == 31:
        wr3(vL0, 0, vO + 32)
        with only_par(1): a.e(SETF(0))
    E(26, 30)
    if n == 31:
        with only_par(1): lreads()
    if nxt: a.e(s16(n + 1, 1))
    E(30, 32); C(12, 16)
a.e("s_nop 1")
a.e(pv(NS - 1, 3))
stamp("loop end")
vSum = vO + 48
def ocheck(j, r):
    pp, jj = divmod(j, 2)
    b0, b1, l = vOF[5*pp+2*jj], vOF[5*pp+2*jj+1], vOF[5*pp+4] + 2*jj
    a.label(f"L_ochk{j}{r}")
    a.e(f"v_max_u32 v{vT0}, v{l}, v{l+1}")
    if opt.chk1: a.e(f"v_max3_u32 v{vT0}, v{vT0}, v{b0+3}, v{b1+3}")
    else:
        for b in (b0, b0 + 2, b1, b1 + 2): a.e(f"v_max3_u32 v{vT0}, v{vT0}, v{b}, v{b+1}")
    a.e(f"v_cmp_eq_u32 vcc, -1, v{vT0}\ns_cbranch_vccnz L_oslow{j}{r}")
def gemm_out(r, issued, npre):
    for j, (i, t) in enumerate(js):
        while issued < len(js) and issued < j + npre:
            trd(ring[issued % NRING2], *js[issued], ("fr",) + js[issued]); issued += 1
        if t == 0 and i % 5 in (0, 2):
            pj = 2 * (i // 5) + (i % 5) // 2
            a.e(f"s_waitcnt vmcnt({9 - 3*pj})")
            ocheck(pj, r)
            if r == "l": stamp(f"chk{pj}")
        a.wait_lg(("fr", i, t))
        c = "0" if i == 0 else vr(vAcc2 + 4 * t, 4)
        a.e(f"v_mfma_f32_16x16x32_bf16 {vr(vAcc2+4*t,4)}, {vr(ring[j%NRING2],4)}, {vr(vOF[i],4)}, {c}")
a.e(f"s_cmp_eq_u32 s{sPAR}, 0\ns_cbranch_scc1 L_early")
a.label("L_lrd")
a.e(f"s_waitcnt lgkmcnt(9)\nv_cmp_ne_u32 vcc, 0x01010101, v{vRdy}\ns_cbranch_vccnz L_lslow")
stamp("L rd")
a.e("s_waitcnt lgkmcnt(3)")
add11(vRc[0], vRc[1])
a.e("s_waitcnt lgkmcnt(0)")
add11(vRc[0], vRc[2])
add11(vSum, vRc[0])
normalize(vSum, vRc[0], "L_fallback")
finish(vSum, vPkd, "l")
stamp("O stored")
a.lg = []
for j in range(8, opt.poll_at): trd(ring[j], *js[j], ("fr",) + js[j])
for j in range(4): opoll(j)
stamp("O issued")
gemm_out("l", opt.poll_at, min(opt.npre, NRING2 - 1))
a.label("L_reduce")
stamp("ogemm")
vG = 38
a.e(f"""v_and_b32 v{vT0}, 15, v{vLane}
v_mul_u32_u24 v{vT0}, 1280, v{vT0}
v_lshrrev_b32 v{vT1}, 4, v{vLane}
v_mul_u32_u24 v{vT1}, 40, v{vT1}
v_add_u32 v{vT0}, v{vT0}, v{vT1}
s_mul_i32 s{sT1}, s{sT}, 20480
s_add_u32 s{sT1}, s{sT1}, s{sHGO}
s_mul_i32 s{sT2}, s{sPAR}, 3072
v_subrev_u32 v{vA0}, s{sT2}, v{vA0}
v_subrev_u32 v{vA1}, s{sT2}, v{vA1}
v_xor_b32 v{vT1}, 1, v{vFa}""")
a.e(f"s_cmp_eq_u32 s{sKH}, 0\ns_cbranch_scc0 L_o1")
for t in (3, 4): a.e(f"ds_write_b128 v{vA0}, {vr(vAcc2+4*t,4)} offset:{6144+1024*(t-3)}")
a.e(SETF(8))
a.label("L_prd0")
a.e(f"ds_read_u8 v{vRdy}, v{vT1} offset:8")
for t in range(3): a.e(f"ds_read_b128 {vr(vG+4*t,4)}, v{vA1} offset:{6144+1024*t}")
a.e(f"s_add_u32 s{sSPIN}, s{sSPIN}, 1\ns_cmp_lt_u32 s{sSPIN}, 1000000\ns_cbranch_scc0 L_end\ns_waitcnt lgkmcnt(0)\nv_cmp_ne_u32 vcc, 1, v{vRdy}\ns_cbranch_vccnz L_prd0")
for i in range(12): a.e(f"v_add_f32 v{vAcc2+i}, v{vAcc2+i}, v{vG+i}")
for i in range(6): a.e(f"v_cvt_pk_bf16_f32 v{vG+16+i}, v{vAcc2+2*i}, v{vAcc2+2*i+1}")
a.e(f"buffer_store_dwordx4 {vr(vG+16,4)}, v{vT0}, {sr(sOUT,4)}, s{sT1} offen{opt.outpol}")
a.e(f"buffer_store_dwordx2 {vr(vG+20,2)}, v{vT0}, {sr(sOUT,4)}, s{sT1} offen offset:16{opt.outpol}")
a.e("s_branch L_fin")
a.label("L_o1")
for t in range(3): a.e(f"ds_write_b128 v{vA0}, {vr(vAcc2+4*t,4)} offset:{6144+1024*t}")
a.e(SETF(8))
a.label("L_prd1")
a.e(f"ds_read_u8 v{vRdy}, v{vT1} offset:8")
for t in range(2): a.e(f"ds_read_b128 {vr(vG+4*t,4)}, v{vA1} offset:{6144+1024*t}")
a.e(f"s_add_u32 s{sSPIN}, s{sSPIN}, 1\ns_cmp_lt_u32 s{sSPIN}, 1000000\ns_cbranch_scc0 L_end\ns_waitcnt lgkmcnt(0)\nv_cmp_ne_u32 vcc, 1, v{vRdy}\ns_cbranch_vccnz L_prd1")
for i in range(8): a.e(f"v_add_f32 v{vAcc2+12+i}, v{vAcc2+12+i}, v{vG+i}")
for i in range(4): a.e(f"v_cvt_pk_bf16_f32 v{vG+16+i}, v{vAcc2+12+2*i}, v{vAcc2+12+2*i+1}")
a.e(f"buffer_store_dwordx4 {vr(vG+16,4)}, v{vT0}, {sr(sOUT,4)}, s{sT1} offen offset:24{opt.outpol}")
a.label("L_fin")
stamp("out st")
a.e(f"s_or_b32 s{sT0}, s2, s{sW}\ns_cmp_eq_u32 s{sT0}, 0\ns_cbranch_scc0 L_noep")
a.e(f"s_mov_b64 exec, 1\nv_mov_b32 v{vT1}, s{sTAG}\nv_mov_b32 v{vT0}, {A_EP}\nbuffer_store_dword v{vT1}, v{vT0}, {sr(sWS,4)}, 0 offen sc1\ns_mov_b64 exec, -1")
a.label("L_noep")
if opt.debug:
    a.e("s_waitcnt vmcnt(0)")
    stamp("end")
    for nm, r in LIGHT.items():
        i = nstamp[0]; nstamp[0] += 1; STAMPS.append(nm)
        a.e(f"v_writelane_b32 v17, s98, {i}\nv_writelane_b32 v17, s{r}, {32+i}")
    a.e(f"s_lshl_b32 s{sT0}, s2, 3\ns_add_u32 s{sT0}, s{sT0}, s{sW}\ns_lshl_b32 s{sT0}, s{sT0}, 8\ns_add_u32 s{sT0}, s{sT0}, {A_DBG}")
    a.e(f"v_writelane_b32 v17, s{sSPIN}, 31\nv_lshlrev_b32 v{vT0}, 2, v{vLane}")
    a.e(f"buffer_store_dword v17, v{vT0}, {sr(sWS,4)}, s{sT0} offen")
    if opt.dbgout:
        assert nstamp[0] <= 15
        srd(sX, 16, 256)
        a.e(f"v_subrev_u32 v{vT1}, s94, v17\nv_cmp_eq_u32 vcc, 0, v17\nv_cndmask_b32 v{vT1}, v{vT1}, v17, vcc\ns_not_b32 s{sT0}, s94\ns_and_b32 s{sT0}, s{sT0}, 0xffffff\ns_and_b32 s98, s98, 0xffffff\nv_writelane_b32 v{vT1}, s{sT0}, 0\nv_writelane_b32 v{vT1}, s98, 15")
        a.e(f"s_mov_b64 exec, 0xffff\nbuffer_atomic_umax v{vT1}, v{vT0}, {sr(sX,4)}, 0 offen")
if opt.pad:
    if opt.pad == "end": a.e("s_waitcnt vmcnt(0)\ns_memrealtime s[92:93]")
    a.label("L_pad")
    a.e("s_memrealtime s[90:91]\ns_waitcnt lgkmcnt(0)\ns_sub_u32 s90, s90, s92\ns_cmp_lt_u32 s90, 6000\ns_cbranch_scc1 L_pad")
a.label("L_end")
a.e("s_endpgm")
a.label("L_early")
a.e("s_nop 9")
wr3(vA0, 3072, vO + 48)
a.e(SETF(0))
a.e(f"s_setprio 0\ns_waitcnt lgkmcnt(0)\ns_cmp_eq_u32 s{sDEF}, 0\ns_cbranch_scc0 L_dfb")
a.lg = []
for j in range(4): opoll(j)
a.label("L_egemm")
gemm_out("e", 8, opt.npre_e)
a.e("s_branch L_reduce")
a.label("L_dfb")
for i in range(4): a.e(f"v_mov_b32 v{vQ[3]+i}, v{vQ[1]+i}")
for i in range(2): a.e(f"v_mov_b32 v{vQH[1]+i}, v{vQH[0]+i}")
a.e("s_branch L_fallback")
for c in slow_stubs:
    a.label(f"L_slow{c}")
    a.e(f"s_add_u32 s{sSPIN}, s{sSPIN}, 1\ns_cmp_lt_u32 s{sSPIN}, 1000000\ns_cbranch_scc0 L_end")
    a.e(f"s_mov_b64 exec, {sr(sMSK,2)}\n{FLOAD}\ns_mov_b64 exec, -1\ns_waitcnt vmcnt(0)")
    flag_cmp()
    a.e(f"s_nop 0\ns_and_b32 s{sT0}, s{sMSK + c//4}, 0x{0xff << (8*(c%4)):x}\ns_cbranch_scc1 L_slow{c}\ns_branch L_back{c}")
for r in "el":
    for j in range(4):
        a.label(f"L_oslow{j}{r}")
        a.e(f"s_add_u32 s{sSPIN}, s{sSPIN}, 1\ns_cmp_lt_u32 s{sSPIN}, 1000000\ns_cbranch_scc0 L_end")
        opoll(j)
        a.e(f"s_waitcnt vmcnt(0)\ns_branch L_ochk{j}{r}")
a.label("L_lslow")
a.e(f"s_add_u32 s{sSPIN}, s{sSPIN}, 1\ns_cmp_lt_u32 s{sSPIN}, 1000000\ns_cbranch_scc0 L_end")
a.e(f"ds_read_b32 v{vRdy}, v{vT0}\ns_waitcnt lgkmcnt(0)\nv_cmp_ne_u32 vcc, 0x01010101, v{vRdy}\ns_cbranch_vccnz L_lslow")
lreads()
a.e("s_branch L_lrd")
for T, tag in ostubs:
    a.label(f"L_osc{tag}")
    ostore(T, " sc1")
    a.e(f"s_branch L_osd{tag}")
a.label("L_defer")
a.e(f"s_mov_b32 s{sDEF}, 1\ns_branch L_deferred")
a.label("L_slowf0")
a.e(f"s_add_u32 s{sSPIN}, s{sSPIN}, 1\ns_cmp_lt_u32 s{sSPIN}, 1000000\ns_cbranch_scc0 L_end")
a.e(f"{F0}\ns_waitcnt vmcnt(0)\ns_branch L_f0")
a.label("L_slowf2")
a.e(f"s_add_u32 s{sSPIN}, s{sSPIN}, 1\ns_cmp_lt_u32 s{sSPIN}, 1000000\ns_cbranch_scc0 L_end")
a.e(f"buffer_load_dword v{vT1}, v{vT0}, {sr(sWS,4)}, s{sF2} offen sc1\ns_waitcnt vmcnt(0)\ns_branch L_f2")
a.label("L_fallback")
fS = 70; fM = vR1 + 20; fK = vKr; fV = vVr
def f_scores():
    a.e(f"buffer_load_dwordx4 {vr(fK,4)}, v{vL16}, {sr(sWS,4)}, s{sT0} offen sc1")
    a.e(f"buffer_load_dwordx2 {vr(fK+4,2)}, v{vK1a}, {sr(sWS,4)}, s{sT0} offen offset:1024 sc1")
    a.e(f"buffer_load_dwordx4 {vr(fV,4)}, v{vVa}, {sr(sWS,4)}, s{sT0} offen offset:1536 sc1")
    a.e(f"buffer_load_dwordx4 {vr(fV+4,4)}, v{vVa}, {sr(sWS,4)}, s{sT0} offen offset:2304 sc1")
    a.e("s_waitcnt vmcnt(0)\ns_mov_b32 exec_lo, 0x00440000\ns_mov_b32 exec_hi, 0x00440000")
    for i in range(8): a.e(f"v_mov_b32 v{fV+i}, 0x3f803f80")
    a.e("s_mov_b64 exec, -1")
    a.e(f"v_mfma_f32_32x32x4_2b_bf16 {vr(fS,32)}, {vr(fK+4,2)}, {vr(vQH[1],2)}, 0\ns_nop 15\ns_nop 1")
    a.e(f"v_mfma_f32_32x32x16_bf16 {vr(fS+16,16)}, {vr(fK,4)}, {vr(vQ[3],4)}, {vr(fS+16,16)}\ns_nop 11")
a.e(f"v_mov_b32 v{fM}, 0xff800000\ns_mov_b32 s{sT0}, 0")
a.label("L_fb1")
f_scores()
for i in range(0, 16, 2): a.e(f"v_max3_f32 v{fM}, v{fM}, v{fS+16+i}, v{fS+17+i}")
a.e(f"s_add_u32 s{sT0}, s{sT0}, 4096\ns_cmp_lt_u32 s{sT0}, 262144\ns_cbranch_scc1 L_fb1")
a.e(f"v_mov_b32 v{fM+1}, v{fM}\ns_nop 1\nv_permlane32_swap_b32 v{fM}, v{fM+1}\ns_nop 1\nv_max_f32 v{fM}, v{fM}, v{fM+1}")
for i in range(16): a.e(f"v_mov_b32 v{vSum+i}, 0")
a.e(f"s_mov_b32 s{sT0}, 0")
a.label("L_fb2")
f_scores()
for i in range(16): a.e(f"v_sub_f32 v{fS+16+i}, v{fS+16+i}, v{fM}")
for i in range(16): a.e(f"v_exp_f32 v{fS+16+i}, v{fS+16+i}")
a.e("s_nop 0")
for i in range(8): a.e(f"v_cvt_pk_bf16_f32 v{vP+i}, v{fS+16+2*i}, v{fS+17+2*i}")
a.e("s_nop 1")
for g in range(2):
    a.e(f"v_mfma_f32_32x32x16_bf16 {vr(vSum,16)}, {vr(fV+4*g,4)}, {vr(vP+4*g,4)}, {vr(vSum,16)}")
a.e(f"s_add_u32 s{sT0}, s{sT0}, 4096\ns_cmp_lt_u32 s{sT0}, 262144\ns_cbranch_scc1 L_fb2")
a.e("s_nop 15")
scale(vSum, vPkd)
for i in range(5): a.e(f"v_min_u32 v{vPkd+i}, -2, v{vPkd+i}")
a.label("L_last")
a.e("s_branch L_ostl")
a.raw(open("footer.txt").read())
txt = a.text()
for p in check(txt): print("HAZARD", p, file=sys.stderr)
open(sys.argv[1], "w").write(txt)
if opt.debug: open(sys.argv[1] + ".stamps", "w").write("\n".join(STAMPS))
```

```python
import sys, math, struct
from asmlib import *

class Opt:
    debug = False
    prio = {0: 3, 16: 2, 24: 1, 28: 0}
    force_fallback = False
    fast = True
    touch = 'ouw'
    wo0 = 1
    only = None
    dbgout = False
    pad = None
    syncs = (1, 3, 5, 7, 9, 11, 13, 15, 17, 19)
    lead = 4
    fl_at = 15
    bk = 15
    pub_at = 1
    drain = 20
    ahead = 7
    hrot = 2
    w64 = True
    dskip = 5
    kv_at = {17: (0,), 19: (1,), 20: (2,)}
    kv_a = {21: (0, 1, 2)}
    skv = 2
    head = "kKp12w3ssss"
    upers = 2
    bprio = 2
    dmode = ""
    align = 8
    dry = False
    xfirst = True
    poll_at = 36
    npre_e = 10
    prl = 1
    pre = 3
    outpol = ""
    opol = {"e": "", "l": ""}
    epar = 0
    cpf = True
    pk = False
    chk1 = True
    npre = 40
opt = Opt()
for x in sys.argv[2:]:
    k, v = x.split("=", 1)
    setattr(opt, k, eval(v))

A_KV = 0
A_F1 = 262144
A_EP = A_F1 + 65536
A_F2 = 524288
A_O = 1 << 20
A_DBG = 4 << 20
WS_BYTES = 8 << 20
OOB = 0x40000000
L_W = 0
P_R = [81920, 102400, 122880, 0, 20480]
P_KVW = 122880
L_S = 102400
L_Q2 = 143360
L_FLG = 153600
L_F01 = 153632
L_FL = 153616
LDS_BYTES = 163840
sX, sWQ, sWKV, sWO, sOUT, sWS = 20, 24, 28, 32, 36, 40
sW, sTT, sKH, sHG, sTB, sT, sTK, sTAG, sXCD, sR = 44, 45, 46, 47, 48, 49, 50, 51, 52, 53
sT0, sT1, sT2, sT3 = 54, 55, 56, 57
sKV = 58
sXCC = 59
sO0, sO1 = 60, 61
sHGO = 62
sM0B = 63
sSPIN = 64
sOB = 65
sWQB = 66
sRG = 67
sMSK = 72
sC0 = 74
sF2 = 76
sJH, sJE, sCA, sCX = 77, 78, 79, 80
sJ, sU, sPAR, sISS, sDEF = 81, 82, 83, 84, 85
sPJ = 86
sOJ = 67
sCC = 3
vLane, vL16, vK1a, vVa, vFa, vWoA, vWoB, vTr, vA0, vA1, vE0, vL0, vFlag, vT0, vT1, vL8 = range(1, 17)
vQ = [18, 22, 26, 30]; vQH = [34, 36]
vS = [38, 70]
vP = 102
vO = 118
vKr = 182
vVr = 200
vR1 = 224
vXf = 38; vAcc = 118; vFr = 138
vW40, vXp = 224, 225
vXa = 226
vQa = 231
vCx, vCw = 237, 238
vCx2, vXp1 = 247, 248
vSt = 240
vT2, vT3 = 241, 242
vTq0, vTq1, vM2w, vM2h = 243, 244, 245, 246

a = Asm()
nstamp = [0]
STAMPS = []
def stamp(name):
    if opt.pad == name: a.e("s_memrealtime s[92:93]")
    if not opt.debug: return
    if opt.only is not None and name not in opt.only and not (name.startswith("A:") and "A" in opt.only): return
    i = nstamp[0]; nstamp[0] += 1
    a.c(f"stamp {i}: {name}")
    a.e("s_memrealtime s[98:99]\ns_memtime s[100:101]")
    a.wait_lg0()
    a.e(f"v_writelane_b32 v17, s98, {i}\nv_writelane_b32 v17, s100, {32+i}")
    STAMPS.append(name)
def stamp_at(i):
    if not opt.debug: return
    if opt.only is not None and "A" not in opt.only: return
    a.e("s_memrealtime s[98:99]\ns_memtime s[100:101]")
    a.wait_lg0()
    a.e(f"v_writelane_b32 v17, s98, {i}\nv_writelane_b32 v17, s100, {32+i}")
LIGHT = {}
def light(name):
    if not opt.debug or opt.only is None or name not in opt.only: return
    if name not in LIGHT: LIGHT[name] = [0, 4, 6, 8, 10, 16][len(LIGHT)]
    a.e(f"s_memtime {sr(LIGHT[name],2)}")
def srd(base, lo, nbytes):
    a.e(f"s_mov_b32 s{base}, s{lo}\ns_mov_b32 s{base+1}, s{lo+1}\ns_mov_b32 s{base+2}, {nbytes}\ns_mov_b32 s{base+3}, 0x00020000")
def trd(f, i, t, tag):
    off = i * 5120 + 8 * t
    base = vTr
    for q in range(2):
        a.lds(f"ds_read_b64_tr_b16 {vr(f+2*q,2)}, v{base} offset:{off+q*2560}", tag)
slow_stubs = []

a.raw(open("header.txt").read().replace("@LDS@", str(LDS_BYTES)).replace(".p2align 8", f".p2align {opt.align}"))
a.e("s_cmp_ge_u32 s2, 256\ns_cbranch_scc1 L_end")
a.e("s_load_dwordx16 s[4:19], s[0:1], 0")
if opt.pad == "start": a.e("s_memrealtime s[92:93]")
if opt.debug:
    a.e("v_mov_b32 v17, 0\ns_memrealtime s[94:95]\ns_memtime s[96:97]"); nstamp[0] = 2; STAMPS.append("start"); STAMPS.append("karg")
def xtile(j):
    if j: a.e(f"s_add_u32 s{sT3}, s{sTK}, {j}\ns_and_b32 s{sT3}, s{sT3}, 3\ns_mul_i32 s{sT1}, s{sT3}, 20480\ns_add_u32 s{sT0}, s{sT1}, s{sJH}\ns_add_u32 s{sT1}, s{sT1}, s{sJE}")
    for i in range(5):
        a.e(f"s_add_u32 m0, s{sT1}, {1920*i}\ns_nop 0")
        a.vload(f"buffer_load_dwordx4 v{vXp}, {sr(sX,4)}, s{sT0} offen offset:{128*i} lds", ("x",))
def skv(role):
    if role == "B" or opt.skv == 1: a.e(f"""s_bitcmp1_b32 s{sHG}, 0
s_cselect_b32 s{sWKV}, s10, s8
s_cselect_b32 s{sWKV+1}, s11, s9""")
    if opt.skv == 2 and role == "B":
        a.e(f"s_mov_b64 exec, 15\nbuffer_load_dword v{vT2}, v{vT3}, {sr(sWKV,4)}, s{sCC} offen\ns_mov_b64 exec, -1")
    if opt.skv == 1:
        a.e(f"s_add_u32 s{sMSK}, s{sWKV}, s{sCC}\ns_addc_u32 s{sMSK+1}, s{sWKV+1}, 0")
        for o in (0, 64, 128, 196): a.e(f"s_load_dword s{sISS}, {sr(sMSK,2)}, {o}")
    if "q" in opt.touch and role == "B": a.e(f"s_load_dword s{sISS}, s[6:7], s{sRG}")
    a.e(f"s_load_dword s{sTAG}, s[18:19], {A_EP}")
    if opt.debug: a.e("v_writelane_b32 v17, s94, 0\nv_writelane_b32 v17, s96, 32")
def tagwait():
    a.e(f"s_waitcnt lgkmcnt(0)\ns_mul_i32 s{sTAG}, s{sTAG}, 1664525\ns_add_u32 s{sTAG}, s{sTAG}, 1013904223")
    if opt.debug: a.e("v_writelane_b32 v17, s90, 1\nv_writelane_b32 v17, s92, 33")
def su0():
    srd(sWS, 18, WS_BYTES); srd(sWO, 12, 819200); srd(sOUT, 14, 2621440)
    a.e(f"""s_lshr_b32 s{sU}, s{sW}, 2
s_xor_b32 s{sPAR}, s{sU}, {opt.epar}
s_and_b32 s{sKH}, s{sW}, 1
s_and_b32 s{sTT}, s{sW}, 2
s_or_b32 s{sTT}, s{sTT}, s{sPAR}
s_mov_b32 s{sDEF}, 0
s_lshl_b32 s{sT}, s{sTB}, 2
s_add_u32 s{sT}, s{sT}, s{sTT}
s_mul_i32 s{sM0B}, s{sW}, 640
s_getreg_b32 s{sXCC}, hwreg(HW_REG_XCC_ID, 0, 3)
s_mov_b32 s{sSPIN}, 0""")
def su1():
    a.e(f"""s_mul_i32 s{sOB}, s{sT}, 20480
s_add_u32 s{sOB}, s{sOB}, {A_O}
s_lshl_b32 s{sT2}, s{sHGO}, 4
s_add_u32 s{sT2}, s{sT2}, s{sOB}
s_lshl_b32 s{sT3}, s{sKH}, 10
s_add_u32 s{sO0}, s{sT2}, s{sT3}
s_lshl_b32 s{sT3}, s{sKH}, 2
s_add_u32 s{sO1}, s{sT2}, s{sT3}
s_add_u32 s{sO1}, s{sO1}, 2048
s_mul_i32 s{sT3}, s{sKH}, 10240
s_add_u32 s{sOB}, s{sOB}, s{sT3}
s_lshl_b32 s{sF2}, s{sT}, 4
s_lshl_b32 s{sT0}, s{sHG}, 1
s_add_u32 s{sT0}, s{sT0}, s{sKH}
s_add_u32 s{sF2}, s{sF2}, s{sT0}
s_lshl_b32 s{sF2}, s{sF2}, 7
s_add_u32 s{sF2}, s{sF2}, {A_F2}
s_mul_i32 s{sT1}, s{sKH}, 51200
v_mul_u32_u24 v{vTq0}, 40, v{vLane}
v_add_u32 v{vTr}, s{sT1}, v{vTq0}""")
def su2():
    a.e(f"""v_mul_u32_u24 v{vT0}, 6554, v{vLane}
v_lshrrev_b32 v{vT0}, 16, v{vT0}
v_mul_u32_u24 v{vT1}, 10, v{vT0}
v_sub_u32 v{vT1}, v{vLane}, v{vT1}
v_lshlrev_b32 v{vT1}, 4, v{vT1}
v_mul_u32_u24 v{vWoA}, 1280, v{vT0}
v_add_u32 v{vWoA}, v{vWoA}, v{vT1}
v_lshrrev_b32 v{vWoB}, 1, v{vT0}
v_mul_u32_u24 v{vWoB}, 38, v{vWoB}
v_add_u32 v{vWoB}, v{vWoB}, v{vT0}
v_mul_u32_u24 v{vWoB}, 1280, v{vWoB}
v_add_u32 v{vWoB}, v{vWoB}, v{vT1}
s_and_b32 s{sT0}, s{sJ}, 1
s_mul_i32 s{sT0}, s{sT0}, 20
s_and_b32 s{sT1}, s{sJ}, 2
s_lshl_b32 s{sT2}, s{sT1}, 1
s_add_u32 s{sT2}, s{sT2}, s{sT0}
s_lshl_b32 s{sT3}, s{sU}, 3
s_add_u32 s{sT2}, s{sT2}, s{sT3}
s_mul_i32 s{sT2}, s{sT2}, 1280
v_add_u32 v{vWoA}, s{sT2}, v{vWoA}
s_add_u32 s{sT0}, s{sT0}, s{sT1}
s_xor_b32 s{sT3}, s{sU}, s{sHG}
s_andn2_b32 s{sT3}, 1, s{sT3}
s_mul_i32 s{sT3}, s{sT3}, 80
s_add_u32 s{sT0}, s{sT0}, s{sT3}
s_add_u32 s{sT0}, s{sT0}, 16
s_mul_i32 s{sT0}, s{sT0}, 1280
v_add_u32 v{vWoB}, s{sT0}, v{vWoB}""")
def su3():
    for j in range(4):
        a.e(f"s_xor_b32 s{sT0}, s{sHG}, {j ^ 3}\ns_and_b32 s{sT0}, s{sT0}, 3\ns_mul_i32 s{sT0}, s{sT0}, 102400\ns_add_u32 s{sPJ+j}, s{sT0}, s{sHGO}")
    a.e(f"""s_mul_i32 s{sT0}, s{sJ}, 12288
s_add_u32 s{sT0}, s{sT0}, {L_S}
v_add_u32 v{vA0}, s{sT0}, v{vL16}
s_xor_b32 s{sT0}, s{sJ}, 1
s_mul_i32 s{sT0}, s{sT0}, 12288
s_add_u32 s{sT0}, s{sT0}, {L_S}
v_add_u32 v{vA1}, s{sT0}, v{vL16}
s_mul_i32 s{sT0}, s{sPAR}, 6144
v_add_u32 v{vE0}, s{sT0}, v{vA1}
s_mul_i32 s{sT0}, s{sPAR}, 9216
v_add_u32 v{vL0}, s{sT0}, v{vA0}""")
def su4():
    a.e(f"""v_and_b32 v{vT0}, 31, v{vLane}
v_lshlrev_b32 v{vK1a}, 4, v{vT0}
v_lshrrev_b32 v{vT1}, 5, v{vLane}
v_mul_u32_u24 v{vT1}, 384, v{vT1}
v_add_u32 v{vVa}, v{vK1a}, v{vT1}
v_mov_b32 v{vT1}, {OOB}
s_mov_b32 vcc_lo, 0xff880000
s_mov_b32 vcc_hi, 0xff880000
v_cndmask_b32 v{vVa}, v{vVa}, v{vT1}, vcc
v_lshlrev_b32 v{vL8}, 3, v{vLane}
s_lshl_b32 s{sT0}, s{sPAR}, 1
s_add_u32 s{sT0}, s{sT0}, s{sKH}
s_lshl_b32 s{sKV}, s{sXCD}, 15
s_lshl_b32 s{sT1}, s{sT0}, 13
s_add_u32 s{sKV}, s{sKV}, s{sT1}
v_lshrrev_b32 v{vFa}, 3, v{vLane}
v_add_u32 v{vFa}, s{sXCD}, v{vFa}
v_and_b32 v{vFa}, 7, v{vFa}
v_lshlrev_b32 v{vFa}, 5, v{vFa}
v_and_b32 v{vT1}, 7, v{vLane}
v_add_u32 v{vFa}, v{vFa}, v{vT1}
v_lshlrev_b32 v{vFa}, 7, v{vFa}
s_lshl_b32 s{sT1}, s{sT0}, 10
s_add_u32 s{sT1}, s{sT1}, {A_F1}
v_add_u32 v{vFa}, s{sT1}, v{vFa}
s_lshl_b32 s{sT1}, s{sT0}, 6
s_add_u32 s{sT1}, s{sT1}, {L_F01}
v_lshl_add_u32 v{vXp1}, v{vLane}, 2, s{sT1}""")
def su5():
    a.e(f"""s_and_b32 s{sT0}, s{sTT}, 2
s_mul_i32 s{sT0}, s{sT0}, 2560
s_add_u32 s{sT0}, s{sT0}, {L_Q2}
s_add_u32 s{sT1}, s{sT0}, 2560
v_lshrrev_b32 v{vT0}, 5, v{vLane}
v_lshl_add_u32 v{vT0}, v{vT0}, 10, v{vK1a}
s_lshl_b32 s{sT2}, s{sKH}, 9
s_xor_b32 s{sT3}, s{sT2}, 512
v_add_u32 v{vT1}, s{sT3}, v{vT0}
v_add_u32 v{vQa}, s{sT0}, v{vT1}
v_add_u32 v{vQa+2}, s{sT1}, v{vT1}
v_add_u32 v{vT1}, s{sT2}, v{vT0}
v_add_u32 v{vQa+1}, s{sT0}, v{vT1}
v_add_u32 v{vQa+3}, s{sT1}, v{vT1}
s_lshr_b32 s{sT3}, s{sT3}, 1
v_xor_b32 v{vT1}, s{sT3}, v{vL8}
v_add_u32 v{vQa+4}, s{sT0}, v{vT1}
v_add_u32 v{vQa+5}, s{sT1}, v{vT1}""")
def touch():
    if "o" in opt.touch: a.e(f"s_load_dword s{sISS}, s[18:19], s{sO0}")
    if "u" in opt.touch: a.e(f"s_mul_i32 s{sT0}, s{sT}, 20480\ns_add_u32 s{sT0}, s{sT0}, s{sHGO}\ns_load_dword s{sISS}, s[14:15], s{sT0}")
    if "w" in opt.touch: a.e(f"s_load_dword s{sISS}, s[12:13], s{sHGO}")
def sub():
    a.e(f"v_and_b32 v{vSt}, 0xfffff3ff, v{vFa}\nv_or_b32 v{vSt}, s{sWQB}, v{vSt}")
    a.e(f"s_lshl_b32 s{sT0}, s{sJ}, 6\ns_add_u32 s{sT0}, s{sT0}, {L_F01}\nv_lshl_add_u32 v{vCx}, v{vLane}, 2, s{sT0}")
SU = [su0, su1, su2, su3, su4, su5]
def kslot(t): return vKr + 6 * (t % 3)
def vslot(t): return vVr + 8 * (t % 3)
def k_loads(t):
    b = kslot(t)
    return [(f"buffer_load_dwordx4 {vr(b,4)}, v{vL16}, {sr(sWS,4)}, s{sKV} offen sc1", ("k", t)),
            (f"buffer_load_dwordx2 {vr(b+4,2)}, v{vK1a}, {sr(sWS,4)}, s{sKV} offen offset:1024 sc1", ("k", t))]
def v_loads(t):
    b = vslot(t)
    return [(f"buffer_load_dwordx4 {vr(b,4)}, v{vVa}, {sr(sWS,4)}, s{sKV} offen offset:1536 sc1", ("v", t)),
            (f"buffer_load_dwordx4 {vr(b+4,4)}, v{vVa}, {sr(sWS,4)}, s{sKV} offen offset:2304 sc1", ("v", t))]
def kv_advance(t):
    if t % 2 == 0: a.e(f"s_add_u32 s{sKV}, s{sKV}, 4096")
    else: a.e(f"s_add_u32 s{sKV}, s{sKV}, {32768-4096}\ns_and_b32 s{sKV}, s{sKV}, 0x3ffff")
FLOAD = f"buffer_load_dword v{vFlag}, v{vFa}, {sr(sWS,4)}, 0 offen sc1"
def flag_cmp(): a.e(f"v_cmp_ne_u32 {sr(sMSK,2)}, s{sTAG}, v{vFlag}")
def chunk_check(c):
    a.e(f"s_and_b32 s{sT0}, s{sMSK + c//4}, 0x{0xff << (8*(c%4)):x}\ns_cbranch_scc1 L_slow{c}")
    a.label(f"L_back{c}")
    slow_stubs.append(c)
nref = [0]
def flag_refresh():
    k = nref[0]; nref[0] += 1
    a.e(f"s_or_b32 s{sT0}, s{sMSK}, s{sMSK+1}\ns_cbranch_scc0 L_ref{k}\ns_mov_b64 exec, {sr(sMSK,2)}\n{FLOAD}\ns_mov_b64 exec, -1")
    a.label(f"L_ref{k}")
def first_kv(part):
    if part == 0:
        for x in k_loads(0): a.vload(*x)
        return
    if part == 1:
        for x in v_loads(0): a.vload(*x)
        kv_advance(0)
        return
    for x in k_loads(1): a.vload(*x)
a.e(f"""v_lshrrev_b32 v{vT0}, 6, v0
v_and_b32 v{vLane}, 63, v0
s_and_b32 s{sXCD}, s2, 7
s_lshr_b32 s{sT0}, s2, 3
v_readfirstlane_b32 s{sW}, v{vT0}
s_and_b32 s{sHG}, s{sT0}, 7
s_lshr_b32 s{sR}, s{sT0}, 3
s_lshl_b32 s{sTB}, s{sXCD}, 2
s_add_u32 s{sTB}, s{sTB}, s{sR}
v_lshrrev_b32 v{vT0}, 4, v0
v_xor_b32 v{vT0}, v{vT0}, v0
v_and_b32 v{vT0}, 7, v{vT0}
v_bfe_u32 v{vXp}, v0, 3, 4
v_mul_u32_u24 v{vXp}, 1280, v{vXp}
v_lshl_add_u32 v{vXp}, v{vT0}, 4, v{vXp}
s_and_b32 s{sJ}, s{sW}, 3
s_lshr_b32 s{sTK}, s{sHG}, 1
s_lshr_b32 s{sT1}, s{sJ}, 1
s_mul_i32 s{sT1}, s{sT1}, 640
s_mul_i32 s{sJH}, s{sTB}, 81920
s_add_u32 s{sJH}, s{sJH}, s{sT1}
s_and_b32 s{sJE}, s{sJ}, 1
s_lshl_b32 s{sJE}, s{sJE}, 6
s_add_u32 s{sJE}, s{sJE}, s{sT1}
s_lshl_b32 s{sJE}, s{sJE}, 4
v_lshlrev_b32 v{vL16}, 4, v{vLane}
s_mov_b32 s{sX+2}, 2621440
s_mov_b32 s{sX+3}, 0x00020000
""" + (f"""s_lshr_b32 s{sCC}, s2, 4
s_lshl_b32 s{sCC}, s{sCC}, 3
s_add_u32 s{sCC}, s{sCC}, s{sW}
s_mul_i32 s{sCC}, s{sCC}, 200
""" if opt.skv == 1 else "") + f"""s_mul_i32 s{sCA}, s{sJ}, 6400
s_mul_i32 s{sHGO}, s{sHG}, 160
s_cmp_lt_u32 s{sW}, 4
s_cbranch_scc0 L_b1""")
a.e(f"""s_mul_i32 s{sCX}, s{sTK}, 20480
s_add_u32 s{sT0}, s{sCX}, s{sJH}
s_add_u32 s{sT1}, s{sCX}, s{sJE}
s_waitcnt lgkmcnt(0)
s_mov_b32 s{sX}, s4
s_mov_b32 s{sX+1}, s5""")
if opt.debug: a.e("s_memrealtime s[90:91]\ns_memtime s[92:93]")
xtile(0)
skv("A")
light("d0")
a.e("s_branch L_a2")
a.label("L_b1")
a.vm = []
if opt.cpf:
    a.e(f"s_getpc_b64 {sr(sC0,2)}")
    a.label("L_pc")
    a.e(f"""s_lshr_b32 s{sT0}, s2, 3
s_lshl_b32 s{sT0}, s{sT0}, 2
s_add_u32 s{sT0}, s{sT0}, s{sJ}
s_lshl_b32 s{sT0}, s{sT0}, 8
v_lshlrev_b32 v{vT0}, 7, v{vLane}
v_add_u32 v{vT0}, s{sT0}, v{vT0}
v_min_u32 v{vT0}, L_last-L_pc, v{vT0}
s_mov_b64 exec, 3
global_load_dword v{vT2}, v{vT0}, {sr(sC0,2)}
s_mov_b64 exec, -1""")
vWa = 38
def waddr():
    a.e(f"v_and_b32 v{vWa+5}, 255, v0\ns_movk_i32 s{sT0}, 1120\ns_movk_i32 s{sT1}, 1280\ns_movk_i32 s{sT2}, -960")
    for m in range(5):
        d = vWa + m
        if m: a.e(f"v_add_u32 v{vWa+5}, 256, v{vWa+5}")
        a.e(f"""v_mul_u32_u24 v{vT1}, 6554, v{vWa+5}
v_lshlrev_b32 v{d}, 4, v{vWa+5}
v_lshrrev_b32 v{vT1}, 16, v{vT1}
v_mad_u32_u24 v{d}, v{vT1}, s{sT0}, v{d}
v_and_b32 v{vT0}, 12, v{vT1}
v_mad_u32_u24 v{d}, v{vT0}, s{sT1}, v{d}
v_and_b32 v{vT0}, 16, v{vT1}
v_mad_i32_i24 v{d}, v{vT0}, s{sT2}, v{d}""")
def slab_b(sl):
    rho, e = divmod(sl, 4)
    if e == 0 and rho: a.e(f"s_add_u32 s{sRG}, s{sRG}, 163840\ns_sub_u32 s{sRG+1}, s{sRG}, 819200\ns_min_u32 s{sRG}, s{sRG}, s{sRG+1}")
    for m in ((0, 1) if e == 0 else (e + 1,)):
        a.e(f"s_add_u32 m0, s{sWQB}, {P_R[rho] + 4096*m}\ns_nop 0")
        a.vload(f"buffer_load_dwordx4 v{vWa+m}, {sr(sWQ,4)}, s{sRG} offen lds", ("w", sl))
def wkv_dma(half):
    if half == 0:
        a.e(f"s_add_u32 m0, s{sCA}, {P_KVW}\ns_nop 0")
        for i in range(4): a.vload(f"buffer_load_dwordx4 v{vL16}, {sr(sWKV,4)}, s{sCA} offen offset:{1024*i} lds", ("kv",))
        return
    a.e(f"s_add_u32 m0, s{sCA}, {P_KVW+4096}\ns_add_u32 s{sT0}, s{sCA}, 4096")
    for i in range(3):
        if i == 2: a.e("s_mov_b64 exec, 0xffff")
        a.vload(f"buffer_load_dwordx4 v{vL16}, {sr(sWKV,4)}, s{sT0} offen offset:{1024*i} lds", ("kv",))
    a.e("s_mov_b64 exec, -1")
a.e(f"""s_mov_b32 s{sWKV+2}, 25600
s_mov_b32 s{sWKV+3}, 0x00020000
s_mov_b32 s{sWQ+2}, 819200
s_mov_b32 s{sWQ+3}, 0x00020000
s_lshl_b32 s{sWQB}, s{sJ}, 10
s_mul_i32 s{sRG}, s{sR}, 163840
s_add_u32 s{sRG}, s{sRG}, s{sHGO}""")
if opt.skv == 2: a.e(f"v_lshlrev_b32 v{vT3}, 7, v{vLane}\ns_lshr_b32 s{sCC}, s2, 4\ns_lshl_b32 s{sCC}, s{sCC}, 2\ns_add_u32 s{sCC}, s{sCC}, s{sJ}\ns_lshl_b32 s{sCC}, s{sCC}, 9")
if "a" not in opt.head: waddr()
a.e("s_waitcnt lgkmcnt(0)")
if opt.debug: a.e("s_memrealtime s[90:91]\ns_memtime s[92:93]")
skv("B")
a.e(f"s_mov_b32 s{sX}, s4\ns_mov_b32 s{sX+1}, s5\ns_mov_b32 s{sWQ}, s6\ns_mov_b32 s{sWQ+1}, s7")
kst = nstamp[0]
if opt.debug and (opt.only is None or "A" in opt.only):
    nstamp[0] += 3; STAMPS += ["A:data B:x", "A:chain B:k", "A:pub B:last"]
F0 = f"s_mov_b64 exec, 0xffff\nbuffer_load_dword v{vT1}, v{vSt}, {sr(sWS,4)}, 0 offen sc1\ns_mov_b64 exec, -1"
nsl = 0
todo = SU[:2] + [touch] + SU[2:] + [sub]
for k, ch in enumerate(opt.head):
    if ch == "k": light("cA"); wkv_dma(0)
    elif ch == "K": wkv_dma(1); light("c0")
    elif ch == "a": waddr()
    elif ch == "p": a.e(f"s_setprio {opt.bprio}")
    elif ch in "123": xtile(int(ch))
    elif ch == "s": slab_b(nsl); nsl += 1
    elif ch == "u": todo.pop(0)()
    elif ch == "w": light("c1"); a.wait_vm(("kv",)); light("c2"); a.e("s_barrier")
assert nsl <= 8
light("c3")
tagwait()
a.wait_vm(("x",)); light("c4"); stamp_at(kst); a.e("s_barrier")
for sl in range(20 + opt.lead):
    if nsl <= sl < 20: slab_b(sl)
    if sl == opt.fl_at:
        assert not todo
        a.e(F0); a.vm.append(("f0",))
    d = sl - opt.lead
    if d in opt.syncs:
        for k in range(opt.upers):
            if todo: todo.pop(0)()
        for p in opt.kv_at.get(d, ()): first_kv(p)
        a.wait_vm_if(("w", d))
        if d == opt.bk:
            assert sl >= 19
            a.wait_vm_if(("f0",))
            a.label("L_f0")
            a.e(f"s_mov_b64 exec, 0xff\nv_cmp_ne_u32 vcc, s{sTAG}, v{vT1}\ns_cbranch_vccnz L_slowf0\ns_mov_b64 exec, 0xffff\nds_write_b32 v{vCx}, v{vT1}\ns_mov_b64 exec, -1")
            stamp_at(kst + 1)
        if d == 19: stamp_at(kst + 2)
        a.e("s_barrier")
for p in opt.kv_at.get(20, ()): first_kv(p)
vm_join = list(a.vm)
a.e("s_waitcnt lgkmcnt(0)\ns_barrier")
a.e("s_branch L_bq")
a.label("L_a2")
cX, cW, cA, cR = 38, 98, 78, 138
light("d1")
for f in SU: f()
a.e(f"""s_add_u32 s{sCA}, s{sCA}, {P_KVW}
v_bfe_u32 v{vT0}, v{vLane}, 1, 3
v_lshrrev_b32 v{vT1}, 4, v{vLane}
v_xor_b32 v{vT0}, v{vT0}, v{vT1}
v_and_b32 v{vT1}, 15, v{vLane}
v_lshlrev_b32 v{vT1}, 7, v{vT1}
v_lshl_add_u32 v{vT0}, v{vT0}, 4, v{vT1}
s_lshl_b32 s{sT2}, s{sKH}, 6
v_xor_b32 v{vCx}, s{sT2}, v{vT0}
s_mul_i32 s{sT2}, s{sKH}, 3072
s_add_u32 s{sT2}, s{sT2}, s{sJE}
s_add_u32 s{sT2}, s{sT2}, s{sCX}
v_add_u32 v{vCx}, s{sT2}, v{vCx}
s_lshl_b32 s{sT2}, s{sKH}, 11
v_xor_b32 v{vCx2}, 64, v{vCx}
v_add_u32 v{vCx2}, s{sT2}, v{vCx2}
v_add_u32 v{vTq1}, {P_R[0]}, v{vTq0}
s_mul_i32 s{sT0}, s{sJ}, 20480
v_add_u32 v{vT0}, s{sT0}, v{vT0}
s_lshl_b32 s{sT0}, s{sR}, 12""")
for rho in range(5):
    if rho: a.e(f"s_add_u32 s{sT0}, s{sT0}, 4096\ns_sub_u32 s{sT1}, s{sT0}, 20480\ns_min_u32 s{sT0}, s{sT0}, s{sT1}")
    a.e(f"v_add_u32 v{vXa+rho}, s{sT0}, v{vT0}")
a.e(f"""v_lshrrev_b32 v{vT0}, 4, v{vLane}
v_bfe_u32 v{vT1}, v{vLane}, 2, 2
v_lshl_add_u32 v{vT0}, v{vT0}, 3, v{vT1}
v_mul_u32_u24 v{vT0}, 40, v{vT0}
v_add_u32 v{vT0}, s{sCA}, v{vT0}
v_and_b32 v{vT1}, 3, v{vLane}
v_lshlrev_b32 v{vT1}, 4, v{vT1}
v_min_u32 v{vCw}, 32, v{vT1}
v_add_u32 v{vCw}, v{vCw}, v{vT0}
v_add_u32 v{vT1}, 8, v{vT1}
v_min_u32 v{vCw+1}, 32, v{vT1}
v_add_u32 v{vCw+1}, v{vCw+1}, v{vT0}
s_mul_i32 s{sT0}, s{sJ}, 2560
s_add_u32 s{sT0}, s{sT0}, {L_Q2}
v_add_u32 v{vM2w}, s{sT0}, v{vL16}
v_add_u32 v{vM2h}, s{sT0}, v{vL8}
s_add_u32 s{sT1}, s{sW}, {L_FLG}
v_mov_b32 v{vT3}, s{sT1}
v_mov_b32 v{vFlag}, 0
s_mov_b64 exec, 1
ds_write_b8 v{vT3}, v{vFlag}
s_mov_b64 exec, -1
v_mov_b32 v{vFlag}, 1""")
a.e(f"""s_bitcmp1_b32 s{sHG}, 0
s_cbranch_scc1 L_ofv
v_lshrrev_b32 v{vT0}, 4, v{vLane}
v_and_b32 v{vT1}, 15, v{vLane}
v_lshlrev_b32 v{vT1}, 4, v{vT1}
v_lshl_add_u32 v{vSt}, v{vT0}, 9, v{vT1}
s_and_b32 s{sT1}, s{sTK}, 1
s_lshl_b32 s{sT1}, s{sT1}, 8
s_branch L_ofd""")
a.label("L_ofv")
a.e(f"""v_and_b32 v{vT0}, 7, v{vLane}
v_lshlrev_b32 v{vT0}, 2, v{vT0}
v_mov_b32 v{vT1}, 0x73625410
v_lshrrev_b32 v{vT0}, v{vT0}, v{vT1}
v_and_b32 v{vT0}, 7, v{vT0}
v_add_u32 v{vT0}, 16, v{vT0}
v_and_b32 v{vT1}, 4, v{vLane}
v_lshlrev_b32 v{vT1}, 1, v{vT1}
v_and_b32 v{vT2}, 3, v{vLane}
v_add_u32 v{vT1}, v{vT1}, v{vT2}
v_lshrrev_b32 v{vT2}, 5, v{vLane}
v_lshl_add_u32 v{vT1}, v{vT2}, 2, v{vT1}
s_mov_b32 vcc_lo, 0xff00ff00
s_mov_b32 vcc_hi, 0xff00ff00
v_cndmask_b32 v{vT0}, v{vT1}, v{vT0}, vcc
v_bfe_u32 v{vT1}, v{vLane}, 4, 1
v_mul_u32_u24 v{vT1}, 384, v{vT1}
v_lshl_add_u32 v{vSt}, v{vT0}, 4, v{vT1}
s_and_b32 s{sT1}, s{sTK}, 1
s_mul_i32 s{sT1}, s{sT1}, 768
s_add_u32 s{sT1}, s{sT1}, 1536""")
a.label("L_ofd")
a.e(f"""s_lshl_b32 s{sT0}, s{sTB}, 13
s_lshr_b32 s{sT2}, s{sTK}, 1
s_lshl_b32 s{sT2}, s{sT2}, 12
s_add_u32 s{sT0}, s{sT0}, s{sT2}
s_add_u32 s{sT0}, s{sT0}, s{sT1}
v_add_u32 v{vT2}, s{sCA}, v{vL16}""")
light("d2")
tagwait()
light("d3")
a.e("s_waitcnt vmcnt(0)")
light("cA")
a.e("s_barrier")
stamp_at(kst)
light("c0")
def cw_read(i):
    a.lds(f"ds_read_b128 {vr(cX+4*i,4)}, v{vCx2 if i%2 else vCx} offset:{2048*(i//2)}", ("cx", i))
    for h in range(2):
        for q in range(2):
            a.lds(f"ds_read_b64_tr_b16 {vr(cW+8*i+4*h+2*q,2)}, v{vCw+h} offset:{i*1280+q*160}", ("cw", i, h))
for i in range(5): cw_read(i)
light("c1")
a.e(f"s_bitcmp1_b32 s{sHG}, 0\ns_cbranch_scc1 L_chv")
save = list(a.lg)
for mat in range(2):
    a.lg = list(save)
    if mat: a.label("L_chv")
    for i in range(5):
        for h in range(2):
            a.wait_lg(("cw", i, h))
            W, X = vr(cW + 8 * i + 4 * h, 4), vr(cX + 4 * i, 4)
            c = "0" if i == 0 else vr(cA + 4 * h, 4)
            a.e(f"v_mfma_f32_16x16x32_bf16 {vr(cA+4*h,4)}, {W if not mat else X}, {X if not mat else W}, {c}")
    if not mat: a.e("s_branch L_chd")
a.label("L_chd")
light("c2")
a.e(f"s_cmp_eq_u32 s{sW}, 0\ns_cbranch_scc1 L_fin0\ns_nop 5")
a.e(f"ds_write_b128 v{vT2}, {vr(cA,4)}\nds_write_b128 v{vT2}, {vr(cA+4,4)} offset:1024")
a.e(f"s_mov_b64 exec, 1\nds_write_b8 v{vT3}, v{vFlag}\ns_mov_b64 exec, -1")
stamp_at(kst + 1)
a.e("s_branch L_bx")
a.label("L_fin0")
a.e(f"ds_read_b32 v{cR+24}, v{vT3}")
for j in range(1, 4):
    for h in range(2): a.e(f"ds_read_b128 {vr(cR+8*(j-1)+4*h,4)}, v{vT2} offset:{6400*j+1024*h}")
a.e(f"""s_add_u32 s{sSPIN}, s{sSPIN}, 1
s_cmp_lt_u32 s{sSPIN}, 1000000
s_cbranch_scc0 L_end
s_waitcnt lgkmcnt(6)
v_cmp_ne_u32 vcc, 0x01010100, v{cR+24}
s_waitcnt lgkmcnt(0)
s_cbranch_vccnz L_fin0""")
light("c3")
stamp_at(kst + 1)
for i in range(8):
    a.e(f"v_add_f32 v{cA+i}, v{cA+i}, v{cR+i}\nv_add_f32 v{cR+8+i}, v{cR+8+i}, v{cR+16+i}")
for i in range(8): a.e(f"v_add_f32 v{cA+i}, v{cA+i}, v{cR+8+i}")
SCALE = math.log2(math.e) / math.sqrt(20.0)
SCX = f"0x{struct.unpack('<I', struct.pack('<f', SCALE))[0]:08x}"
a.e(f"s_bitcmp1_b32 s{sHG}, 0\ns_cbranch_scc1 L_stv")
for i in range(8): a.e(f"v_mul_f32 v{cA+i}, {SCX}, v{cA+i}")
for i in range(4): a.e(f"v_cvt_pk_bf16_f32 v{cR+i}, v{cA+2*i}, v{cA+2*i+1}")
a.e("s_mov_b32 exec_hi, 0xffff\ns_branch L_std")
a.label("L_stv")
for i in range(4): a.e(f"v_cvt_pk_bf16_f32 v{cR+i}, v{cA+2*i}, v{cA+2*i+1}")
a.e(f"v_add_f32 v{vT0}, abs(v{cA}), abs(v{cA+1})")
for i in range(2, 8): a.e(f"v_add_f32 v{vT0}, v{vT0}, abs(v{cA+i})")
a.e(f"v_permlane32_swap_b32 v{cR}, v{cR+2}\nv_permlane32_swap_b32 v{cR+1}, v{cR+3}")
a.e(f"v_cmp_nge_f32 vcc, 0x5c000000, v{vT0}\ns_mov_b32 s{sT1}, 0x3f803f80\ns_nop 0\ns_cmp_lg_u64 vcc, 0\ns_cselect_b32 s{sT1}, 0x7f807f80, s{sT1}")
a.e("s_mov_b64 exec, 0x30003000")
for i in range(4): a.e(f"v_mov_b32 v{cR+i}, s{sT1}")
a.e("s_mov_b32 exec_lo, 0xc000c000")
for i in range(4): a.e(f"v_mov_b32 v{cR+i}, 0")
a.e("s_mov_b32 exec_lo, -1\ns_mov_b32 exec_hi, 0x00ff00ff")
a.label("L_std")
a.e(f"""buffer_store_dwordx4 {vr(cR,4)}, v{vSt}, {sr(sWS,4)}, s{sT0} offen sc1
s_mov_b64 exec, -1
s_lshl_b32 s{sCC}, s{sTB}, 3
s_add_u32 s{sCC}, s{sCC}, s{sHG}
s_lshl_b32 s{sCC}, s{sCC}, 7
s_add_u32 s{sCC}, s{sCC}, {A_F1}
v_mov_b32 v{vT1}, s{sTAG}""")
def publish():
    a.e(f"s_cmp_eq_u32 s{sW}, 0\ns_cbranch_scc0 L_pubd\ns_mov_b64 exec, 1\ns_waitcnt vmcnt(0)\nbuffer_store_dword v{vT1}, v{vL16}, {sr(sWS,4)}, s{sCC} offen sc1\ns_mov_b64 exec, -1")
    keep = list(a.lg); stamp_at(kst + 2); a.lg = keep
    a.label("L_pubd")
a.label("L_bx")
light("c4")
a.lg = []; a.vm = []
a.e("s_barrier")
stamp("Bx")
for e in range(2):
    for i in range(e, 20, 2):
        a.lds(f"ds_read_b128 {vr(vXf+4*i,4)}, v{vXa+i//4} offset:{2048*(i%4//2)}", ("x", i))
        if e == 0 and i % 4 == 2: a.e(f"v_xor_b32 v{vXa+i//4}, 64, v{vXa+i//4}")
js = [(i, t) for i in range(10) for t in range(5)]
qs = [(i, t) for i in range(20) for t in range(opt.dskip)]
for i in range(4 * opt.dskip, 20): a.e(f"v_mov_b32 v{vAcc+i}, 0")
NR1 = 11
assert opt.pub_at in opt.syncs and opt.bk in opt.syncs and 19 in opt.syncs and opt.pub_at < opt.bk
issued = 0
avail = -1
def trq(f, i, t):
    if opt.dmode == "m" and t and i > 2: return
    rho, e = divmod(i, 4)
    base, off = (vTq1, P_R[rho] - P_R[0]) if rho < 3 else (vTq0, P_R[rho])
    for q in range(2):
        a.lds(f"ds_read_b64_tr_b16 {vr(f+2*q,2)}, v{base} offset:{off + e*5120 + 8*t + q*2560}", ("fr", i, t))
for j, (i, t) in enumerate(qs):
    while issued < len(qs) and issued < j + opt.ahead:
        if qs[issued][0] > avail:
            if qs[issued][0] >= opt.drain and issued > j: break
            nxt_s = min(x for x in opt.syncs if x > avail)
            if avail < 0: a.wait_lg(("x", 19))
            if nxt_s == opt.pub_at: publish()
            for p in opt.kv_a.get(nxt_s, ()): first_kv(p)
            a.e("s_barrier")
            avail = nxt_s
            stamp(f"S{avail}")
        trq(vFr + 4 * (issued % NR1), *qs[issued]); issued += 1
    a.wait_lg(("fr", i, t))
    c = "0" if i == 0 else vr(vAcc + 4 * t, 4)
    if opt.dmode == "r" and t and 0 < i < 19: continue
    a.e(f"v_mfma_f32_16x16x32_bf16 {vr(vAcc+4*t,4)}, {vr(vFr+4*(j%NR1),4)}, {vr(vXf+4*i,4)}, {c}")
stamp("qgemm")
vPk = vXf
a.e("s_nop 3")
for i in range(4): a.e(f"v_cvt_pk_bf16_f32 v{vPk+i}, v{vAcc+2*i}, v{vAcc+2*i+1}")
a.e(f"ds_write_b128 v{vM2w}, {vr(vPk,4)}")
for i in range(4, 8): a.e(f"v_cvt_pk_bf16_f32 v{vPk+i}, v{vAcc+2*i}, v{vAcc+2*i+1}")
a.e(f"ds_write_b128 v{vM2w}, {vr(vPk+4,4)} offset:1024")
for i in range(8, 10): a.e(f"v_cvt_pk_bf16_f32 v{vPk+i}, v{vAcc+2*i}, v{vAcc+2*i+1}")
a.e(f"ds_write_b64 v{vM2h}, {vr(vPk+8,2)} offset:2048")
for p in opt.kv_a.get(20, ()): first_kv(p)
a.e("s_waitcnt lgkmcnt(0)\ns_barrier")
for p in opt.kv_a.get(21, ()): first_kv(p)
assert a.vm == vm_join, (a.vm, vm_join)
for kv in (opt.kv_at, opt.kv_a): assert min(kv) > opt.bk and all(k in opt.syncs or k >= 20 for k in kv)
a.label("L_bq")
a.lg = []
stamp("E2")
a.lds(f"ds_read_b64 {vr(vQH[0],2)}, v{vQa+4} offset:2048", ("q", 0))
a.lds(f"ds_read_b128 {vr(vQ[0],4)}, v{vQa}", ("q", 0))
a.lds(f"ds_read_b128 {vr(vQ[1],4)}, v{vQa+1}", ("q", 0))
a.lds(f"ds_read_b64 {vr(vQH[1],2)}, v{vQa+5} offset:2048", ("q", 1))
a.lds(f"ds_read_b128 {vr(vQ[2],4)}, v{vQa+2}", ("q", 1))
a.lds(f"ds_read_b128 {vr(vQ[3],4)}, v{vQa+3}", ("q", 1))
a.e(f"s_not_b32 s{sT0}, s{sTAG}\nv_mov_b32 v{vFlag}, s{sT0}\ns_mov_b64 exec, 0xffff")
a.lds(f"ds_read_b32 v{vFlag}, v{vXp1}", ("q", 1))
a.e("s_mov_b64 exec, -1")
seq = [(t, p) for t in range(13) for p in range(2)] + [(t, p) for p in range(2) for t in (13, 14, 15)]
NS = 32
def s2b(n): t, p = seq[n]; S = vS[n % 2]; return f"v_mfma_f32_32x32x4_2b_bf16 {vr(S,32)}, {vr(kslot(t)+4,2)}, {vr(vQH[p],2)}, 0"
def s16(n, x): t, p = seq[n]; S = vS[n % 2] + 16 * x; return f"v_mfma_f32_32x32x16_bf16 {vr(S,16)}, {vr(kslot(t),4)}, {vr(vQ[2*p+x],4)}, {vr(S,16)}"
def pv(n, g):
    t, p = seq[n]; O = vO + 16 * (2 * p + g // 2)
    c = "0" if (t == 0 and g % 2 == 0) else vr(O, 16)
    return f"v_mfma_f32_32x32x16_bf16 {vr(O,16)}, {vr(vslot(t)+4*(g%2),4)}, {vr(vP+4*g,4)}, {c}"
a.wait_vm(("k", 0))
a.wait_lg(("q", 0))
stamp("kv0")
a.e(s2b(0))
a.e(f"v_mov_b32 v{vR1}, -1\nv_mov_b32 v{vR1+1}, -1\nv_mov_b32 v{vR1+2}, -1\nv_mov_b32 v{vR1+3}, -1\ns_xor_b32 s{sT0}, s{sTAG}, s{sXCC}\nv_mov_b32 v{vR1+4}, s{sT0}")
for x in v_loads(1): a.vload(*x)
kv_advance(1)
a.e("s_nop 7"); a.e(s16(0, 0)); a.e(s16(0, 1)); a.wait_lg0(); a.e("s_nop 9")
vOF = [vO + 4 * i for i in range(4)] + [248] + [vO + 16 + 4 * i for i in range(4)] + [252]
vAcc2 = 18
vRdy = vR1 + 22
def normalize(S, T, fail):
    a.e(f"v_subrev_u32 v{T}, 0x21800000, v{S+10}\nv_cmp_lt_u32 vcc, 0x3c000000, v{T}")
    a.e(f"s_branch {fail}" if opt.force_fallback else f"s_cbranch_vccnz {fail}")
ostubs = []
def ostore(T, pol):
    a.e(f"buffer_store_dwordx4 {vr(T,4)}, v{vL16}, {sr(sWS,4)}, s{sO0} offen{pol}")
    a.e(f"buffer_store_dword v{T+4}, v{vL8}, {sr(sWS,4)}, s{sO1} offen{pol}")
def scale(S, T):
    a.e(f"v_rcp_f32 v{S+10}, v{S+10}\ns_or_b32 s{sT0}, s{sMSK}, s{sMSK+1}")
    if opt.pk:
        for i in range(0, 10, 2): a.e(f"v_pk_mul_f32 {vr(S+i,2)}, {vr(S+i,2)}, {vr(S+10,2)} op_sel_hi:[1,0]")
    else:
        for i in range(10): a.e(f"v_mul_f32 v{S+i}, v{S+i}, v{S+10}")
    for i in range(5): a.e(f"v_cvt_pk_bf16_f32 v{T+i}, v{S+2*i}, v{S+2*i+1}")
def finish(S, T, tag):
    scale(S, T)
    a.label(f"L_ost{tag}")
    if opt.fast:
        a.e(f"s_cbranch_scc1 L_osc{tag}")
        ostore(T, opt.opol[tag])
        ostubs.append((T, tag))
    else: ostore(T, " sc1")
    a.label(f"L_osd{tag}")
def opoll(j):
    pp, jj = divmod(j, 2)
    a.e(f"buffer_load_dwordx4 {vr(vOF[5*pp+2*jj],4)}, v{vL16}, {sr(sWS,4)}, s{sOJ+j} offen sc1")
    a.e(f"buffer_load_dwordx4 {vr(vOF[5*pp+2*jj+1],4)}, v{vL16}, {sr(sWS,4)}, s{sOJ+j} offen offset:1024 sc1")
    a.e(f"buffer_load_dwordx2 {vr(vOF[5*pp+4]+2*jj,2)}, v{vL8}, {sr(sWS,4)}, s{sOJ+j} offen offset:2048 sc1")
RDY = f"s_mov_b64 exec, 15\nbuffer_load_dwordx2 {vr(vRdy,2)}, v{vT1}, {sr(sWS,4)}, s{sOB} offen offset:2552 sc1\ns_mov_b64 exec, -1"
RDYC = f"s_waitcnt vmcnt(0)\nv_max_u32 v{vT0}, v{vRdy}, v{vRdy+1}\nv_cmp_eq_u32 {sr(sC0,2)}, -1, v{vT0}\ns_nop 0"
def SETF(off): return f"s_mov_b64 exec, 1\nds_write_b8 v{vFa}, v{vFlag} offset:{off}\ns_mov_b64 exec, -1"
vPkd = vR1 + 12
ring = list(range(38, 118, 4)) + list(range(150, vR1 - 3, 4))
NRING2 = len(ring)
nblk = [0]
class only_par:
    def __init__(s_, par): s_.par = par
    def __enter__(s_):
        s_.k = nblk[0]; nblk[0] += 1
        a.e(f"s_cmp_eq_u32 s{sPAR}, {s_.par}\ns_cbranch_scc0 L_blk{s_.k}")
    def __exit__(s_, *x): a.label(f"L_blk{s_.k}")
def wr3(addr, off, src):
    for i in range(3): a.e(f"ds_write_b128 v{addr}, {vr(src+4*i,4)} offset:{off+1024*i}")
def rd3(addr, off, dst):
    for i in range(3): a.e(f"ds_read_b128 {vr(dst+4*i,4)}, v{addr} offset:{off+1024*i}")
def add11(dst, src):
    if opt.pk:
        for i in range(0, 10, 2): a.e(f"v_pk_add_f32 {vr(dst+i,2)}, {vr(dst+i,2)}, {vr(src+i,2)}")
        a.e(f"v_add_f32 v{dst+10}, v{dst+10}, v{src+10}")
    else:
        for i in range(11): a.e(f"v_add_f32 v{dst+i}, v{dst+i}, v{src+i}")
vRc = [vO, vO + 12, vR1]
def lreads():
    a.e(f"ds_read_b32 v{vRdy}, v{vT0}")
    rd3(vA1, 0, vRc[0]); rd3(vA1, 9216, vRc[1]); rd3(vA0, 3072, vRc[2])
ksched = {2 * t - 4: t for t in range(2, 15)}; vsched = {2 * t - 3: t for t in range(2, 15)}
for n in range(NS):
    t, p = seq[n]
    a.c(f"half-step {n}: tile {t} pair {p}")
    if n in opt.prio: a.e(f"s_setprio {opt.prio[n]}")
    if n in (4, 8, 16, 24, 29, 30, 31): stamp(f"step{n}")
    S = vS[n % 2]
    ex = [f"v_exp_f32 v{S+i}, v{S+i}" for i in range(32)]
    cv = [f"v_cvt_pk_bf16_f32 v{vP+i}, v{S+2*i}, v{S+2*i+1}" for i in range(16)]
    E = lambda lo, hi: [a.e(x) for x in ex[lo:hi]]
    C = lambda lo, hi: [a.e(x) for x in cv[lo:hi]]
    L = k_loads(ksched[n]) if n in ksched else v_loads(vsched[n]) if n in vsched else v_loads(15) if n == 26 else []
    def LD(i):
        if i < len(L): a.vload(*L[i])
    nxt = n + 1 < NS
    E(0, 2)
    if n > 0: a.e(pv(n - 1, 3))
    E(2, 6)
    if nxt:
        a.wait_vm_if(("k", seq[n + 1][0]))
        a.e(s2b(n + 1))
    if n == 30:
        a.wait_vm0()
        a.e("s_waitcnt lgkmcnt(0)\ns_barrier")
        a.e(f"s_setprio {opt.prl}")
        with only_par(0):
            a.e(f"s_setprio {opt.pre}")
            rd3(vA0, 0, vR1); rd3(vA0, 3072, vR1 + 12)
    E(6, 8)
    if n in (0, 4, 8):
        a.wait_vm_if(("flag",))
        flag_cmp()
    C(0, 4)
    if n in ksched and ksched[n] % 2 == 0: chunk_check(ksched[n] // 2)
    LD(0); E(8, 12); LD(1)
    if n in vsched: kv_advance(vsched[n])
    if n in (1, 5): flag_refresh()
    E(12, 13)
    a.wait_vm_if(("v", t))
    a.e(pv(n, 0))
    E(13, 16)
    if n == 2:
        a.e(f"buffer_store_dwordx4 {vr(vR1,4)}, v{vL16}, {sr(sWS,4)}, s{sO0} offen sc1")
        a.e(f"buffer_store_dword v{vR1}, v{vL8}, {sr(sWS,4)}, s{sO1} offen sc1")
    if n == 3:
        a.e(f"v_mov_b32 v{vR1+8}, 0\nv_mov_b32 v{vR1+9}, 0\nv_mov_b32 v{vR1+10}, 0\nv_mov_b32 v{vR1+11}, 0\nv_mov_b32 v{vT0}, {L_FL}")
        a.e(f"s_mov_b64 exec, 1\nds_write_b128 v{vT0}, {vr(vR1+8,4)}\ns_mov_b64 exec, -1")
        for j in range(4):
            a.e(f"s_xor_b32 s{sT0}, s{sHG}, {j ^ 3}\ns_and_b32 s{sT0}, s{sT0}, 3\ns_mul_i32 s{sT0}, s{sT0}, 2560\ns_add_u32 s{sOJ+j}, s{sT0}, s{sOB}")
    if n == 27:
        a.e(f"s_and_b32 s{sT0}, s{sW}, 2\ns_add_u32 s{sT0}, s{sT0}, s{sPAR}\ns_lshl_b32 s{sT0}, s{sT0}, 1\ns_add_u32 s{sT0}, s{sT0}, s{sKH}\ns_add_u32 s{sT0}, s{sT0}, {L_FL}\nv_mov_b32 v{vFa}, s{sT0}\nv_mov_b32 v{vFlag}, 1")
    if n == 8:
        a.e(f"s_mov_b64 exec, 1\nbuffer_store_dword v{vR1+4}, v{vL16}, {sr(sWS,4)}, s{sF2} offen sc1\ns_mov_b64 exec, -1")
    if n == 23:
        a.e(f"v_and_b32 v{vT0}, 15, v{vLane}\nv_lshlrev_b32 v{vT0}, 7, v{vT0}\ns_and_b32 s{sF2}, s{sF2}, 0xfffff800")
        a.vload(f"buffer_load_dword v{vT1}, v{vT0}, {sr(sWS,4)}, s{sF2} offen sc1", ("f2",))
    if n == 25:
        for x in k_loads(15): a.vload(*x)
    if n == 28:
        assert ("f2",) not in a.vm
        a.label("L_f2")
        a.e(f"""v_xor_b32 v{vT1}, s{sTAG}, v{vT1}
v_cmp_lt_u32 vcc, 7, v{vT1}
s_cbranch_vccnz L_slowf2
v_cmp_ne_u32 {sr(sMSK,2)}, s{sXCC}, v{vT1}
v_and_b32 v{vT0}, -4, v{vFa}""")
    if n == 29: wr3(vE0, 0, vO)
    if n == 31:
        for j in range(8): trd(ring[j], *js[j], ("fr",) + js[j])
    if n == 30:
        with only_par(0):
            a.e("s_waitcnt lgkmcnt(3)"); add11(vO + 16, vR1)
            rd3(vA0, 6144, vR1)
            a.e("s_waitcnt lgkmcnt(3)"); add11(vO + 16, vR1 + 12)
    C(4, 8); E(16, 18)
    a.e(pv(n, 1))
    E(18, 22)
    if nxt: a.e(s16(n + 1, 0))
    E(22, 24)
    s = n - opt.wo0
    if 0 <= s < 20:
        khs, i = divmod(s, 10); pp, u = divmod(i, 5)
        if u < 4: so = f"s_add_u32 s{sT2}, s{sPJ + 2*pp + u//2}, {(320*khs + 40*(u%2))*1280}"
        else: so = f"s_min_u32 s{sT2}, s{sPJ+2*pp}, s{sPJ+2*pp+1}\ns_add_u32 s{sT2}, s{sT2}, {320*khs*1280}"
        a.e(f"s_add_u32 m0, s{sM0B}, {L_W + khs*51200 + i*5120}\n{so}\ns_mov_b32 exec_hi, 0xff")
        a.vload(f"buffer_load_dwordx4 v{vWoA if u < 4 else vWoB}, {sr(sWO,4)}, s{sT2} offen lds", ("wo", s))
        a.e("s_mov_b32 exec_hi, -1")
    if n == 29:
        with only_par(1): wr3(vA0, 3072, vO + 16)
    if n == 30:
        with only_par(0):
            a.e("s_waitcnt lgkmcnt(0)"); add11(vO + 16, vR1)
            normalize(vO + 16, vR1 + 12, "L_defer")
            finish(vO + 16, vR1 + 12, "e")
            a.label("L_deferred")
    C(8, 12); E(24, 26)
    a.e(pv(n, 2))
    if n == 31:
        wr3(vL0, 0, vO + 32)
        with only_par(1): a.e(SETF(0))
    E(26, 30)
    if n == 31:
        with only_par(1): lreads()
    if nxt: a.e(s16(n + 1, 1))
    E(30, 32); C(12, 16)
a.e("s_nop 1")
a.e(pv(NS - 1, 3))
stamp("loop end")
vSum = vO + 48
def ocheck(j, r):
    pp, jj = divmod(j, 2)
    b0, b1, l = vOF[5*pp+2*jj], vOF[5*pp+2*jj+1], vOF[5*pp+4] + 2*jj
    a.label(f"L_ochk{j}{r}")
    a.e(f"v_max_u32 v{vT0}, v{l}, v{l+1}")
    if opt.chk1: a.e(f"v_max3_u32 v{vT0}, v{vT0}, v{b0+3}, v{b1+3}")
    else:
        for b in (b0, b0 + 2, b1, b1 + 2): a.e(f"v_max3_u32 v{vT0}, v{vT0}, v{b}, v{b+1}")
    a.e(f"v_cmp_eq_u32 vcc, -1, v{vT0}\ns_cbranch_vccnz L_oslow{j}{r}")
def gemm_out(r, issued, npre):
    for j, (i, t) in enumerate(js):
        while issued < len(js) and issued < j + npre:
            trd(ring[issued % NRING2], *js[issued], ("fr",) + js[issued]); issued += 1
        if t == 0 and i % 5 in (0, 2):
            pj = 2 * (i // 5) + (i % 5) // 2
            a.e(f"s_waitcnt vmcnt({9 - 3*pj})")
            ocheck(pj, r)
            if r == "l": stamp(f"chk{pj}")
        a.wait_lg(("fr", i, t))
        c = "0" if i == 0 else vr(vAcc2 + 4 * t, 4)
        a.e(f"v_mfma_f32_16x16x32_bf16 {vr(vAcc2+4*t,4)}, {vr(ring[j%NRING2],4)}, {vr(vOF[i],4)}, {c}")
a.e(f"s_cmp_eq_u32 s{sPAR}, 0\ns_cbranch_scc1 L_early")
a.label("L_lrd")
a.e(f"s_waitcnt lgkmcnt(9)\nv_cmp_ne_u32 vcc, 0x01010101, v{vRdy}\ns_cbranch_vccnz L_lslow")
stamp("L rd")
a.e("s_waitcnt lgkmcnt(3)")
add11(vRc[0], vRc[1])
a.e("s_waitcnt lgkmcnt(0)")
add11(vRc[0], vRc[2])
add11(vSum, vRc[0])
normalize(vSum, vRc[0], "L_fallback")
finish(vSum, vPkd, "l")
stamp("O stored")
a.lg = []
for j in range(8, opt.poll_at): trd(ring[j], *js[j], ("fr",) + js[j])
for j in range(4): opoll(j)
stamp("O issued")
gemm_out("l", opt.poll_at, min(opt.npre, NRING2 - 1))
a.label("L_reduce")
stamp("ogemm")
vG = 38
a.e(f"""v_and_b32 v{vT0}, 15, v{vLane}
v_mul_u32_u24 v{vT0}, 1280, v{vT0}
v_lshrrev_b32 v{vT1}, 4, v{vLane}
v_mul_u32_u24 v{vT1}, 40, v{vT1}
v_add_u32 v{vT0}, v{vT0}, v{vT1}
s_mul_i32 s{sT1}, s{sT}, 20480
s_add_u32 s{sT1}, s{sT1}, s{sHGO}
s_mul_i32 s{sT2}, s{sPAR}, 3072
v_subrev_u32 v{vA0}, s{sT2}, v{vA0}
v_subrev_u32 v{vA1}, s{sT2}, v{vA1}
v_xor_b32 v{vT1}, 1, v{vFa}""")
a.e(f"s_cmp_eq_u32 s{sKH}, 0\ns_cbranch_scc0 L_o1")
for t in (3, 4): a.e(f"ds_write_b128 v{vA0}, {vr(vAcc2+4*t,4)} offset:{6144+1024*(t-3)}")
a.e(SETF(8))
a.label("L_prd0")
a.e(f"ds_read_u8 v{vRdy}, v{vT1} offset:8")
for t in range(3): a.e(f"ds_read_b128 {vr(vG+4*t,4)}, v{vA1} offset:{6144+1024*t}")
a.e(f"s_add_u32 s{sSPIN}, s{sSPIN}, 1\ns_cmp_lt_u32 s{sSPIN}, 1000000\ns_cbranch_scc0 L_end\ns_waitcnt lgkmcnt(0)\nv_cmp_ne_u32 vcc, 1, v{vRdy}\ns_cbranch_vccnz L_prd0")
for i in range(12): a.e(f"v_add_f32 v{vAcc2+i}, v{vAcc2+i}, v{vG+i}")
for i in range(6): a.e(f"v_cvt_pk_bf16_f32 v{vG+16+i}, v{vAcc2+2*i}, v{vAcc2+2*i+1}")
a.e(f"buffer_store_dwordx4 {vr(vG+16,4)}, v{vT0}, {sr(sOUT,4)}, s{sT1} offen{opt.outpol}")
a.e(f"buffer_store_dwordx2 {vr(vG+20,2)}, v{vT0}, {sr(sOUT,4)}, s{sT1} offen offset:16{opt.outpol}")
a.e("s_branch L_fin")
a.label("L_o1")
for t in range(3): a.e(f"ds_write_b128 v{vA0}, {vr(vAcc2+4*t,4)} offset:{6144+1024*t}")
a.e(SETF(8))
a.label("L_prd1")
a.e(f"ds_read_u8 v{vRdy}, v{vT1} offset:8")
for t in range(2): a.e(f"ds_read_b128 {vr(vG+4*t,4)}, v{vA1} offset:{6144+1024*t}")
a.e(f"s_add_u32 s{sSPIN}, s{sSPIN}, 1\ns_cmp_lt_u32 s{sSPIN}, 1000000\ns_cbranch_scc0 L_end\ns_waitcnt lgkmcnt(0)\nv_cmp_ne_u32 vcc, 1, v{vRdy}\ns_cbranch_vccnz L_prd1")
for i in range(8): a.e(f"v_add_f32 v{vAcc2+12+i}, v{vAcc2+12+i}, v{vG+i}")
for i in range(4): a.e(f"v_cvt_pk_bf16_f32 v{vG+16+i}, v{vAcc2+12+2*i}, v{vAcc2+12+2*i+1}")
a.e(f"buffer_store_dwordx4 {vr(vG+16,4)}, v{vT0}, {sr(sOUT,4)}, s{sT1} offen offset:24{opt.outpol}")
a.label("L_fin")
stamp("out st")
a.e(f"s_or_b32 s{sT0}, s2, s{sW}\ns_cmp_eq_u32 s{sT0}, 0\ns_cbranch_scc0 L_noep")
a.e(f"s_mov_b64 exec, 1\nv_mov_b32 v{vT1}, s{sTAG}\nv_mov_b32 v{vT0}, {A_EP}\nbuffer_store_dword v{vT1}, v{vT0}, {sr(sWS,4)}, 0 offen sc1\ns_mov_b64 exec, -1")
a.label("L_noep")
if opt.debug:
    a.e("s_waitcnt vmcnt(0)")
    stamp("end")
    for nm, r in LIGHT.items():
        i = nstamp[0]; nstamp[0] += 1; STAMPS.append(nm)
        a.e(f"v_writelane_b32 v17, s98, {i}\nv_writelane_b32 v17, s{r}, {32+i}")
    a.e(f"s_lshl_b32 s{sT0}, s2, 3\ns_add_u32 s{sT0}, s{sT0}, s{sW}\ns_lshl_b32 s{sT0}, s{sT0}, 8\ns_add_u32 s{sT0}, s{sT0}, {A_DBG}")
    a.e(f"v_writelane_b32 v17, s{sSPIN}, 31\nv_lshlrev_b32 v{vT0}, 2, v{vLane}")
    a.e(f"buffer_store_dword v17, v{vT0}, {sr(sWS,4)}, s{sT0} offen")
    if opt.dbgout:
        assert nstamp[0] <= 15
        srd(sX, 16, 256)
        a.e(f"v_subrev_u32 v{vT1}, s94, v17\nv_cmp_eq_u32 vcc, 0, v17\nv_cndmask_b32 v{vT1}, v{vT1}, v17, vcc\ns_not_b32 s{sT0}, s94\ns_and_b32 s{sT0}, s{sT0}, 0xffffff\ns_and_b32 s98, s98, 0xffffff\nv_writelane_b32 v{vT1}, s{sT0}, 0\nv_writelane_b32 v{vT1}, s98, 15")
        a.e(f"s_mov_b64 exec, 0xffff\nbuffer_atomic_umax v{vT1}, v{vT0}, {sr(sX,4)}, 0 offen")
if opt.pad:
    if opt.pad == "end": a.e("s_waitcnt vmcnt(0)\ns_memrealtime s[92:93]")
    a.label("L_pad")
    a.e("s_memrealtime s[90:91]\ns_waitcnt lgkmcnt(0)\ns_sub_u32 s90, s90, s92\ns_cmp_lt_u32 s90, 6000\ns_cbranch_scc1 L_pad")
a.label("L_end")
a.e("s_endpgm")
a.label("L_early")
a.e("s_nop 9")
wr3(vA0, 3072, vO + 48)
a.e(SETF(0))
a.e(f"s_setprio 0\ns_waitcnt lgkmcnt(0)\ns_cmp_eq_u32 s{sDEF}, 0\ns_cbranch_scc0 L_dfb")
a.lg = []
for j in range(4): opoll(j)
a.label("L_egemm")
gemm_out("e", 8, opt.npre_e)
a.e("s_branch L_reduce")
a.label("L_dfb")
for i in range(4): a.e(f"v_mov_b32 v{vQ[3]+i}, v{vQ[1]+i}")
for i in range(2): a.e(f"v_mov_b32 v{vQH[1]+i}, v{vQH[0]+i}")
a.e("s_branch L_fallback")
for c in slow_stubs:
    a.label(f"L_slow{c}")
    a.e(f"s_add_u32 s{sSPIN}, s{sSPIN}, 1\ns_cmp_lt_u32 s{sSPIN}, 1000000\ns_cbranch_scc0 L_end")
    a.e(f"s_mov_b64 exec, {sr(sMSK,2)}\n{FLOAD}\ns_mov_b64 exec, -1\ns_waitcnt vmcnt(0)")
    flag_cmp()
    a.e(f"s_nop 0\ns_and_b32 s{sT0}, s{sMSK + c//4}, 0x{0xff << (8*(c%4)):x}\ns_cbranch_scc1 L_slow{c}\ns_branch L_back{c}")
for r in "el":
    for j in range(4):
        a.label(f"L_oslow{j}{r}")
        a.e(f"s_add_u32 s{sSPIN}, s{sSPIN}, 1\ns_cmp_lt_u32 s{sSPIN}, 1000000\ns_cbranch_scc0 L_end")
        opoll(j)
        a.e(f"s_waitcnt vmcnt(0)\ns_branch L_ochk{j}{r}")
a.label("L_lslow")
a.e(f"s_add_u32 s{sSPIN}, s{sSPIN}, 1\ns_cmp_lt_u32 s{sSPIN}, 1000000\ns_cbranch_scc0 L_end")
a.e(f"ds_read_b32 v{vRdy}, v{vT0}\ns_waitcnt lgkmcnt(0)\nv_cmp_ne_u32 vcc, 0x01010101, v{vRdy}\ns_cbranch_vccnz L_lslow")
lreads()
a.e("s_branch L_lrd")
for T, tag in ostubs:
    a.label(f"L_osc{tag}")
    ostore(T, " sc1")
    a.e(f"s_branch L_osd{tag}")
a.label("L_defer")
a.e(f"s_mov_b32 s{sDEF}, 1\ns_branch L_deferred")
a.label("L_slowf0")
a.e(f"s_add_u32 s{sSPIN}, s{sSPIN}, 1\ns_cmp_lt_u32 s{sSPIN}, 1000000\ns_cbranch_scc0 L_end")
a.e(f"{F0}\ns_waitcnt vmcnt(0)\ns_branch L_f0")
a.label("L_slowf2")
a.e(f"s_add_u32 s{sSPIN}, s{sSPIN}, 1\ns_cmp_lt_u32 s{sSPIN}, 1000000\ns_cbranch_scc0 L_end")
a.e(f"buffer_load_dword v{vT1}, v{vT0}, {sr(sWS,4)}, s{sF2} offen sc1\ns_waitcnt vmcnt(0)\ns_branch L_f2")
a.label("L_fallback")
fS = 70; fM = vR1 + 20; fK = vKr; fV = vVr
def f_scores():
    a.e(f"buffer_load_dwordx4 {vr(fK,4)}, v{vL16}, {sr(sWS,4)}, s{sT0} offen sc1")
    a.e(f"buffer_load_dwordx2 {vr(fK+4,2)}, v{vK1a}, {sr(sWS,4)}, s{sT0} offen offset:1024 sc1")
    a.e(f"buffer_load_dwordx4 {vr(fV,4)}, v{vVa}, {sr(sWS,4)}, s{sT0} offen offset:1536 sc1")
    a.e(f"buffer_load_dwordx4 {vr(fV+4,4)}, v{vVa}, {sr(sWS,4)}, s{sT0} offen offset:2304 sc1")
    a.e("s_waitcnt vmcnt(0)\ns_mov_b32 exec_lo, 0x00440000\ns_mov_b32 exec_hi, 0x00440000")
    for i in range(8): a.e(f"v_mov_b32 v{fV+i}, 0x3f803f80")
    a.e("s_mov_b64 exec, -1")
    a.e(f"v_mfma_f32_32x32x4_2b_bf16 {vr(fS,32)}, {vr(fK+4,2)}, {vr(vQH[1],2)}, 0\ns_nop 15\ns_nop 1")
    a.e(f"v_mfma_f32_32x32x16_bf16 {vr(fS+16,16)}, {vr(fK,4)}, {vr(vQ[3],4)}, {vr(fS+16,16)}\ns_nop 11")
a.e(f"v_mov_b32 v{fM}, 0xff800000\ns_mov_b32 s{sT0}, 0")
a.label("L_fb1")
f_scores()
for i in range(0, 16, 2): a.e(f"v_max3_f32 v{fM}, v{fM}, v{fS+16+i}, v{fS+17+i}")
a.e(f"s_add_u32 s{sT0}, s{sT0}, 4096\ns_cmp_lt_u32 s{sT0}, 262144\ns_cbranch_scc1 L_fb1")
a.e(f"v_mov_b32 v{fM+1}, v{fM}\ns_nop 1\nv_permlane32_swap_b32 v{fM}, v{fM+1}\ns_nop 1\nv_max_f32 v{fM}, v{fM}, v{fM+1}")
for i in range(16): a.e(f"v_mov_b32 v{vSum+i}, 0")
a.e(f"s_mov_b32 s{sT0}, 0")
a.label("L_fb2")
f_scores()
for i in range(16): a.e(f"v_sub_f32 v{fS+16+i}, v{fS+16+i}, v{fM}")
for i in range(16): a.e(f"v_exp_f32 v{fS+16+i}, v{fS+16+i}")
a.e("s_nop 0")
for i in range(8): a.e(f"v_cvt_pk_bf16_f32 v{vP+i}, v{fS+16+2*i}, v{fS+17+2*i}")
a.e("s_nop 1")
for g in range(2):
    a.e(f"v_mfma_f32_32x32x16_bf16 {vr(vSum,16)}, {vr(fV+4*g,4)}, {vr(vP+4*g,4)}, {vr(vSum,16)}")
a.e(f"s_add_u32 s{sT0}, s{sT0}, 4096\ns_cmp_lt_u32 s{sT0}, 262144\ns_cbranch_scc1 L_fb2")
a.e("s_nop 15")
scale(vSum, vPkd)
for i in range(5): a.e(f"v_min_u32 v{vPkd+i}, -2, v{vPkd+i}")
a.label("L_last")
a.e("s_branch L_ostl")
a.raw(open("footer.txt").read())
txt = a.text()
for p in check(txt): print("HAZARD", p, file=sys.stderr)
open(sys.argv[1], "w").write(txt)
if opt.debug: open(sys.argv[1] + ".stamps", "w").write("\n".join(STAMPS))
```

```python
import sys, math, struct
from asmlib import *

class Opt:
    debug = False
    prio = {0: 3, 16: 2}
    prioE = {28.5: 1}
    wsl = (2, 6, 10, 14, 18)
    ndef = 1
    prioL = {29.5: 1}
    flip = 0
    dual = 1
    pp = {2: (0, 6), 1: (2, 3), 3: (1, 10)}
    prog = ('G0 G2 G1 G3', 'R0 R2 R1 R3')
    pw = (0, 0)
    p0 = 0
    nf1 = 25
    prr = 0
    spec = ()
    npf = 8
    pdrop = 1
    force_fallback = False
    fast = True
    touch = 'ouw'
    wo0 = 4
    only = None
    dbgout = False
    pad = None
    syncs = (1, 3, 5, 7, 9, 11, 13, 15, 17, 19)
    lead = 4
    fl_at = 15
    bk = 15
    pub_at = 1
    drain = 20
    ahead = 7
    hrot = 2
    w64 = True
    dskip = 5
    kv_at = {17: (0,), 19: (1,), 20: (2,)}
    kv_a = {21: (0, 1, 2)}
    skv = 2
    head = "kKp12w3ssss"
    upers = 2
    bprio = 2
    epoll = 2
    pge = 0
    dmode = ""
    align = 8
    dry = False
    xfirst = True
    poll_at = 36
    otouch = ' sc1'
    smart = True
    pstep_e = 0
    oa_e = 8
    pstep = 0
    oa_at = 13
    npre_e = 10
    prl = 1
    pre = 3
    outpol = ""
    opol = {"e": "", "l": ""}
    epar = 0
    cpf = True
    pk = False
    chk1 = True
    clr_at = 10
    phase = None
    hops = {}
    npre = 40
opt = Opt()
for x in sys.argv[2:]:
    k, v = x.split("=", 1)
    setattr(opt, k, eval(v))

A_KV = 0
A_F1 = 262144
A_EP = A_F1 + 65536
A_F2 = 524288
A_O = 1 << 20
A_DBG = 4 << 20
WS_BYTES = 8 << 20
OOB = 0x40000000
L_W = 0
P_R = [81920, 102400, 122880, 0, 20480]
P_KVW = 122880
L_S = 102400
L_Q2 = 143360
L_FLG = 153600
L_F01 = 153632
L_FL = 153888
LDS_BYTES = 163840
sX, sWQ, sWKV, sWO, sOUT, sWS = 20, 24, 28, 32, 36, 40
sW, sTT, sKH, sHG, sTB, sT, sTK, sTAG, sXCD, sR = 44, 45, 46, 47, 48, 49, 50, 51, 52, 53
sT0, sT1, sT2, sT3 = 54, 55, 56, 57
sKV = 58
sXCC = 59
sO0, sO1 = 60, 61
sHGO = 62
sM0B = 63
sSPIN = 64
sOB = 65
sWQB = 66
sRG = 67
sMSK = 72
sC0 = 74
sF2 = 76
sJH, sJE, sCA, sCX = 77, 78, 79, 80
sJ, sU, sPAR, sISS, sDEF = 81, 82, 83, 84, 85
sPJ = 86
sOJ = 67
sCC = 3
sPE, sE0, sE1 = 69, 70, 71
L_X = 154112
vLane, vL16, vK1a, vVa, vFa, vWoA, vWoB, vTr, vA0, vA1, vE0, vL0, vFlag, vT0, vT1, vL8 = range(1, 17)
vQ = [18, 22, 26, 30]; vQH = [34, 36]
vS = [38, 70]
vP = 102
vO = 118
vKr = 182
vVr = 200
vR1 = 224
vXf = 38; vAcc = 118; vFr = 138
vW40, vXp = 224, 225
vXa = 226
vQa = 231
vCx, vCw = 237, 238
vCx2, vXp1 = 247, 248
vSt = 240
vT2, vT3 = 241, 242
vTq0, vTq1, vM2w, vM2h = 243, 244, 245, 246
vX1, vFe = 255, 248
vPw, vPx = 249, 254
vRa, vRb, vRs, vGo = 250, 251, 252, 253

a = Asm()
nstamp = [0]
STAMPS = []
def stamp(name):
    if opt.pad == name: a.e("s_memrealtime s[92:93]")
    if not opt.debug: return
    if opt.only is not None and name not in opt.only and not (name.startswith("A:") and "A" in opt.only): return
    i = nstamp[0]; nstamp[0] += 1
    a.c(f"stamp {i}: {name}")
    a.e("s_memrealtime s[98:99]\ns_memtime s[100:101]")
    a.wait_lg0()
    a.e(f"v_writelane_b32 v17, s98, {i}\nv_writelane_b32 v17, s100, {32+i}")
    STAMPS.append(name)
def stamp_at(i):
    if not opt.debug: return
    if opt.only is not None and "A" not in opt.only: return
    a.e("s_memrealtime s[98:99]\ns_memtime s[100:101]")
    a.wait_lg0()
    a.e(f"v_writelane_b32 v17, s98, {i}\nv_writelane_b32 v17, s100, {32+i}")
import re
LIGHT = dict(zip([x for x in (opt.only or ()) if re.match(r"^([cdhtkrg]\d+|cA)$", x)], [0, 4, 6, 8, 10, 16, 12, 14, 18, 20, 22, 24, 26, 28, 30])) if opt.debug else {}
def light(name):
    if not opt.debug or opt.only is None or name not in opt.only: return
    assert name in LIGHT
    a.e(f"s_mem{'real' if name[0] == 'r' else ''}time {sr(LIGHT[name],2)}")
def srd(base, lo, nbytes):
    a.e(f"s_mov_b32 s{base}, s{lo}\ns_mov_b32 s{base+1}, s{lo+1}\ns_mov_b32 s{base+2}, {nbytes}\ns_mov_b32 s{base+3}, 0x00020000")
def trd(f, i, t, tag):
    off = i * 5120 + 32 * t
    base = vTr
    for q in range(2):
        a.lds(f"ds_read_b64_tr_b16 {vr(f+2*q,2)}, v{base} offset:{off+q*2560}", tag)
slow_stubs = []
HOPRET = {}
def hop(site):
    tg = opt.hops.get(site)
    if not tg: return
    a.e("s_mov_b64 exec, 0")
    for j, t in enumerate(tg):
        if t is None: continue
        assert t not in HOPRET
        HOPRET[t] = site
        a.e(f"s_cmp_eq_u32 s{sJ}, {j}\ns_cbranch_scc1 H_{t}")
    a.label(f"R_{site}")
    a.e("s_mov_b64 exec, -1")

a.raw(open("header.txt").read().replace("@LDS@", str(LDS_BYTES)).replace(".p2align 8", f".p2align 12\n.fill {opt.phase//4}, 4, 0xbf810000" if opt.phase is not None else f".p2align {opt.align}"))
a.e("s_cmp_ge_u32 s2, 256\ns_cbranch_scc1 L_end")
a.e("s_load_dwordx16 s[4:19], s[0:1], 0")
if opt.pad == "start": a.e("s_memrealtime s[92:93]")
if opt.debug:
    a.e("v_mov_b32 v17, 0\ns_memrealtime s[94:95]\ns_memtime s[96:97]"); nstamp[0] = 2; STAMPS.append("start"); STAMPS.append("karg")
def xtile(j):
    if j: a.e(f"s_add_u32 s{sT3}, s{sTK}, {j}\ns_and_b32 s{sT3}, s{sT3}, 3\ns_mul_i32 s{sT1}, s{sT3}, 20480\ns_add_u32 s{sT0}, s{sT1}, s{sJH}\ns_add_u32 s{sT1}, s{sT1}, s{sJE}")
    for i in range(5):
        a.e(f"s_add_u32 m0, s{sT1}, {1920*i}\ns_nop 0")
        a.vload(f"buffer_load_dwordx4 v{vXp}, {sr(sX,4)}, s{sT0} offen offset:{128*i} lds", ("x",))
def skv(role):
    if role == "B" or opt.skv == 1: a.e(f"""s_bitcmp1_b32 s{sHG}, 0
s_cselect_b32 s{sWKV}, s10, s8
s_cselect_b32 s{sWKV+1}, s11, s9""")
    if opt.skv == 2 and role == "B":
        a.e(f"s_mov_b64 exec, 15\nbuffer_load_dword v{vT2}, v{vT3}, {sr(sWKV,4)}, s{sCC} offen\ns_mov_b64 exec, -1")
    if opt.skv == 1:
        a.e(f"s_add_u32 s{sMSK}, s{sWKV}, s{sCC}\ns_addc_u32 s{sMSK+1}, s{sWKV+1}, 0")
        for o in (0, 64, 128, 196): a.e(f"s_load_dword s{sISS}, {sr(sMSK,2)}, {o}")
    if "q" in opt.touch and role == "B": a.e(f"s_load_dword s{sISS}, s[6:7], s{sRG}")
    a.e(f"s_load_dword s{sTAG}, s[18:19], {A_EP}")
    if opt.debug: a.e("v_writelane_b32 v17, s94, 0\nv_writelane_b32 v17, s96, 32")
def tagwait():
    a.e(f"s_waitcnt lgkmcnt(0)\ns_mul_i32 s{sTAG}, s{sTAG}, 1664525\ns_add_u32 s{sTAG}, s{sTAG}, 1013904223")
    if opt.debug: a.e("v_writelane_b32 v17, s90, 1\nv_writelane_b32 v17, s92, 33")
def su0():
    srd(sWS, 18, WS_BYTES); srd(sWO, 12, 819200); srd(sOUT, 14, 2621440)
    a.e(f"""s_lshr_b32 s{sU}, s{sW}, 2
s_lshr_b32 s{sTT}, s{sW}, 1
{f"s_xor_b32 s{sTT}, s{sTT}, s{sU}" if opt.flip else "s_nop 0"}
s_and_b32 s{sPAR}, s{sTT}, 1
{f's_xor_b32 s{sPE}, s{sPAR}, s{sU}' if opt.dual else f's_mov_b32 s{sPE}, s{sPAR}'}
s_and_b32 s{sKH}, s{sW}, 1
s_mov_b32 s{sDEF}, 0
s_lshl_b32 s{sT}, s{sTB}, 2
s_add_u32 s{sT}, s{sT}, s{sTT}
s_mul_i32 s{sM0B}, s{sW}, 640
s_getreg_b32 s{sXCC}, hwreg(HW_REG_XCC_ID, 0, 3)
s_mov_b32 s{sSPIN}, 0""")
def su1():
    a.e(f"""s_mul_i32 s{sOB}, s{sT}, 20480
s_add_u32 s{sOB}, s{sOB}, {A_O}
s_lshl_b32 s{sT2}, s{sHGO}, 4
s_add_u32 s{sT2}, s{sT2}, s{sOB}
s_lshl_b32 s{sT3}, s{sKH}, 10
s_add_u32 s{sO0}, s{sT2}, s{sT3}
s_lshl_b32 s{sT3}, s{sKH}, 2
s_add_u32 s{sO1}, s{sT2}, s{sT3}
s_add_u32 s{sO1}, s{sO1}, 2048
s_lshl_b32 s{sF2}, s{sT}, 4
s_lshl_b32 s{sT0}, s{sHG}, 1
s_add_u32 s{sT0}, s{sT0}, s{sKH}
s_add_u32 s{sF2}, s{sF2}, s{sT0}
s_lshl_b32 s{sF2}, s{sF2}, 7
s_add_u32 s{sF2}, s{sF2}, {A_F2}
s_mul_i32 s{sT1}, s{sJ}, 25600
v_mul_u32_u24 v{vTq0}, 40, v{vLane}
v_and_b32 v{vT0}, 3, v{vLane}
v_lshlrev_b32 v{vT0}, 5, v{vT0}
v_sub_u32 v{vTr}, v{vTq0}, v{vT0}
v_add_u32 v{vTr}, s{sT1}, v{vTr}""")
def su2():
    a.e(f"""v_mul_u32_u24 v{vT0}, 6554, v{vLane}
v_lshrrev_b32 v{vT0}, 16, v{vT0}
v_mul_u32_u24 v{vT1}, 10, v{vT0}
v_sub_u32 v{vT1}, v{vLane}, v{vT1}
v_lshlrev_b32 v{vT1}, 4, v{vT1}
v_mul_u32_u24 v{vWoA}, 1280, v{vT0}
v_add_u32 v{vWoA}, v{vWoA}, v{vT1}
v_lshrrev_b32 v{vWoB}, 1, v{vT0}
v_mul_u32_u24 v{vWoB}, 38, v{vWoB}
v_add_u32 v{vWoB}, v{vWoB}, v{vT0}
v_mul_u32_u24 v{vWoB}, 1280, v{vWoB}
v_add_u32 v{vWoB}, v{vWoB}, v{vT1}
s_and_b32 s{sT0}, s{sJ}, 1
s_mul_i32 s{sT0}, s{sT0}, 20
s_and_b32 s{sT1}, s{sJ}, 2
s_lshl_b32 s{sT2}, s{sT1}, 1
s_add_u32 s{sT2}, s{sT2}, s{sT0}
s_lshl_b32 s{sT3}, s{sU}, 3
s_add_u32 s{sT2}, s{sT2}, s{sT3}
s_mul_i32 s{sT2}, s{sT2}, 1280
v_add_u32 v{vWoA}, s{sT2}, v{vWoA}
s_add_u32 s{sT0}, s{sT0}, s{sT1}
s_xor_b32 s{sT3}, s{sU}, s{sHG}
s_andn2_b32 s{sT3}, 1, s{sT3}
s_mul_i32 s{sT3}, s{sT3}, 80
s_add_u32 s{sT0}, s{sT0}, s{sT3}
s_add_u32 s{sT0}, s{sT0}, 16
s_mul_i32 s{sT0}, s{sT0}, 1280
v_add_u32 v{vWoB}, s{sT0}, v{vWoB}""")
def su3():
    for j in range(4):
        a.e(f"s_xor_b32 s{sT0}, s{sHG}, {j ^ 3}\ns_and_b32 s{sT0}, s{sT0}, 3\ns_mul_i32 s{sT0}, s{sT0}, 102400\ns_add_u32 s{sPJ+j}, s{sT0}, s{sHGO}")
    a.e(f"""s_lshl_b32 s{sT1}, s{sU}, 1
s_add_u32 s{sT1}, s{sT1}, s{sKH}
s_mul_i32 s{sT0}, s{sT1}, 12288
s_add_u32 s{sT0}, s{sT0}, {L_S}
v_add_u32 v{vA0}, s{sT0}, v{vL16}
s_xor_b32 s{sT0}, s{sT1}, 1
s_mul_i32 s{sT0}, s{sT0}, 12288
s_add_u32 s{sT0}, s{sT0}, {L_S}
v_add_u32 v{vA1}, s{sT0}, v{vL16}
s_mul_i32 s{sT0}, s{sPE}, 6144
v_add_u32 v{vE0}, s{sT0}, v{vA1}
s_mul_i32 s{sT0}, s{sPE}, 9216
v_add_u32 v{vL0}, s{sT0}, v{vA0}""")
def su4():
    a.e(f"""v_and_b32 v{vT0}, 31, v{vLane}
v_lshlrev_b32 v{vK1a}, 4, v{vT0}
v_lshrrev_b32 v{vT1}, 5, v{vLane}
v_mul_u32_u24 v{vT1}, 384, v{vT1}
v_add_u32 v{vVa}, v{vK1a}, v{vT1}
v_mov_b32 v{vT1}, {OOB}
s_mov_b32 vcc_lo, 0xff880000
s_mov_b32 vcc_hi, 0xff880000
v_cndmask_b32 v{vVa}, v{vVa}, v{vT1}, vcc
v_lshlrev_b32 v{vL8}, 3, v{vLane}
s_lshl_b32 s{sT0}, s{sPAR}, 1
s_add_u32 s{sT0}, s{sT0}, s{sKH}
s_lshl_b32 s{sKV}, s{sXCD}, 15
s_lshl_b32 s{sT1}, s{sT0}, 13
s_add_u32 s{sKV}, s{sKV}, s{sT1}
v_lshrrev_b32 v{vFa}, 3, v{vLane}
v_add_u32 v{vFa}, s{sXCD}, v{vFa}
v_and_b32 v{vFa}, 7, v{vFa}
v_lshlrev_b32 v{vFa}, 5, v{vFa}
v_and_b32 v{vT1}, 7, v{vLane}
v_add_u32 v{vFa}, v{vFa}, v{vT1}
v_lshlrev_b32 v{vFa}, 7, v{vFa}
s_lshl_b32 s{sT1}, s{sT0}, 10
s_add_u32 s{sT1}, s{sT1}, {A_F1}
v_add_u32 v{vFa}, s{sT1}, v{vFa}
s_lshl_b32 s{sT1}, s{sT0}, 6
s_add_u32 s{sT1}, s{sT1}, {L_F01}
v_lshl_add_u32 v{vXp1}, v{vLane}, 2, s{sT1}""")
def su5():
    a.e(f"""s_and_b32 s{sT0}, s{sTT}, 2
s_mul_i32 s{sT0}, s{sT0}, 2560
s_add_u32 s{sT0}, s{sT0}, {L_Q2}
s_add_u32 s{sT1}, s{sT0}, 2560
v_lshrrev_b32 v{vT0}, 5, v{vLane}
v_lshl_add_u32 v{vT0}, v{vT0}, 10, v{vK1a}
s_lshl_b32 s{sT2}, s{sKH}, 9
s_xor_b32 s{sT3}, s{sT2}, 512
v_add_u32 v{vT1}, s{sT3}, v{vT0}
v_add_u32 v{vQa}, s{sT0}, v{vT1}
v_add_u32 v{vQa+2}, s{sT1}, v{vT1}
v_add_u32 v{vT1}, s{sT2}, v{vT0}
v_add_u32 v{vQa+1}, s{sT0}, v{vT1}
v_add_u32 v{vQa+3}, s{sT1}, v{vT1}
s_lshr_b32 s{sT3}, s{sT3}, 1
v_xor_b32 v{vT1}, s{sT3}, v{vL8}
v_add_u32 v{vQa+4}, s{sT0}, v{vT1}
v_add_u32 v{vQa+5}, s{sT1}, v{vT1}""")
def touch():
    if "o" in opt.touch: a.e(f"s_load_dword s{sISS}, s[18:19], s{sO0}")
    if "u" in opt.touch: a.e(f"s_mul_i32 s{sT0}, s{sT}, 20480\ns_add_u32 s{sT0}, s{sT0}, s{sHGO}\ns_load_dword s{sISS}, s[14:15], s{sT0}")
    if "w" in opt.touch: a.e(f"s_load_dword s{sISS}, s[12:13], s{sHGO}")
def sub():
    a.e(f"v_and_b32 v{vSt}, 0xfffff3ff, v{vFa}\nv_or_b32 v{vSt}, s{sWQB}, v{vSt}")
    a.e(f"s_lshl_b32 s{sT0}, s{sJ}, 6\ns_add_u32 s{sT0}, s{sT0}, {L_F01}\nv_lshl_add_u32 v{vCx}, v{vLane}, 2, s{sT0}")
    a.e(f"v_lshlrev_b32 v{vT0}, 2, v{vLane}\nv_add_u32 v{vT0}, {L_FL}, v{vT0}\nv_mov_b32 v{vT1}, 0\ns_mov_b64 exec, 0xffff\nds_write_b32 v{vT0}, v{vT1}\ns_mov_b64 exec, -1")
def sur():
    a.e(f"""v_mul_u32_u24 v{vT0}, 52, v{vLane}
v_lshrrev_b32 v{vT0}, 9, v{vT0}
s_mul_i32 s{sT0}, s{sJ}, 704
v_lshl_add_u32 v{vRa}, v{vT0}, 4, v{vL16}
v_add_u32 v{vRa}, s{sT0}, v{vRa}
v_add_u32 v{vRb}, 51200, v{vRa}
v_add_u32 v{vRs}, {L_S}, v{vRa}
v_mul_u32_u24 v{vGo}, 1120, v{vT0}
v_add_u32 v{vGo}, v{vGo}, v{vL16}
s_mul_i32 s{sOB}, s{sTB}, 81920
s_mul_i32 s{sT0}, s{sJ}, 5120
s_add_u32 s{sOB}, s{sOB}, s{sT0}
s_add_u32 s{sOB}, s{sOB}, s{sHGO}""")
def suw(g=1):
    a.e(f"""v_and_b32 v{vPw}, 15, v{vLane}
v_mul_u32_u24 v{vPw}, 176, v{vPw}
v_bfe_u32 v{vT1}, v{vLane}, 4, 1
s_mul_i32 s{sT0}, s{sJ}, 5632
s_add_u32 s{sT0}, s{sT0}, {L_S + 24576*g}
v_mul_u32_u24 v{vT1}, 2816, v{vT1}
v_add3_u32 v{vPw}, v{vPw}, v{vT1}, s{sT0}
v_lshrrev_b32 v{vT1}, 5, v{vLane}
v_lshl_add_u32 v{vPw}, v{vT1}, 4, v{vPw}""" + ("" if g else f"\nv_mov_b32 v{vGo}, 0\ns_mul_i32 s{sT0}, s{sJ}, {25600-5632}\ns_sub_u32 s{sT0}, s{sT0}, {L_S}\nv_add_u32 v{vPx}, s{sT0}, v{vPw}"))
SU = [su0, su1, su2, su3, su4, su5]
def kslot(t): return vKr + 6 * (t % 3)
def vslot(t): return vVr + 8 * (t % 3)
def k_loads(t):
    b = kslot(t)
    return [(f"buffer_load_dwordx4 {vr(b,4)}, v{vL16}, {sr(sWS,4)}, s{sKV} offen sc1", ("k", t)),
            (f"buffer_load_dwordx2 {vr(b+4,2)}, v{vK1a}, {sr(sWS,4)}, s{sKV} offen offset:1024 sc1", ("k", t))]
def v_loads(t):
    b = vslot(t)
    return [(f"buffer_load_dwordx4 {vr(b,4)}, v{vVa}, {sr(sWS,4)}, s{sKV} offen offset:1536 sc1", ("v", t)),
            (f"buffer_load_dwordx4 {vr(b+4,4)}, v{vVa}, {sr(sWS,4)}, s{sKV} offen offset:2304 sc1", ("v", t))]
def kv_advance(t):
    if t % 2 == 0: a.e(f"s_add_u32 s{sKV}, s{sKV}, 4096")
    else: a.e(f"s_add_u32 s{sKV}, s{sKV}, {32768-4096}\ns_and_b32 s{sKV}, s{sKV}, 0x3ffff")
FLOAD = f"buffer_load_dword v{vFlag}, v{vFa}, {sr(sWS,4)}, 0 offen sc1"
def flag_cmp(): a.e(f"v_cmp_ne_u32 {sr(sMSK,2)}, s{sTAG}, v{vFlag}")
def chunk_check(c):
    a.e(f"s_and_b32 s{sT0}, s{sMSK + c//4}, 0x{0xff << (8*(c%4)):x}\ns_cbranch_scc1 L_slow{c}")
    a.label(f"L_back{c}")
    slow_stubs.append(c)
nref = [0]
def flag_refresh():
    k = nref[0]; nref[0] += 1
    a.e(f"s_or_b32 s{sT0}, s{sMSK}, s{sMSK+1}\ns_cbranch_scc0 L_ref{k}\ns_mov_b64 exec, {sr(sMSK,2)}\n{FLOAD}\ns_mov_b64 exec, -1")
    a.label(f"L_ref{k}")
def first_kv(part):
    if part == 0:
        for x in k_loads(0): a.vload(*x)
        return
    if part == 1:
        for x in v_loads(0): a.vload(*x)
        kv_advance(0)
        return
    for x in k_loads(1): a.vload(*x)
a.e(f"""v_lshrrev_b32 v{vT0}, 6, v0
v_and_b32 v{vLane}, 63, v0
s_and_b32 s{sXCD}, s2, 7
s_lshr_b32 s{sT0}, s2, 3
v_readfirstlane_b32 s{sW}, v{vT0}
s_and_b32 s{sHG}, s{sT0}, 7
s_lshr_b32 s{sR}, s{sT0}, 3
s_lshl_b32 s{sTB}, s{sXCD}, 2
s_add_u32 s{sTB}, s{sTB}, s{sR}
v_lshrrev_b32 v{vT0}, 4, v0
v_xor_b32 v{vT0}, v{vT0}, v0
v_and_b32 v{vT0}, 7, v{vT0}
v_bfe_u32 v{vXp}, v0, 3, 4
v_mul_u32_u24 v{vXp}, 1280, v{vXp}
v_lshl_add_u32 v{vXp}, v{vT0}, 4, v{vXp}
s_and_b32 s{sJ}, s{sW}, 3
s_lshr_b32 s{sTK}, s{sHG}, 1
s_lshr_b32 s{sT1}, s{sJ}, 1
s_mul_i32 s{sT1}, s{sT1}, 640
s_mul_i32 s{sJH}, s{sTB}, 81920
s_add_u32 s{sJH}, s{sJH}, s{sT1}
s_and_b32 s{sJE}, s{sJ}, 1
s_lshl_b32 s{sJE}, s{sJE}, 6
s_add_u32 s{sJE}, s{sJE}, s{sT1}
s_lshl_b32 s{sJE}, s{sJE}, 4
v_lshlrev_b32 v{vL16}, 4, v{vLane}
s_mov_b32 s{sX+2}, 2621440
s_mov_b32 s{sX+3}, 0x00020000
""" + (f"""s_lshr_b32 s{sCC}, s2, 4
s_lshl_b32 s{sCC}, s{sCC}, 3
s_add_u32 s{sCC}, s{sCC}, s{sW}
s_mul_i32 s{sCC}, s{sCC}, 200
""" if opt.skv == 1 else "") + f"""s_mul_i32 s{sCA}, s{sJ}, 6400
s_mul_i32 s{sHGO}, s{sHG}, 160
s_cmp_lt_u32 s{sW}, 4
s_cbranch_scc0 L_b1""")
a.e(f"""s_mul_i32 s{sCX}, s{sTK}, 20480
s_add_u32 s{sT0}, s{sCX}, s{sJH}
s_add_u32 s{sT1}, s{sCX}, s{sJE}
s_waitcnt lgkmcnt(0)
s_mov_b32 s{sX}, s4
s_mov_b32 s{sX+1}, s5""")
if opt.debug: a.e("s_memrealtime s[90:91]\ns_memtime s[92:93]")
xtile(0)
skv("A")
light("d0")
a.e("s_branch L_a2")
a.label("L_b1")
a.vm = []
if opt.cpf:
    a.e(f"s_getpc_b64 {sr(sC0,2)}")
    a.label("L_pc")
    a.e(f"""s_lshr_b32 s{sT0}, s2, 3
s_lshl_b32 s{sT0}, s{sT0}, 2
s_add_u32 s{sT0}, s{sT0}, s{sJ}
s_lshl_b32 s{sT0}, s{sT0}, 8
v_lshlrev_b32 v{vT0}, 7, v{vLane}
v_add_u32 v{vT0}, s{sT0}, v{vT0}
v_min_u32 v{vT0}, L_last-L_pc, v{vT0}
s_mov_b64 exec, 3
global_load_dword v{vT2}, v{vT0}, {sr(sC0,2)}
s_mov_b64 exec, -1""")
vWa = 38
def waddr():
    a.e(f"v_and_b32 v{vWa+5}, 255, v0\ns_movk_i32 s{sT0}, 1120\ns_movk_i32 s{sT1}, 1280\ns_movk_i32 s{sT2}, -960")
    for m in range(5):
        d = vWa + m
        if m: a.e(f"v_add_u32 v{vWa+5}, 256, v{vWa+5}")
        a.e(f"""v_mul_u32_u24 v{vT1}, 6554, v{vWa+5}
v_lshlrev_b32 v{d}, 4, v{vWa+5}
v_lshrrev_b32 v{vT1}, 16, v{vT1}
v_mad_u32_u24 v{d}, v{vT1}, s{sT0}, v{d}
v_and_b32 v{vT0}, 12, v{vT1}
v_mad_u32_u24 v{d}, v{vT0}, s{sT1}, v{d}
v_and_b32 v{vT0}, 16, v{vT1}
v_mad_i32_i24 v{d}, v{vT0}, s{sT2}, v{d}""")
def slab_b(sl):
    rho, e = divmod(sl, 4)
    if e == 0 and rho: a.e(f"s_add_u32 s{sRG}, s{sRG}, 163840\ns_sub_u32 s{sRG+1}, s{sRG}, 819200\ns_min_u32 s{sRG}, s{sRG}, s{sRG+1}")
    for m in ((0, 1) if e == 0 else (e + 1,)):
        a.e(f"s_add_u32 m0, s{sWQB}, {P_R[rho] + 4096*m}\ns_nop 0")
        a.vload(f"buffer_load_dwordx4 v{vWa+m}, {sr(sWQ,4)}, s{sRG} offen lds", ("w", sl))
def wkv_dma(half):
    if half == 0:
        a.e(f"s_add_u32 m0, s{sCA}, {P_KVW}\ns_nop 0")
        for i in range(4): a.vload(f"buffer_load_dwordx4 v{vL16}, {sr(sWKV,4)}, s{sCA} offen offset:{1024*i} lds", ("kv",))
        return
    a.e(f"s_add_u32 m0, s{sCA}, {P_KVW+4096}\ns_add_u32 s{sT0}, s{sCA}, 4096")
    for i in range(3):
        if i == 2: a.e("s_mov_b64 exec, 0xffff")
        a.vload(f"buffer_load_dwordx4 v{vL16}, {sr(sWKV,4)}, s{sT0} offen offset:{1024*i} lds", ("kv",))
    a.e("s_mov_b64 exec, -1")
a.e(f"""s_mov_b32 s{sWKV+2}, 25600
s_mov_b32 s{sWKV+3}, 0x00020000
s_mov_b32 s{sWQ+2}, 819200
s_mov_b32 s{sWQ+3}, 0x00020000
s_lshl_b32 s{sWQB}, s{sJ}, 10
s_mul_i32 s{sRG}, s{sR}, 163840
s_add_u32 s{sRG}, s{sRG}, s{sHGO}""")
if opt.skv == 2: a.e(f"v_lshlrev_b32 v{vT3}, 7, v{vLane}\ns_lshr_b32 s{sCC}, s2, 4\ns_lshl_b32 s{sCC}, s{sCC}, 2\ns_add_u32 s{sCC}, s{sCC}, s{sJ}\ns_lshl_b32 s{sCC}, s{sCC}, 9")
if "a" not in opt.head: waddr()
a.e("s_waitcnt lgkmcnt(0)")
if opt.debug: a.e("s_memrealtime s[90:91]\ns_memtime s[92:93]")
skv("B")
a.e(f"s_mov_b32 s{sX}, s4\ns_mov_b32 s{sX+1}, s5\ns_mov_b32 s{sWQ}, s6\ns_mov_b32 s{sWQ+1}, s7")
kst = nstamp[0]
if opt.debug and (opt.only is None or "A" in opt.only):
    nstamp[0] += 3; STAMPS += ["A:data B:x", "A:chain B:k", "A:pub B:last"]
F0 = f"s_mov_b64 exec, 0xffff\nbuffer_load_dword v{vT1}, v{vSt}, {sr(sWS,4)}, 0 offen sc1\ns_mov_b64 exec, -1"
nsl = 0
todo = SU[:2] + [touch] + SU[2:] + [sub, sur, suw]
for k, ch in enumerate(opt.head):
    if ch == "k": light("cA"); wkv_dma(0)
    elif ch == "K": wkv_dma(1); light("c0")
    elif ch == "a": waddr()
    elif ch == "p": a.e(f"s_setprio {opt.bprio}")
    elif ch in "123": xtile(int(ch))
    elif ch == "s": slab_b(nsl); nsl += 1
    elif ch == "u": todo.pop(0)()
    elif ch == "w": light("c1"); a.wait_vm(("kv",)); light("c2"); a.e("s_barrier")
assert nsl <= 8
light("c3")
tagwait()
a.wait_vm(("x",)); light("c4"); stamp_at(kst); a.e("s_barrier")
for sl in range(20 + opt.lead):
    if nsl <= sl < 20: slab_b(sl)
    if sl == opt.fl_at:
        assert not todo
        a.e(F0); a.vm.append(("f0",))
    d = sl - opt.lead
    if d in opt.syncs:
        for k in range(opt.upers):
            if todo: todo.pop(0)()
        for p in opt.kv_at.get(d, ()): first_kv(p)
        hop(f"B{d}")
        a.wait_vm_if(("w", d))
        if d == opt.bk:
            assert sl >= 19
            a.wait_vm_if(("f0",))
            a.label("L_f0")
            a.e(f"s_mov_b64 exec, 0xff\nv_cmp_ne_u32 vcc, s{sTAG}, v{vT1}\ns_cbranch_vccnz L_slowf0\ns_mov_b64 exec, 0xffff\nds_write_b32 v{vCx}, v{vT1}\ns_mov_b64 exec, -1")
            stamp_at(kst + 1)
        if d == 19: stamp_at(kst + 2)
        a.e("s_barrier")
for p in opt.kv_at.get(20, ()): first_kv(p)
hop("B20")
vm_join = list(a.vm)
a.e("s_waitcnt lgkmcnt(0)\ns_barrier")
a.e("s_branch L_bq")
a.label("L_a2")
cX, cW, cA, cR = 38, 98, 78, 138
light("d1")
for f in SU: f()
suw(0)
a.e(f"""s_add_u32 s{sCA}, s{sCA}, {P_KVW}
v_bfe_u32 v{vT0}, v{vLane}, 1, 3
v_lshrrev_b32 v{vT1}, 4, v{vLane}
v_xor_b32 v{vT0}, v{vT0}, v{vT1}
v_and_b32 v{vT1}, 15, v{vLane}
v_lshlrev_b32 v{vT1}, 7, v{vT1}
v_lshl_add_u32 v{vT0}, v{vT0}, 4, v{vT1}
s_lshl_b32 s{sT2}, s{sKH}, 6
v_xor_b32 v{vCx}, s{sT2}, v{vT0}
s_mul_i32 s{sT2}, s{sKH}, 3072
s_add_u32 s{sT2}, s{sT2}, s{sJE}
s_add_u32 s{sT2}, s{sT2}, s{sCX}
v_add_u32 v{vCx}, s{sT2}, v{vCx}
s_lshl_b32 s{sT2}, s{sKH}, 11
v_xor_b32 v{vCx2}, 64, v{vCx}
v_add_u32 v{vCx2}, s{sT2}, v{vCx2}
v_add_u32 v{vTq1}, {P_R[0]}, v{vTq0}
s_mul_i32 s{sT0}, s{sJ}, 20480
v_add_u32 v{vT0}, s{sT0}, v{vT0}
s_lshl_b32 s{sT0}, s{sR}, 12""")
for rho in range(5):
    if rho: a.e(f"s_add_u32 s{sT0}, s{sT0}, 4096\ns_sub_u32 s{sT1}, s{sT0}, 20480\ns_min_u32 s{sT0}, s{sT0}, s{sT1}")
    a.e(f"v_add_u32 v{vXa+rho}, s{sT0}, v{vT0}")
a.e(f"""v_lshrrev_b32 v{vT0}, 4, v{vLane}
v_bfe_u32 v{vT1}, v{vLane}, 2, 2
v_lshl_add_u32 v{vT0}, v{vT0}, 3, v{vT1}
v_mul_u32_u24 v{vT0}, 40, v{vT0}
v_add_u32 v{vT0}, s{sCA}, v{vT0}
v_and_b32 v{vT1}, 3, v{vLane}
v_lshlrev_b32 v{vT1}, 4, v{vT1}
v_min_u32 v{vCw}, 32, v{vT1}
v_add_u32 v{vCw}, v{vCw}, v{vT0}
v_add_u32 v{vT1}, 8, v{vT1}
v_min_u32 v{vCw+1}, 32, v{vT1}
v_add_u32 v{vCw+1}, v{vCw+1}, v{vT0}
s_mul_i32 s{sT0}, s{sJ}, 2560
s_add_u32 s{sT0}, s{sT0}, {L_Q2}
v_add_u32 v{vM2w}, s{sT0}, v{vL16}
v_add_u32 v{vM2h}, s{sT0}, v{vL8}
s_add_u32 s{sT1}, s{sW}, {L_FLG}
v_mov_b32 v{vT3}, s{sT1}
v_mov_b32 v{vFlag}, 0
s_mov_b64 exec, 1
ds_write_b8 v{vT3}, v{vFlag}
s_mov_b64 exec, -1
v_mov_b32 v{vFlag}, 1""")
a.e(f"""s_bitcmp1_b32 s{sHG}, 0
s_cbranch_scc1 L_ofv
v_lshrrev_b32 v{vT0}, 4, v{vLane}
v_and_b32 v{vT1}, 15, v{vLane}
v_lshlrev_b32 v{vT1}, 4, v{vT1}
v_lshl_add_u32 v{vSt}, v{vT0}, 9, v{vT1}
s_and_b32 s{sT1}, s{sTK}, 1
s_lshl_b32 s{sT1}, s{sT1}, 8
s_branch L_ofd""")
a.label("L_ofv")
a.e(f"""v_and_b32 v{vT0}, 7, v{vLane}
v_lshlrev_b32 v{vT0}, 2, v{vT0}
v_mov_b32 v{vT1}, 0x73625410
v_lshrrev_b32 v{vT0}, v{vT0}, v{vT1}
v_and_b32 v{vT0}, 7, v{vT0}
v_add_u32 v{vT0}, 16, v{vT0}
v_and_b32 v{vT1}, 4, v{vLane}
v_lshlrev_b32 v{vT1}, 1, v{vT1}
v_and_b32 v{vT2}, 3, v{vLane}
v_add_u32 v{vT1}, v{vT1}, v{vT2}
v_lshrrev_b32 v{vT2}, 5, v{vLane}
v_lshl_add_u32 v{vT1}, v{vT2}, 2, v{vT1}
s_mov_b32 vcc_lo, 0xff00ff00
s_mov_b32 vcc_hi, 0xff00ff00
v_cndmask_b32 v{vT0}, v{vT1}, v{vT0}, vcc
v_bfe_u32 v{vT1}, v{vLane}, 4, 1
v_mul_u32_u24 v{vT1}, 384, v{vT1}
v_lshl_add_u32 v{vSt}, v{vT0}, 4, v{vT1}
s_and_b32 s{sT1}, s{sTK}, 1
s_mul_i32 s{sT1}, s{sT1}, 768
s_add_u32 s{sT1}, s{sT1}, 1536""")
a.label("L_ofd")
a.e(f"""s_lshl_b32 s{sT0}, s{sTB}, 13
s_lshr_b32 s{sT2}, s{sTK}, 1
s_lshl_b32 s{sT2}, s{sT2}, 12
s_add_u32 s{sT0}, s{sT0}, s{sT2}
s_add_u32 s{sT0}, s{sT0}, s{sT1}
v_add_u32 v{vT2}, s{sCA}, v{vL16}""")
light("d2")
tagwait()
light("d3")
a.e("s_waitcnt vmcnt(0)")
light("cA")
a.e("s_barrier")
stamp_at(kst)
light("c0")
def cw_read(i):
    a.lds(f"ds_read_b128 {vr(cX+4*i,4)}, v{vCx2 if i%2 else vCx} offset:{2048*(i//2)}", ("cx", i))
    for h in range(2):
        for q in range(2):
            a.lds(f"ds_read_b64_tr_b16 {vr(cW+8*i+4*h+2*q,2)}, v{vCw+h} offset:{i*1280+q*160}", ("cw", i, h))
for i in range(5): cw_read(i)
light("c1")
a.e(f"s_bitcmp1_b32 s{sHG}, 0\ns_cbranch_scc1 L_chv")
save = list(a.lg)
for mat in range(2):
    a.lg = list(save)
    if mat: a.label("L_chv")
    for i in range(5):
        for h in range(2):
            a.wait_lg(("cw", i, h))
            W, X = vr(cW + 8 * i + 4 * h, 4), vr(cX + 4 * i, 4)
            c = "0" if i == 0 else vr(cA + 4 * h, 4)
            a.e(f"v_mfma_f32_16x16x32_bf16 {vr(cA+4*h,4)}, {W if not mat else X}, {X if not mat else W}, {c}")
    if not mat: a.e("s_branch L_chd")
a.label("L_chd")
light("c2")
a.e(f"s_cmp_eq_u32 s{sW}, 0\ns_cbranch_scc1 L_fin0\ns_nop 5")
a.e(f"ds_write_b128 v{vT2}, {vr(cA,4)}\nds_write_b128 v{vT2}, {vr(cA+4,4)} offset:1024")
a.e(f"s_mov_b64 exec, 1\nds_write_b8 v{vT3}, v{vFlag}\ns_mov_b64 exec, -1")
stamp_at(kst + 1)
hop("A")
a.e("s_branch L_bx")
a.label("L_fin0")
a.e(f"ds_read_b32 v{cR+24}, v{vT3}")
for j in range(1, 4):
    for h in range(2): a.e(f"ds_read_b128 {vr(cR+8*(j-1)+4*h,4)}, v{vT2} offset:{6400*j+1024*h}")
a.e(f"""s_add_u32 s{sSPIN}, s{sSPIN}, 1
s_cmp_lt_u32 s{sSPIN}, 1000000
s_cbranch_scc0 L_end
s_waitcnt lgkmcnt(6)
v_cmp_ne_u32 vcc, 0x01010100, v{cR+24}
s_waitcnt lgkmcnt(0)
s_cbranch_vccnz L_fin0""")
light("c3")
stamp_at(kst + 1)
for i in range(8):
    a.e(f"v_add_f32 v{cA+i}, v{cA+i}, v{cR+i}\nv_add_f32 v{cR+8+i}, v{cR+8+i}, v{cR+16+i}")
for i in range(8): a.e(f"v_add_f32 v{cA+i}, v{cA+i}, v{cR+8+i}")
SCALE = math.log2(math.e) / math.sqrt(20.0)
SCX = f"0x{struct.unpack('<I', struct.pack('<f', SCALE))[0]:08x}"
a.e(f"s_bitcmp1_b32 s{sHG}, 0\ns_cbranch_scc1 L_stv")
for i in range(8): a.e(f"v_mul_f32 v{cA+i}, {SCX}, v{cA+i}")
for i in range(4): a.e(f"v_cvt_pk_bf16_f32 v{cR+i}, v{cA+2*i}, v{cA+2*i+1}")
a.e("s_mov_b32 exec_hi, 0xffff\ns_branch L_std")
a.label("L_stv")
for i in range(4): a.e(f"v_cvt_pk_bf16_f32 v{cR+i}, v{cA+2*i}, v{cA+2*i+1}")
a.e(f"v_add_f32 v{vT0}, abs(v{cA}), abs(v{cA+1})")
for i in range(2, 8): a.e(f"v_add_f32 v{vT0}, v{vT0}, abs(v{cA+i})")
a.e(f"v_permlane32_swap_b32 v{cR}, v{cR+2}\nv_permlane32_swap_b32 v{cR+1}, v{cR+3}")
a.e(f"v_cmp_nge_f32 vcc, 0x5c000000, v{vT0}\ns_mov_b32 s{sT1}, 0x3f803f80\ns_nop 0\ns_cmp_lg_u64 vcc, 0\ns_cselect_b32 s{sT1}, 0x7f807f80, s{sT1}")
a.e("s_mov_b64 exec, 0x30003000")
for i in range(4): a.e(f"v_mov_b32 v{cR+i}, s{sT1}")
a.e("s_mov_b32 exec_lo, 0xc000c000")
for i in range(4): a.e(f"v_mov_b32 v{cR+i}, 0")
a.e("s_mov_b32 exec_lo, -1\ns_mov_b32 exec_hi, 0x00ff00ff")
a.label("L_std")
a.e(f"""buffer_store_dwordx4 {vr(cR,4)}, v{vSt}, {sr(sWS,4)}, s{sT0} offen sc1
s_mov_b64 exec, -1
s_lshl_b32 s{sCC}, s{sTB}, 3
s_add_u32 s{sCC}, s{sCC}, s{sHG}
s_lshl_b32 s{sCC}, s{sCC}, 7
s_add_u32 s{sCC}, s{sCC}, {A_F1}
v_mov_b32 v{vT1}, s{sTAG}""")
def publish():
    a.e(f"s_cmp_eq_u32 s{sW}, 0\ns_cbranch_scc0 L_pubd\ns_mov_b64 exec, 1\ns_waitcnt vmcnt(0)\nbuffer_store_dword v{vT1}, v{vL16}, {sr(sWS,4)}, s{sCC} offen sc1\ns_mov_b64 exec, -1")
    keep = list(a.lg); stamp_at(kst + 2); a.lg = keep
    a.label("L_pubd")
a.label("L_bx")
light("c4")
a.lg = []; a.vm = []
a.e("s_barrier")
stamp("Bx")
for e in range(2):
    for i in range(e, 20, 2):
        a.lds(f"ds_read_b128 {vr(vXf+4*i,4)}, v{vXa+i//4} offset:{2048*(i%4//2)}", ("x", i))
        if e == 0 and i % 4 == 2: a.e(f"v_xor_b32 v{vXa+i//4}, 64, v{vXa+i//4}")
js = [(i, t) for i in range(10) for t in range(5)]
qs = [(i, t) for i in range(20) for t in range(opt.dskip)]
for i in range(4 * opt.dskip, 20): a.e(f"v_mov_b32 v{vAcc+i}, 0")
NR1 = 11
assert opt.pub_at in opt.syncs and opt.bk in opt.syncs and 19 in opt.syncs and opt.pub_at < opt.bk
issued = 0
avail = -1
def trq(f, i, t):
    if opt.dmode == "m" and t and i > 2: return
    rho, e = divmod(i, 4)
    base, off = (vTq1, P_R[rho] - P_R[0]) if rho < 3 else (vTq0, P_R[rho])
    for q in range(2):
        a.lds(f"ds_read_b64_tr_b16 {vr(f+2*q,2)}, v{base} offset:{off + e*5120 + 8*t + q*2560}", ("fr", i, t))
for j, (i, t) in enumerate(qs):
    while issued < len(qs) and issued < j + opt.ahead:
        if qs[issued][0] > avail:
            if qs[issued][0] >= opt.drain and issued > j: break
            nxt_s = min(x for x in opt.syncs if x > avail)
            if avail < 0: a.wait_lg(("x", 19))
            if nxt_s == opt.pub_at: publish()
            for p in opt.kv_a.get(nxt_s, ()): first_kv(p)
            a.e("s_barrier")
            avail = nxt_s
            stamp(f"S{avail}")
        trq(vFr + 4 * (issued % NR1), *qs[issued]); issued += 1
    a.wait_lg(("fr", i, t))
    c = "0" if i == 0 else vr(vAcc + 4 * t, 4)
    if opt.dmode == "r" and t and 0 < i < 19: continue
    a.e(f"v_mfma_f32_16x16x32_bf16 {vr(vAcc+4*t,4)}, {vr(vFr+4*(j%NR1),4)}, {vr(vXf+4*i,4)}, {c}")
stamp("qgemm")
vPk = vXf
a.e("s_nop 3")
for i in range(4): a.e(f"v_cvt_pk_bf16_f32 v{vPk+i}, v{vAcc+2*i}, v{vAcc+2*i+1}")
a.e(f"ds_write_b128 v{vM2w}, {vr(vPk,4)}")
for i in range(4, 8): a.e(f"v_cvt_pk_bf16_f32 v{vPk+i}, v{vAcc+2*i}, v{vAcc+2*i+1}")
a.e(f"ds_write_b128 v{vM2w}, {vr(vPk+4,4)} offset:1024")
for i in range(8, 10): a.e(f"v_cvt_pk_bf16_f32 v{vPk+i}, v{vAcc+2*i}, v{vAcc+2*i+1}")
a.e(f"ds_write_b64 v{vM2h}, {vr(vPk+8,2)} offset:2048")
for p in opt.kv_a.get(20, ()): first_kv(p)
a.e("s_waitcnt lgkmcnt(0)\ns_barrier")
for p in opt.kv_a.get(21, ()): first_kv(p)
assert a.vm == vm_join, (a.vm, vm_join)
for kv in (opt.kv_at, opt.kv_a): assert min(kv) > opt.bk and all(k in opt.syncs or k >= 20 for k in kv)
a.label("L_bq")
a.lg = []
stamp("E2")
a.lds(f"ds_read_b64 {vr(vQH[0],2)}, v{vQa+4} offset:2048", ("q", 0))
a.lds(f"ds_read_b128 {vr(vQ[0],4)}, v{vQa}", ("q", 0))
a.lds(f"ds_read_b128 {vr(vQ[1],4)}, v{vQa+1}", ("q", 0))
a.lds(f"ds_read_b64 {vr(vQH[1],2)}, v{vQa+5} offset:2048", ("q", 1))
a.lds(f"ds_read_b128 {vr(vQ[2],4)}, v{vQa+2}", ("q", 1))
a.lds(f"ds_read_b128 {vr(vQ[3],4)}, v{vQa+3}", ("q", 1))
a.e(f"s_not_b32 s{sT0}, s{sTAG}\nv_mov_b32 v{vFlag}, s{sT0}\ns_mov_b64 exec, 0xffff")
a.lds(f"ds_read_b32 v{vFlag}, v{vXp1}", ("q", 1))
a.e("s_mov_b64 exec, -1")
seq = [(t, p) for t in range(13) for p in range(2)] + [(t, p) for p in range(2) for t in (13, 14, 15)]
NS = 32
def s2b(n): t, p = seq[n]; S = vS[n % 2]; return f"v_mfma_f32_32x32x4_2b_bf16 {vr(S,32)}, {vr(kslot(t)+4,2)}, {vr(vQH[p],2)}, 0"
def s16(n, x): t, p = seq[n]; S = vS[n % 2] + 16 * x; return f"v_mfma_f32_32x32x16_bf16 {vr(S,16)}, {vr(kslot(t),4)}, {vr(vQ[2*p+x],4)}, {vr(S,16)}"
def pv(n, g):
    t, p = seq[n]; O = vO + 16 * (2 * p + g // 2)
    c = "0" if (t == 0 and g % 2 == 0) else vr(O, 16)
    return f"v_mfma_f32_32x32x16_bf16 {vr(O,16)}, {vr(vslot(t)+4*(g%2),4)}, {vr(vP+4*g,4)}, {c}"
a.wait_vm(("k", 0))
a.wait_lg(("q", 0))
stamp("kv0")
a.e(s2b(0))
a.e(f"v_mov_b32 v{vR1}, -1\nv_mov_b32 v{vR1+1}, -1\nv_mov_b32 v{vR1+2}, -1\nv_mov_b32 v{vR1+3}, -1\ns_xor_b32 s{sT0}, s{sTAG}, s{sXCC}\nv_mov_b32 v{vR1+4}, s{sT0}")
for x in v_loads(1): a.vload(*x)
kv_advance(1)
a.e("s_nop 7"); a.e(s16(0, 0)); a.e(s16(0, 1)); a.wait_lg0(); a.e("s_nop 9")
SOLO = "G" not in opt.prog[1]
assert SOLO or not opt.dual
vOB = (vO, 158, 182, vO if SOLO else 182)
vAC = (18, 222, 202, 18 if SOLO else 202)
vFb, vF8 = vWoB, vWoA
SPIN = f"s_add_u32 s{sSPIN}, s{sSPIN}, 1\ns_cmp_lt_u32 s{sSPIN}, 1000000\ns_cbranch_scc0 L_end"
vRdy = vR1 + 22
def normalize(S, T, fail):
    a.e(f"v_subrev_u32 v{T}, 0x21800000, v{S+10}\nv_cmp_lt_u32 vcc, 0x3c000000, v{T}")
    a.e(f"s_branch {fail}" if opt.force_fallback else f"s_cbranch_vccnz {fail}")
ostubs = []
def ostore(T, pol, tag):
    o = sE0 if tag == "e" else sO0
    a.e(f"buffer_store_dwordx4 {vr(T,4)}, v{vL16}, {sr(sWS,4)}, s{o} offen{pol}")
    a.e(f"buffer_store_dword v{T+4}, v{vL8}, {sr(sWS,4)}, s{o+1} offen{pol}")
def scale(S, T):
    a.e(f"v_rcp_f32 v{S+10}, v{S+10}\ns_or_b32 s{sT0}, s{sMSK}, s{sMSK+1}")
    if opt.pk:
        for i in range(0, 10, 2): a.e(f"v_pk_mul_f32 {vr(S+i,2)}, {vr(S+i,2)}, {vr(S+10,2)} op_sel_hi:[1,0]")
    else:
        for i in range(10): a.e(f"v_mul_f32 v{S+i}, v{S+i}, v{S+10}")
    for i in range(5): a.e(f"v_cvt_pk_bf16_f32 v{T+i}, v{S+2*i}, v{S+2*i+1}")
def finish(S, T, tag):
    scale(S, T)
    a.label(f"L_ost{tag}")
    if opt.fast:
        a.e(f"s_cbranch_scc1 L_osc{tag}")
        ostore(T, opt.opol[tag], tag)
        ostubs.append((T, tag))
    else: ostore(T, " sc1", tag)
    a.label(f"L_osd{tag}")
def opoll(tile, jj):
    b = vOB[tile]
    so = sOJ + jj
    if tile: a.e(f"s_add_u32 s{sT1}, s{so}, {tile*20480}"); so = sT1
    a.e(f"buffer_load_dwordx4 {vr(b+8*jj,4)}, v{vL16}, {sr(sWS,4)}, s{so} offen sc1")
    a.e(f"buffer_load_dwordx4 {vr(b+8*jj+4,4)}, v{vL16}, {sr(sWS,4)}, s{so} offen offset:1024 sc1")
    a.e(f"buffer_load_dwordx2 {vr(b+16+2*jj,2)}, v{vL8}, {sr(sWS,4)}, s{so} offen offset:2048 sc1")
def SETF(off): return f"s_mov_b64 exec, 1\nds_write_b8 v{vFa}, v{vFlag} offset:{off}\ns_mov_b64 exec, -1"
vPkd = vR1 + 12
jd = [(u, t) for u in range(2) for t in range(5)] + [(2 + u, d - u) for d in range(7) for u in (2, 1, 0) if 0 <= d - u < 5]
js = [(u, t) for u in range(5) for t in range(5)]
ring = dict(zip(js, list(range(38, 118, 4)) + list(range(138, 158, 4))))
nblk = [0]
class only_par:
    def __init__(s_, par, reg=sPAR): s_.par = par; s_.reg = reg
    def __enter__(s_):
        s_.k = nblk[0]; nblk[0] += 1
        a.e(f"s_cmp_eq_u32 s{s_.reg}, {s_.par}\ns_cbranch_scc0 L_blk{s_.k}")
    def __exit__(s_, *x): a.label(f"L_blk{s_.k}")
def wr3(addr, off, src):
    for i in range(3): a.e(f"ds_write_b128 v{addr}, {vr(src+4*i,4)} offset:{off+1024*i}")
def rd3(addr, off, dst):
    for i in range(3): a.e(f"ds_read_b128 {vr(dst+4*i,4)}, v{addr} offset:{off+1024*i}")
def add11(dst, src):
    if opt.pk:
        for i in range(0, 10, 2): a.e(f"v_pk_add_f32 {vr(dst+i,2)}, {vr(dst+i,2)}, {vr(src+i,2)}")
        a.e(f"v_add_f32 v{dst+10}, v{dst+10}, v{src+10}")
    else:
        for i in range(11): a.e(f"v_add_f32 v{dst+i}, v{dst+i}, v{src+i}")
vRc = [vKr, vVr + 8, vR1]
def roleprio(key):
    if key in opt.prioE:
        with only_par(0, sU): a.e(f"s_setprio {opt.prioE[key]}")
    if key in opt.prioL:
        with only_par(1, sU): a.e(f"s_setprio {opt.prioL[key]}")
def ereads():
    a.e(f"ds_read_b32 v{vT0}, v{vFb} offset:8")
    rd3(vA0, 0, vR1); rd3(vA0, 3072, vR1 + 12); rd3(vA0, 6144, vO)
def lreads():
    a.e(f"ds_read_b32 v{vRdy}, v{vFb}")
    rd3(vA1, 0, vRc[0]); rd3(vA1, 9216, vRc[1])
def l2reads():
    a.e(f"ds_read_u8 v{vRdy+1}, v{vFa} offset:46")
    rd3(vX1, 3072, vRc[2])
ksched = {2 * t - 4: t for t in range(2, 15)}; vsched = {2 * t - 3: t for t in range(2, 15)}
for n in range(NS):
    t, p = seq[n]
    a.c(f"half-step {n}: tile {t} pair {p}")
    if n in opt.prio: a.e(f"s_setprio {opt.prio[n]}")
    roleprio(n)
    if n == 0 and opt.debug and opt.only and not any(x[0] in "cd" for x in opt.only):
        for r in (0, 4, 6, 8, 10, 16, 12, 14, 18, 20, 22, 24, 26, 28, 30): a.e(f"s_mov_b32 s{r}, 0")
    if n in (4, 8, 16, 24, 29, 30, 31): stamp(f"step{n}")
    light(f"h{n}")
    S = vS[n % 2]
    ex = [f"v_exp_f32 v{S+i}, v{S+i}" for i in range(32)]
    cv = [f"v_cvt_pk_bf16_f32 v{vP+i}, v{S+2*i}, v{S+2*i+1}" for i in range(16)]
    E = lambda lo, hi: [a.e(x) for x in ex[lo:hi]]
    C = lambda lo, hi: [a.e(x) for x in cv[lo:hi]]
    L = k_loads(ksched[n]) if n in ksched else v_loads(vsched[n]) if n in vsched else v_loads(15) if n == 26 else []
    def LD(i):
        if i < len(L): a.vload(*L[i])
    nxt = n + 1 < NS
    E(0, 2)
    if n > 0: a.e(pv(n - 1, 3))
    E(2, 6)
    if nxt:
        a.wait_vm_if(("k", seq[n + 1][0]))
        a.e(s2b(n + 1))
    if n == 30:
        with only_par(0, sPE): ereads()
    if n == 31:
        a.e(f"ds_read_b64 {vr(vT0,2)}, v{vF8} offset:16")
    E(6, 8)
    if n in (0, 4, 8):
        a.wait_vm_if(("flag",))
        flag_cmp()
    C(0, 4)
    if n in ksched and ksched[n] % 2 == 0: chunk_check(ksched[n] // 2)
    LD(0); E(8, 12); LD(1)
    if n in vsched: kv_advance(vsched[n])
    if n in (1, 5): flag_refresh()
    E(12, 13)
    a.wait_vm_if(("v", t))
    a.e(pv(n, 0))
    E(13, 16)
    if n == opt.clr_at:
        a.e(f"buffer_store_dwordx4 {vr(vR1,4)}, v{vL16}, {sr(sWS,4)}, s{sO0} offen sc1")
        a.e(f"buffer_store_dword v{vR1}, v{vL8}, {sr(sWS,4)}, s{sO1} offen sc1")
    if n == 3:
        a.e(f"""s_mul_i32 s{sT1}, s{sTB}, 81920
s_lshr_b32 s{sT0}, s{sJ}, 1
s_mul_i32 s{sT0}, s{sT0}, 10240
s_add_u32 s{sT1}, s{sT1}, s{sT0}
s_add_u32 s{sT1}, s{sT1}, {A_O}
s_lshl_b32 s{sT0}, s{sJ}, 1
s_xor_b32 s{sT0}, s{sT0}, s{sHG}
s_andn2_b32 s{sT0}, 3, s{sT0}
s_mul_i32 s{sOJ}, s{sT0}, 2560
s_add_u32 s{sOJ}, s{sOJ}, s{sT1}
s_xor_b32 s{sT0}, s{sT0}, 1
s_mul_i32 s{sOJ+1}, s{sT0}, 2560
s_add_u32 s{sOJ+1}, s{sOJ+1}, s{sT1}""")
    if n == 27:
        assert opt.wo0 + 20 <= 25
        a.e(f"s_lshl_b32 s{sT0}, s{sTT}, 1\ns_add_u32 s{sT0}, s{sT0}, s{sKH}\ns_add_u32 s{sT0}, s{sT0}, {L_FL}\nv_mov_b32 v{vFa}, s{sT0}\nv_mov_b32 v{vFlag}, 1\nv_and_b32 v{vFb}, -4, v{vFa}\nv_mov_b32 v{vF8}, {L_FL}")
        if opt.dual: a.e(f"""s_mul_i32 s{sT1}, s{sU}, 20480
s_sub_u32 s{sE0}, s{sO0}, s{sT1}
s_sub_u32 s{sE1}, s{sO1}, s{sT1}
s_lshl_b32 s{sT1}, s{sU}, 1
v_subrev_u32 v{vFe}, s{sT1}, v{vFa}
s_mul_i32 s{sT1}, s{sKH}, {3072 - 12288}
s_add_u32 s{sT1}, s{sT1}, {L_X - L_S - 24576 - 3072}
s_mul_i32 s{sT1}, s{sT1}, s{sU}
v_add_u32 v{vX1}, s{sT1}, v{vA0}""")
        else: a.e(f"s_mov_b32 s{sE0}, s{sO0}\ns_mov_b32 s{sE1}, s{sO1}\nv_mov_b32 v{vFe}, v{vFa}\nv_mov_b32 v{vX1}, v{vA0}")
    if n == opt.clr_at + 6:
        a.e(f"s_mov_b64 exec, 1\nbuffer_store_dword v{vR1+4}, v{vL16}, {sr(sWS,4)}, s{sF2} offen sc1\ns_mov_b64 exec, -1")
    if n == opt.clr_at + 7 and opt.otouch:
        a.e(f"buffer_load_dwordx4 {vr(vR1+8,4)}, v{vL16}, {sr(sWS,4)}, s{sO0} offen{opt.otouch}")
        a.e(f"buffer_load_dword v{vR1+12}, v{vL8}, {sr(sWS,4)}, s{sO1} offen{opt.otouch}")
    if n == 23:
        a.e(f"v_and_b32 v{vT0}, 15, v{vLane}\nv_lshlrev_b32 v{vT0}, 7, v{vT0}\ns_and_b32 s{sF2}, s{sF2}, 0xfffff800")
        a.vload(f"buffer_load_dword v{vT1}, v{vT0}, {sr(sWS,4)}, s{sF2} offen sc1", ("f2",))
    if n == 25:
        for x in k_loads(15): a.vload(*x)
    if n == 28:
        assert ("f2",) not in a.vm
        a.label("L_f2")
        a.e(f"""v_xor_b32 v{vT1}, s{sTAG}, v{vT1}
v_cmp_lt_u32 vcc, 7, v{vT1}
s_cbranch_vccnz L_slowf2
v_cmp_ne_u32 {sr(sMSK,2)}, s{sXCC}, v{vT1}""")
        assert not any(x[0] == "wo" for x in a.vm)
        a.e(SETF(16))
    if n == 29: wr3(vE0, 0, vO)
    if n == 31:
        a.label("L_okc")
        a.e(f"s_waitcnt lgkmcnt(0)\nv_and_b32 v{vT0}, v{vT0}, v{vT1}\nv_cmp_ne_u32 vcc, 0x01010101, v{vT0}\ns_cbranch_vccnz L_okslow")
    if n == 30:
        with only_par(0, sPE):
            a.label("L_erd")
            a.e(f"s_waitcnt lgkmcnt(3)\nv_cmp_ne_u32 vcc, 0x01010101, v{vT0}\ns_cbranch_vccnz L_eslow"); add11(vO + 16, vR1); add11(vO + 16, vR1 + 12)
    C(4, 8); E(16, 18)
    a.e(pv(n, 1))
    E(18, 22)
    if nxt: a.e(s16(n + 1, 0))
    E(22, 24)
    s = n - opt.wo0
    if 0 <= s < 20:
        khs, i = divmod(s, 10); pp, u = divmod(i, 5)
        if u < 4: so = f"s_add_u32 s{sT2}, s{sPJ + 2*pp + u//2}, {(320*khs + 40*(u%2))*1280}"
        else: so = f"s_min_u32 s{sT2}, s{sPJ+2*pp}, s{sPJ+2*pp+1}\ns_add_u32 s{sT2}, s{sT2}, {320*khs*1280}"
        a.e(f"s_add_u32 m0, s{sM0B}, {L_W + khs*51200 + i*5120}\n{so}\ns_mov_b32 exec_hi, 0xff")
        a.vload(f"buffer_load_dwordx4 v{vWoA if u < 4 else vWoB}, {sr(sWO,4)}, s{sT2} offen lds", ("wo", s))
        a.e("s_mov_b32 exec_hi, -1")
    if n == 29:
        with only_par(1, sPE): wr3(vA0, 3072, vO + 16)
        a.e(SETF(8))
    if n == 30:
        with only_par(0, sPE):
            a.e("s_waitcnt lgkmcnt(0)"); add11(vO + 16, vO)
            normalize(vO + 16, vR1 + 12, "L_defer")
            finish(vO + 16, vR1 + 12, "e")
            a.e(SETF(24).replace(f"v{vFa},", f"v{vFe},"))
            a.label("L_deferred")
    roleprio(n + 0.5)
    C(8, 12); E(24, 26)
    a.e(pv(n, 2))
    if n == 31:
        wr3(vL0, 0, vO + 32)
        a.e(SETF(0))
    E(26, 30)
    if n == 31 and opt.dual:
        with only_par(3, sTT): lreads(); l2reads()
    if nxt: a.e(s16(n + 1, 1))
    E(30, 32); C(12, 16)
a.e("s_nop 1")
a.e(pv(NS - 1, 3))
stamp("loop end")
light("t0")
vSum = vO + 48
a.e(f"s_cmp_eq_u32 s{sPAR}, 0\ns_cbranch_scc1 L_early")
if not opt.pdrop:
    with only_par(0, sU): a.e(f"s_setprio {opt.pge}")
def wstart(lo, hi):
    with only_par(0, sU):
        for j in range(lo, hi if SOLO else lo + 1):
            if j == (opt.p0 if SOLO else 0): [opoll(0, jj) for jj in range(2)]
            if SOLO: trd(ring[js[j]], *js[j], ("fr",) + js[j])
    if SOLO: return
    for j in range(lo, hi): trd(ring[js[j]], *js[j], ("fr",) + js[j])
if opt.dual: a.e(f"s_cmp_eq_u32 s{sU}, 0\ns_cbranch_scc0 L_lrd")
wstart(0, opt.nf1)
lreads(); l2reads()
a.label("L_lrd")
a.e(f"s_waitcnt lgkmcnt(4)\nv_cmp_ne_u32 vcc, 0x01010101, v{vRdy}\ns_cbranch_vccnz L_lslow")
add11(vRc[0], vRc[1])
add11(vSum, vRc[0])
a.e(f"s_waitcnt lgkmcnt(0)\nv_cmp_ne_u32 vcc, 1, v{vRdy+1}\ns_cbranch_vccz L_l2")
a.label("L_l2w")
l2reads()
a.e(f"{SPIN}\ns_waitcnt lgkmcnt(0)\nv_cmp_ne_u32 vcc, 1, v{vRdy+1}\ns_cbranch_vccnz L_l2w")
a.label("L_l2")
stamp("L rd")
light("t1")
add11(vSum, vRc[2])
normalize(vSum, vRc[0], "L_fallback")
finish(vSum, vPkd, "l")
a.e(SETF(24))
stamp("O stored")
light("t2"); light("r2")
a.e(f"s_cmp_eq_u32 s{sDEF}, 0\ns_cbranch_scc0 L_dfb")
a.label("L_role")
a.e(f"s_cmp_eq_u32 s{sU}, 0\ns_cbranch_scc1 L_work")
def otest(e, jj):
    b = vOB[e]
    a.e(f"v_max_u32 v{vT0}, v{b+16+2*jj}, v{b+17+2*jj}\nv_max3_u32 v{vT0}, v{vT0}, v{b+8*jj+3}, v{b+8*jj+7}\nv_cmp_eq_u32 vcc, -1, v{vT0}")
fstubs = []; gdone = []
def fread(reg, op, addr, off): return f"{op} v{reg}, v{addr} offset:{off}"
def fcheck(name, rd, reg, val):
    a.wait_lg(name)
    a.label(f"L_fc{name}")
    a.e(f"v_cmp_ne_u32 vcc, {val}, v{reg}\ns_cbranch_vccnz L_fs{name}")
    fstubs.append((name, rd))
def pub(tile): return fread(vRdy, "ds_read_u16", vF8, 24 + 2 * tile)
def project():
    assert opt.nf1 == 25
    a.lg = [("fr",) + js[j] for j in range(25) for q in range(2)]
    vm = [(0, 0)] * 3 + [(0, 1)] * 3
    order = [int(x[1]) for x in opt.prog[0].split()]
    side = {}
    def at(i, f): side.setdefault(i, []).append(f)
    def wr(tile, t, c=""): return lambda: a.lds(f"ds_write_b128 v{vPx}, {vr(vAC[tile]+4*t,4)} offset:{5632*tile + 32*t}{c}", "w")
    def flag(tile):
        def f(): a.e(SETF(32 + 4 * tile)); a.lg.append("w"); light(f"g{tile}")
        return f
    for k, tile in enumerate(order):
        b = vOB[tile]
        for jj in range(2):
            i = 25 * k + 10 * jj - 1
            sp = 0 if jj == 0 and k in (0, 3) else 1
            at(i - 2 * sp, lambda tile=tile, jj=jj, b=b: a.e(f"s_waitcnt vmcnt({vm[::-1].index((tile, jj))})\nv_max_u32 v{vT0}, v{b+16+2*jj}, v{b+17+2*jj}"))
            at(i - sp, lambda jj=jj, b=b: a.e(f"v_max3_u32 v{vT0}, v{vT0}, v{b+8*jj+3}, v{b+8*jj+7}"))
            def br(tile=tile, jj=jj):
                a.e(f"v_cmp_eq_u32 vcc, -1, v{vT0}\ns_cbranch_vccnz L_oslow{tile}{jj}")
                a.label(f"L_ochk{tile}{jj}")
                light(f"k{tile}" if jj == 0 else "t3" if tile == 3 else "-")
            at(i, br)
        if k < opt.ndef:
            for t in range(5): at(25 * (k + 1) + opt.wsl[t], wr(tile, t, " ; spaced"))
            at(25 * (k + 1) + opt.wsl[4], flag(tile))
        else:
            for t in range(3): at(25 * k + 16 + 3 * t, wr(tile, t, " ; spaced"))
            side.setdefault(25 * k + 24, [])[0:0] = [lambda: a.e("s_nop 3"), wr(tile, 3, " ; spaced"), lambda: a.e("s_nop 2"), wr(tile, 4), flag(tile)]
        gdone.append(tile)
    for x, (tl, jx) in opt.pp.items():
        i = 25 * order.index(tl) + jx
        at(i - 6, lambda x=x: a.lds(pub(x), f"p{x}"))
        at(i - 1, lambda x=x: fcheck(f"p{x}", pub(x), vRdy, "0x0101"))
        for jj in range(2):
            keep = a.lines; a.lines = []; opoll(x, jj); ls = [l.replace(f's{sT1}', f's{sT2}') for l in a.lines]; a.lines = keep
            for c in range(3):
                def ld(x=x, jj=jj, part=ls[:2] if c == 0 else ls[c+1:c+2]): a.lines.extend(part); vm.append((x, jj))
                side.setdefault(min(i + 3 * jj + c, 25 * order.index(x) - 4), []).append(ld)
    for f in side.get(-1, ()): f()
    for k, tile in enumerate(order):
        for j, (u, t) in enumerate(js if k < opt.ndef else jd):
            a.wait_lg(("fr", u, t))
            acc = vAC[tile] + 4 * t
            a.e(f"v_mfma_f32_16x16x32_bf16 {vr(acc,4)}, {vr(ring[u,t],4)}, {vr(vOB[tile]+4*u,4)}, {'0' if u == 0 else vr(acc,4)}")
            for f in side.get(25 * k + j, ()): f()
    a.e("s_waitcnt lgkmcnt(0)")
def worker(g):
    a.e(f"s_setprio {opt.pw[g]}")
    assert SOLO
    if g == 0: return project()
    vm = []
    nred = [0]
    def reduce(tile, last):
        if g == 0 and nred[0] == 0: sur()
        Q = ([118, 122, 126, 130, 134, 18, 22, 26, 30], list(range(38, 74, 4)))[nred[0] % 2]; nred[0] += 1
        a.e("s_mov_b32 exec_hi, 0xff")
        def prd():
            for h in range(2):
                for j in range(4):
                    ad, of = (vRs, tile * 8192 + j * 5632) if tile in (0, 3) and not SOLO else (vRb if j > 1 else vRa, (j % 2) * 25600 + (tile - 1 + SOLO) * 5632)
                    a.e(f"ds_read_b128 {vr(Q[4*h+j],4)}, v{ad} offset:{of + h*2816}")
        rd = f"ds_read_b32 v{vRdy}, v{vF8} offset:{32+4*tile}"
        a.e(rd); prd()
        a.e(f"s_waitcnt lgkmcnt(8)\nv_cmp_ne_u32 vcc, 0x01010101, v{vRdy}\ns_cbranch_vccz L_rd{tile}")
        a.label(f"L_rw{tile}")
        a.e(f"{rd}\n{SPIN}\ns_waitcnt lgkmcnt(0)\nv_cmp_ne_u32 vcc, 0x01010101, v{vRdy}\ns_cbranch_vccnz L_rw{tile}")
        prd()
        a.label(f"L_rd{tile}")
        if last: light("t4")
        a.e(f"s_add_u32 s{sT1}, s{sOB}, {tile*20480}")
        for h in range(2):
            B = Q[4*h:4*h+4]
            a.e(f"s_waitcnt lgkmcnt({6-4*h})")
            for i in range(4): a.e(f"v_add_f32 v{B[0]+i}, v{B[0]+i}, v{B[1]+i}")
            a.e(f"s_waitcnt lgkmcnt({4-4*h})")
            for i in range(4): a.e(f"v_add_f32 v{B[2]+i}, v{B[2]+i}, v{B[3]+i}")
            for i in range(4): a.e(f"v_add_f32 v{B[0]+i}, v{B[0]+i}, v{B[2]+i}")
            for i in range(2): a.e(f"v_cvt_pk_bf16_f32 v{Q[8]+2*h+i}, v{B[0]+2*i}, v{B[0]+2*i+1}")
        a.e(f"buffer_store_dwordx4 {vr(Q[8],4)}, v{vGo}, {sr(sOUT,4)}, s{sT1} offen{opt.outpol}")
        a.e("s_mov_b32 exec_hi, -1")
        vm.append("st")
        a.lg = []
    pr = opt.prog[g].split()
    for k, ch in enumerate(pr):
        tile = int(ch[1])
        if ch[0] == "G": assert nred[0] < 2; gemm(tile)
        elif ch[0] == "P":
            a.lds(pub(tile), f"p{tile}"); fcheck(f"p{tile}", pub(tile), vRdy, "0x0101"); seen.add(f"p{tile}"); request(tile)
        else: reduce(tile, tile == 3 or g == 0)
    if pr[-1][0] == 'G': a.e('s_waitcnt lgkmcnt(0)')
def wstubs(g):
    while gdone:
        tile = e = gdone.pop(0)
        for jj in range(2):
            a.label(f"L_oslow{tile}{jj}")
            a.e(SPIN)
            opoll(e, jj)
            if jj == 0:
                a.e("s_waitcnt vmcnt(3)")
                otest(e, 1)
                a.e(f"s_cbranch_vccz L_ok{tile}")
                opoll(e, 1)
                a.label(f"L_ok{tile}")
            a.e("s_waitcnt vmcnt(0)")
            otest(e, jj)
            a.e(f"s_cbranch_vccnz L_oslow{tile}{jj}\ns_branch L_ochk{tile}{jj}")
    while fstubs:
        name, rd = fstubs.pop()
        a.label(f"L_fs{name}")
        a.e(f"{rd}\n{SPIN}\ns_waitcnt lgkmcnt(0)\ns_branch L_fc{name}")
worker(1)
a.label("L_fin")
stamp("out st")
light("t5")
a.e(f"s_or_b32 s{sT0}, s2, s{sW}\ns_cmp_eq_u32 s{sT0}, 0\ns_cbranch_scc0 L_noep")
a.e(f"s_mov_b64 exec, 1\nv_mov_b32 v{vT1}, s{sTAG}\nv_mov_b32 v{vT0}, {A_EP}\nbuffer_store_dword v{vT1}, v{vT0}, {sr(sWS,4)}, 0 offen sc1\ns_mov_b64 exec, -1")
a.label("L_noep")
if opt.debug:
    a.e("s_waitcnt vmcnt(0)")
    stamp("end")
    for nm, r in LIGHT.items():
        i = nstamp[0]; nstamp[0] += 1; STAMPS.append(nm)
        a.e(f"v_writelane_b32 v17, s98, {i}\nv_writelane_b32 v17, s{r}, {32+i}")
    a.e(f"s_lshl_b32 s{sT0}, s2, 3\ns_add_u32 s{sT0}, s{sT0}, s{sW}\ns_lshl_b32 s{sT0}, s{sT0}, 8\ns_add_u32 s{sT0}, s{sT0}, {A_DBG}")
    a.e(f"v_writelane_b32 v17, s{sSPIN}, 31\nv_lshlrev_b32 v{vT0}, 2, v{vLane}")
    a.e(f"buffer_store_dword v17, v{vT0}, {sr(sWS,4)}, s{sT0} offen")
    if opt.dbgout:
        assert nstamp[0] <= 15
        srd(sX, 16, 256)
        a.e(f"v_subrev_u32 v{vT1}, s94, v17\nv_cmp_eq_u32 vcc, 0, v17\nv_cndmask_b32 v{vT1}, v{vT1}, v17, vcc\ns_not_b32 s{sT0}, s94\ns_and_b32 s{sT0}, s{sT0}, 0xffffff\ns_and_b32 s98, s98, 0xffffff\nv_writelane_b32 v{vT1}, s{sT0}, 0\nv_writelane_b32 v{vT1}, s98, 15")
        a.e(f"s_mov_b64 exec, 0xffff\nbuffer_atomic_umax v{vT1}, v{vT0}, {sr(sX,4)}, 0 offen")
if opt.pad:
    if opt.pad == "end": a.e("s_waitcnt vmcnt(0)\ns_memrealtime s[92:93]")
    a.label("L_pad")
    a.e("s_memrealtime s[90:91]\ns_waitcnt lgkmcnt(0)\ns_sub_u32 s90, s90, s92\ns_cmp_lt_u32 s90, 6000\ns_cbranch_scc1 L_pad")
a.label("L_end")
a.e("s_endpgm")
a.label("L_lslow")
a.e(SPIN)
a.e(f"ds_read_b32 v{vRdy}, v{vFb}\ns_waitcnt lgkmcnt(0)\nv_cmp_ne_u32 vcc, 0x01010101, v{vRdy}\ns_cbranch_vccnz L_lslow")
lreads(); l2reads()
a.e("s_branch L_lrd")
wstubs(1)
a.label("L_early")
a.e("s_nop 9")
wr3(vX1, 3072, vO + 48)
a.e(SETF(48))
light("t1")
a.e(f"s_cmp_eq_u32 s{sDEF}, 0\ns_cbranch_scc0 L_dfb")
wstart(0, opt.nf1)
a.e(f"s_cmp_eq_u32 s{sU}, 0\ns_cbranch_scc0 L_role")
a.label("L_work")
worker(0)
a.e("s_branch L_fin")
wstubs(0)
a.label("L_dfb")
a.e(f"s_mov_b32 s{sDEF}, 0\ns_mov_b32 s{sO0}, s{sE0}\ns_mov_b32 s{sO1}, s{sE1}\nv_mov_b32 v{vFa}, v{vFe}")
for i in range(4): a.e(f"v_mov_b32 v{vQ[3]+i}, v{vQ[1]+i}")
for i in range(2): a.e(f"v_mov_b32 v{vQH[1]+i}, v{vQH[0]+i}")
a.e("s_branch L_fallback")
a.label("L_eslow")
a.e(SPIN)
a.e(f"ds_read_b32 v{vT0}, v{vFb} offset:8\ns_waitcnt lgkmcnt(0)\nv_cmp_ne_u32 vcc, 0x01010101, v{vT0}\ns_cbranch_vccnz L_eslow")
ereads()
a.e("s_branch L_erd")
a.label("L_okslow")
a.e(SPIN)
a.e(f"ds_read_b64 {vr(vT0,2)}, v{vF8} offset:16\ns_branch L_okc")
for c in slow_stubs:
    a.label(f"L_slow{c}")
    a.e(f"s_add_u32 s{sSPIN}, s{sSPIN}, 1\ns_cmp_lt_u32 s{sSPIN}, 1000000\ns_cbranch_scc0 L_end")
    a.e(f"s_mov_b64 exec, {sr(sMSK,2)}\n{FLOAD}\ns_mov_b64 exec, -1\ns_waitcnt vmcnt(0)")
    flag_cmp()
    a.e(f"s_nop 0\ns_and_b32 s{sT0}, s{sMSK + c//4}, 0x{0xff << (8*(c%4)):x}\ns_cbranch_scc1 L_slow{c}\ns_branch L_back{c}")
for T, tag in ostubs:
    a.label(f"L_osc{tag}")
    ostore(T, " sc1", tag)
    a.e(f"s_branch L_osd{tag}")
a.label("L_defer")
a.e(f"s_mov_b32 s{sDEF}, 1\ns_branch L_deferred")
a.label("L_slowf0")
a.e(f"s_add_u32 s{sSPIN}, s{sSPIN}, 1\ns_cmp_lt_u32 s{sSPIN}, 1000000\ns_cbranch_scc0 L_end")
a.e(f"{F0}\ns_waitcnt vmcnt(0)\ns_branch L_f0")
a.label("L_slowf2")
a.e(f"s_add_u32 s{sSPIN}, s{sSPIN}, 1\ns_cmp_lt_u32 s{sSPIN}, 1000000\ns_cbranch_scc0 L_end")
a.e(f"buffer_load_dword v{vT1}, v{vT0}, {sr(sWS,4)}, s{sF2} offen sc1\ns_waitcnt vmcnt(0)\ns_branch L_f2")
a.label("L_fallback")
fS = 70; fM = vR1 + 20; fK = vKr; fV = vVr
def f_scores():
    a.e(f"buffer_load_dwordx4 {vr(fK,4)}, v{vL16}, {sr(sWS,4)}, s{sT0} offen sc1")
    a.e(f"buffer_load_dwordx2 {vr(fK+4,2)}, v{vK1a}, {sr(sWS,4)}, s{sT0} offen offset:1024 sc1")
    a.e(f"buffer_load_dwordx4 {vr(fV,4)}, v{vVa}, {sr(sWS,4)}, s{sT0} offen offset:1536 sc1")
    a.e(f"buffer_load_dwordx4 {vr(fV+4,4)}, v{vVa}, {sr(sWS,4)}, s{sT0} offen offset:2304 sc1")
    a.e("s_waitcnt vmcnt(0)\ns_mov_b32 exec_lo, 0x00440000\ns_mov_b32 exec_hi, 0x00440000")
    for i in range(8): a.e(f"v_mov_b32 v{fV+i}, 0x3f803f80")
    a.e("s_mov_b64 exec, -1")
    a.e(f"v_mfma_f32_32x32x4_2b_bf16 {vr(fS,32)}, {vr(fK+4,2)}, {vr(vQH[1],2)}, 0\ns_nop 15\ns_nop 1")
    a.e(f"v_mfma_f32_32x32x16_bf16 {vr(fS+16,16)}, {vr(fK,4)}, {vr(vQ[3],4)}, {vr(fS+16,16)}\ns_nop 11")
a.e(f"v_mov_b32 v{fM}, 0xff800000\ns_mov_b32 s{sT0}, 0")
a.label("L_fb1")
f_scores()
for i in range(0, 16, 2): a.e(f"v_max3_f32 v{fM}, v{fM}, v{fS+16+i}, v{fS+17+i}")
a.e(f"s_add_u32 s{sT0}, s{sT0}, 4096\ns_cmp_lt_u32 s{sT0}, 262144\ns_cbranch_scc1 L_fb1")
a.e(f"v_mov_b32 v{fM+1}, v{fM}\ns_nop 1\nv_permlane32_swap_b32 v{fM}, v{fM+1}\ns_nop 1\nv_max_f32 v{fM}, v{fM}, v{fM+1}")
for i in range(16): a.e(f"v_mov_b32 v{vSum+i}, 0")
a.e(f"s_mov_b32 s{sT0}, 0")
a.label("L_fb2")
f_scores()
for i in range(16): a.e(f"v_sub_f32 v{fS+16+i}, v{fS+16+i}, v{fM}")
for i in range(16): a.e(f"v_exp_f32 v{fS+16+i}, v{fS+16+i}")
a.e("s_nop 0")
for i in range(8): a.e(f"v_cvt_pk_bf16_f32 v{vP+i}, v{fS+16+2*i}, v{fS+17+2*i}")
a.e("s_nop 1")
for g in range(2):
    a.e(f"v_mfma_f32_32x32x16_bf16 {vr(vSum,16)}, {vr(fV+4*g,4)}, {vr(vP+4*g,4)}, {vr(vSum,16)}")
a.e(f"s_add_u32 s{sT0}, s{sT0}, 4096\ns_cmp_lt_u32 s{sT0}, 262144\ns_cbranch_scc1 L_fb2")
a.e("s_nop 15")
wstart(0, opt.nf1)
scale(vSum, vPkd)
for i in range(5): a.e(f"v_min_u32 v{vPkd+i}, -2, v{vPkd+i}")
a.label("L_last")
a.e("s_branch L_ostl")
a.raw(open("footer.txt").read())
txt = a.text()
def addresses(lines):
    import subprocess, re
    open("_g5.s", "w").write("\n".join(lines))
    r = subprocess.run(["clang", "-x", "assembler", "-target", "amdgcn-amd-amdhsa", "-mcpu=gfx950", "-c", "_g5.s", "-o", "_g5.o"], capture_output=True, text=True)
    assert r.returncode == 0, r.stderr[:2000]
    d = subprocess.run(["llvm-objdump", "-d", "--mcpu=gfx950", "_g5.o"], capture_output=True, text=True).stdout
    d = d[d.index("_kernel>:"):]
    ad = [int(m.group(1), 16) for m in re.finditer(r"// ([0-9A-F]{12}):", d)]
    k0 = next(i for i, l in enumerate(lines) if l.endswith("_kernel:"))
    idx = [i for i in range(k0, len(lines)) if lines[i].startswith("    ") and parse(lines[i])]
    assert len(idx) == len(ad), (len(idx), len(ad))
    return dict(zip(idx, ad))
if HOPRET:
    lines = txt.split("\n")
    for t, site in HOPRET.items():
        if t.startswith("L_"):
            i = lines.index(t + ":")
            k = i - 1
            while not parse(lines[k]): k -= 1
            assert parse(lines[k])["op"] in ("s_branch", "s_endpgm") and k == i - 1, (t, lines[k])
            lines[i:i] = [f"H_{t}:", f"    s_branch R_{site}"]
    pg = sorted(t for t in HOPRET if t.startswith("P"))
    end = lines.index("L_last:")
    for n, t in enumerate(pg):
        ad = addresses(lines[:end] + [f"H_{x}:" for x in pg[n:]] + lines[end:])
        full = True
        for i in sorted(ad):
            if i >= end: raise SystemExit("no spot for " + t)
            l = lines[i].strip()
            if ad[i] >= int(t[1:]) * 4096 and full: break
            if " exec" in l.split(",")[0]: full = l.endswith(", -1")
        print(t, hex(ad[i]), l, file=sys.stderr)
        lines[i:i] = [f"H_{t}:", f"    s_cbranch_execz R_{HOPRET[t]}"]; end += 2
    txt = "\n".join(lines)
TL = txt.split("\n")
for p in check(txt):
    if not TL[int(p.split(":")[0][5:]) - 1].endswith("; spaced"): print("HAZARD", p, file=sys.stderr)
open(sys.argv[1], "w").write(txt)
if opt.debug: open(sys.argv[1] + ".stamps", "w").write("\n".join(STAMPS))
```

```python
import sys, math, struct
from asmlib import *

class Opt:
    debug = False
    prio = {0: 3, 16: 2}
    prioE = {28.5: 1}
    wsl = (2, 6, 10, 14, 18)
    order = (0, 2, 1, 3)
    pg0 = 0
    prd = 1
    l2p = 1
    pre3 = None
    sp0 = True
    g0e = False
    lpos = 2
    ndef = 1
    prioL = {29.5: 1}
    flip = 0
    dual = 1
    pp = {2: (0, 6), 1: (2, 3), 3: (1, 10)}
    prog = ('G0 G2 G1 G3', 'R0 R2 R1 R3')
    pw = (0, 0)
    p0 = 0
    p0f = 0
    ppf = 17
    nf1 = 25
    prr = 0
    spec = ()
    npf = 8
    pdrop = 1
    force_fallback = False
    fast = True
    touch = 'ouw'
    wo0 = 4
    only = None
    dbgout = False
    pad = None
    syncs = (1, 3, 5, 7, 9, 11, 13, 15, 17, 19)
    lead = 4
    fl_at = 15
    bk = 15
    pub_at = 1
    drain = 20
    ahead = 7
    hrot = 2
    w64 = True
    dskip = 5
    kv_at = {17: (0,), 19: (1,), 20: (2,)}
    kv_a = {21: (0, 1, 2)}
    skv = 2
    head = "kKp12w3ssss"
    upers = 2
    bprio = 2
    epoll = 2
    pge = 0
    dmode = ""
    align = 8
    dry = False
    xfirst = True
    poll_at = 36
    otouch = ' sc1'
    smart = True
    pstep_e = 0
    oa_e = 8
    pstep = 0
    oa_at = 13
    npre_e = 10
    prl = 1
    pre = 3
    outpol = ""
    opol = {"e": "", "l": "", "m": ""}
    epar = 0
    cpf = True
    pk = False
    chk1 = True
    clr_at = 10
    phase = None
    hops = {}
    tn = 5
    dly = 0
    k1 = True
    wo64 = 0
    wok = 1
    wopol = ""
    nowo = False
    wpf = None
    nof0 = False
    npre = 40
opt = Opt()
for x in sys.argv[2:]:
    k, v = x.split("=", 1)
    setattr(opt, k, eval(v))

A_KV = 0
A_F1 = 262144
A_EP = A_F1 + 65536
A_F2 = 524288
A_O = 1 << 20
A_DBG = 4 << 20
WS_BYTES = 8 << 20
OOB = 0x40000000
L_W = 0
P_R = [81920, 102400, 122880, 0, 20480]
P_KVW = 122880
L_S = 102400
L_Q2 = 143360
L_FLG = 153600
L_F01 = 153632
L_FL = 153888
LDS_BYTES = 163840
sX, sWQ, sWKV, sWO, sOUT, sWS = 20, 24, 28, 32, 36, 40
sW, sTT, sKH, sHG, sTB, sT, sTK, sTAG, sXCD, sR = 44, 45, 46, 47, 48, 49, 50, 51, 52, 53
sT0, sT1, sT2, sT3 = 54, 55, 56, 57
sKV = 58
sXCC = 59
sO0, sO1 = 60, 61
sHGO = 62
sM0B = 63
sSPIN = 64
sOB = 65
sWQB = 66
sRG = 67
sMSK = 72
sC0 = 74
sF2 = 76
sJH, sJE, sCA, sCX = 77, 78, 79, 80
sJ, sU, sPAR, sISS, sDEF = 81, 82, 83, 84, 85
sPJ = 86
sOJ = 67
sCC = 3
sWP = 92
sWM = 74
sPE, sE0, sE1 = 69, 70, 71
L_X = 154112
vLane, vL16, vK1a, vVa, vFa, vWoA, vWoB, vTr, vA0, vA1, vE0, vL0, vFlag, vT0, vT1, vL8 = range(1, 17)
vQ = [18, 22, 26, 30]; vQH = [34, 36]
vS = [38, 70]
vP = 102
vO = 118
vKr = 182
vVr = 200
vR1 = 224
vXf = 38; vAcc = 118; vFr = 138
vW40, vXp = 224, 225
vXa = 226
vQa = 231
vCx, vCw = 237, 238
vCx2, vXp1 = 247, 248
vSt = 240
vT2, vT3 = 241, 242
vTq0, vTq1, vM2w, vM2h = 243, 244, 245, 246
vX1, vFe = 255, 248
vL1, vFp = 249, 252
vPw, vPx = 254, 254
vRa, vRb, vRs, vGo = 250, 251, 252, 253

a = Asm()
nstamp = [0]
STAMPS = []
def stamp(name):
    if opt.pad == name: a.e("s_memrealtime s[92:93]")
    if not opt.debug: return
    if opt.only is not None and name not in opt.only and not (name.startswith("A:") and "A" in opt.only): return
    i = nstamp[0]; nstamp[0] += 1
    a.c(f"stamp {i}: {name}")
    a.e("s_memrealtime s[98:99]\ns_memtime s[100:101]")
    a.wait_lg0()
    a.e(f"v_writelane_b32 v17, s98, {i}\nv_writelane_b32 v17, s100, {32+i}")
    STAMPS.append(name)
def stamp_at(i):
    if not opt.debug: return
    if opt.only is not None and "A" not in opt.only: return
    a.e("s_memrealtime s[98:99]\ns_memtime s[100:101]")
    a.wait_lg0()
    a.e(f"v_writelane_b32 v17, s98, {i}\nv_writelane_b32 v17, s100, {32+i}")
import re
LIGHT = dict(zip([x for x in (opt.only or ()) if re.match(r"^([cdhtkrg]\d+|cA)$", x)], [0, 4, 6, 8, 10, 16, 12, 14, 18, 20, 22, 24, 26, 28, 30])) if opt.debug else {}
def light(name):
    if not opt.debug or opt.only is None or name not in opt.only: return
    assert name in LIGHT
    a.e(f"s_mem{'real' if name[0] == 'r' else ''}time {sr(LIGHT[name],2)}")
def srd(base, lo, nbytes):
    a.e(f"s_mov_b32 s{base}, s{lo}\ns_mov_b32 s{base+1}, s{lo+1}\ns_mov_b32 s{base+2}, {nbytes}\ns_mov_b32 s{base+3}, 0x00020000")
def trd(f, i, t, tag):
    off = i * 5120 + 32 * t
    base = vTr
    for q in range(2):
        a.lds(f"ds_read_b64_tr_b16 {vr(f+2*q,2)}, v{base} offset:{off+q*2560}", tag)
slow_stubs = []
HOPRET = {}
def hop(site):
    tg = opt.hops.get(site)
    if not tg: return
    a.e("s_mov_b64 exec, 0")
    for j, t in enumerate(tg):
        if t is None: continue
        assert t not in HOPRET
        HOPRET[t] = site
        a.e(f"s_cmp_eq_u32 s{sJ}, {j}\ns_cbranch_scc1 H_{t}")
    a.label(f"R_{site}")
    a.e("s_mov_b64 exec, -1")

a.raw(open("header.txt").read().replace("@LDS@", str(LDS_BYTES)).replace(".p2align 8", f".p2align 12\n.fill {opt.phase//4}, 4, 0xbf810000" if opt.phase is not None else f".p2align {opt.align}"))
a.e("s_cmp_ge_u32 s2, 256\ns_cbranch_scc1 L_end")
a.e("s_load_dwordx16 s[4:19], s[0:1], 0")
if opt.pad == "start": a.e("s_memrealtime s[92:93]")
if opt.debug:
    a.e("v_mov_b32 v17, 0\ns_memrealtime s[94:95]\ns_memtime s[96:97]"); nstamp[0] = 2; STAMPS.append("start"); STAMPS.append("karg")
def xtile(j):
    if j: a.e(f"s_add_u32 s{sT3}, s{sTK}, {j}\ns_and_b32 s{sT3}, s{sT3}, 3\ns_mul_i32 s{sT1}, s{sT3}, 20480\ns_add_u32 s{sT0}, s{sT1}, s{sJH}\ns_add_u32 s{sT1}, s{sT1}, s{sJE}")
    for i in range(5):
        a.e(f"s_add_u32 m0, s{sT1}, {1920*i}\ns_nop 0")
        a.vload(f"buffer_load_dwordx4 v{vXp}, {sr(sX,4)}, s{sT0} offen offset:{128*i} lds", ("x",))
def skv(role):
    if role == "B" or opt.skv == 1: a.e(f"""s_bitcmp1_b32 s{sHG}, 0
s_cselect_b32 s{sWKV}, s10, s8
s_cselect_b32 s{sWKV+1}, s11, s9""")
    if opt.skv == 2 and role == "B":
        a.e(f"s_mov_b64 exec, 15\nbuffer_load_dword v{vT2}, v{vT3}, {sr(sWKV,4)}, s{sCC} offen\ns_mov_b64 exec, -1")
    if opt.skv == 1:
        a.e(f"s_add_u32 s{sMSK}, s{sWKV}, s{sCC}\ns_addc_u32 s{sMSK+1}, s{sWKV+1}, 0")
        for o in (0, 64, 128, 196): a.e(f"s_load_dword s{sISS}, {sr(sMSK,2)}, {o}")
    if "q" in opt.touch and role == "B": a.e(f"s_load_dword s{sISS}, s[6:7], s{sRG}")
    a.e(f"s_load_dword s{sTAG}, s[18:19], {A_EP}")
    if opt.debug: a.e("v_writelane_b32 v17, s94, 0\nv_writelane_b32 v17, s96, 32")
def tagwait():
    a.e(f"s_waitcnt lgkmcnt(0)\ns_mul_i32 s{sTAG}, s{sTAG}, 1664525\ns_add_u32 s{sTAG}, s{sTAG}, 1013904223")
    if opt.debug: a.e("v_writelane_b32 v17, s90, 1\nv_writelane_b32 v17, s92, 33")
def su0():
    srd(sWS, 18, WS_BYTES); srd(sWO, 12, 819200); srd(sOUT, 14, 2621440)
    a.e(f"""s_lshr_b32 s{sU}, s{sW}, 2
s_lshr_b32 s{sTT}, s{sW}, 1
{f"s_xor_b32 s{sTT}, s{sTT}, s{sU}" if opt.flip else "s_nop 0"}
s_and_b32 s{sPAR}, s{sTT}, 1
{f's_xor_b32 s{sPE}, s{sPAR}, s{sU}' if opt.dual else f's_mov_b32 s{sPE}, s{sPAR}'}
s_and_b32 s{sKH}, s{sW}, 1
s_mov_b32 s{sDEF}, 0
s_lshl_b32 s{sT}, s{sTB}, 2
s_add_u32 s{sT}, s{sT}, s{sTT}
{"" if opt.wo64 else f"s_mul_i32 s{sM0B}, s{sW}, 640"}
s_getreg_b32 s{sXCC}, hwreg(HW_REG_XCC_ID, 0, 3)
s_mov_b32 s{sSPIN}, 0""")
def su1():
    a.e(f"""s_mul_i32 s{sOB}, s{sT}, 20480
s_add_u32 s{sOB}, s{sOB}, {A_O}
s_lshl_b32 s{sT2}, s{sHGO}, 4
s_add_u32 s{sT2}, s{sT2}, s{sOB}
s_lshl_b32 s{sT3}, s{sKH}, 10
s_add_u32 s{sO0}, s{sT2}, s{sT3}
s_lshl_b32 s{sT3}, s{sKH}, 2
s_add_u32 s{sO1}, s{sT2}, s{sT3}
s_add_u32 s{sO1}, s{sO1}, 2048
s_lshl_b32 s{sF2}, s{sT}, 4
s_lshl_b32 s{sT0}, s{sHG}, 1
s_add_u32 s{sT0}, s{sT0}, s{sKH}
s_add_u32 s{sF2}, s{sF2}, s{sT0}
s_lshl_b32 s{sF2}, s{sF2}, 7
s_add_u32 s{sF2}, s{sF2}, {A_F2}
s_mul_i32 s{sT1}, s{sJ}, 25600
v_mul_u32_u24 v{vTq0}, 40, v{vLane}
v_and_b32 v{vT0}, 3, v{vLane}
v_lshlrev_b32 v{vT0}, 5, v{vT0}
v_sub_u32 v{vTr}, v{vTq0}, v{vT0}
v_add_u32 v{vTr}, s{sT1}, v{vTr}""")
def su2():
    if not opt.wo64: return su2o()
    X, Y = vWoA, vWoB
    a.e(f"""s_min_u32 s{sM0B}, s{sW}, 4
s_lshl_b32 s{sM0B}, s{sM0B}, 10
s_mul_i32 s{sT0}, s{sJ}, 5
s_lshl_b32 s{sWM}, 31, s{sT0}
s_cmp_eq_u32 s{sU}, 0
s_cselect_b32 s{sWM}, -1, s{sWM}
v_add_u32 v{vT1}, s{sM0B}, v{vL16}
v_mul_u32_u24 v{vT0}, 6554, v{vT1}
v_lshrrev_b32 v{vT0}, 20, v{vT0}
s_movk_i32 s{sT0}, -160
v_mad_i32_i24 v{vT1}, v{vT0}, s{sT0}, v{vT1}
v_and_b32 v{X}, 4, v{vT0}
v_mul_u32_u24 v{X}, 5, v{X}
v_and_b32 v{Y}, 3, v{vT0}
v_add_u32 v{X}, v{X}, v{Y}
v_and_b32 v{Y}, 2, v{vT0}
s_movk_i32 s{sT1}, 1280
v_mad_u32_u24 v{vT1}, v{X}, s{sT1}, v{vT1}
v_mul_u32_u24 v{Y}, {19*1280}, v{Y}
v_and_b32 v{X}, 8, v{vT0}
s_movk_i32 s{sT0}, 320
v_mad_u32_u24 v{Y}, v{X}, s{sT0}, v{Y}
s_lshl_b32 s{sT2}, s{sHG}, 4
v_xor_b32 v{X}, s{sT2}, v{vT0}
v_and_b32 v{X}, 16, v{X}
s_movk_i32 s{sT0}, -6400
v_mad_i32_i24 v{Y}, v{X}, s{sT0}, v{Y}
v_add_u32 v{Y}, {96*1280}, v{Y}
v_add_u32 v{Y}, v{Y}, v{vT1}
v_and_b32 v{X}, 24, v{vT0}
s_movk_i32 s{sT0}, 640
v_mad_u32_u24 v{X}, v{X}, s{sT0}, v{vT1}""")
def su2o():
    a.e(f"""v_mul_u32_u24 v{vT0}, 6554, v{vLane}
v_lshrrev_b32 v{vT0}, 16, v{vT0}
v_mul_u32_u24 v{vT1}, 10, v{vT0}
v_sub_u32 v{vT1}, v{vLane}, v{vT1}
v_lshlrev_b32 v{vT1}, 4, v{vT1}
v_mul_u32_u24 v{vWoA}, 1280, v{vT0}
v_add_u32 v{vWoA}, v{vWoA}, v{vT1}
v_lshrrev_b32 v{vWoB}, 1, v{vT0}
v_mul_u32_u24 v{vWoB}, 38, v{vWoB}
v_add_u32 v{vWoB}, v{vWoB}, v{vT0}
v_mul_u32_u24 v{vWoB}, 1280, v{vWoB}
v_add_u32 v{vWoB}, v{vWoB}, v{vT1}
s_and_b32 s{sT0}, s{sJ}, 1
s_mul_i32 s{sT0}, s{sT0}, 20
s_and_b32 s{sT1}, s{sJ}, 2
s_lshl_b32 s{sT2}, s{sT1}, 1
s_add_u32 s{sT2}, s{sT2}, s{sT0}
s_lshl_b32 s{sT3}, s{sU}, 3
s_add_u32 s{sT2}, s{sT2}, s{sT3}
s_mul_i32 s{sT2}, s{sT2}, 1280
v_add_u32 v{vWoA}, s{sT2}, v{vWoA}
s_add_u32 s{sT0}, s{sT0}, s{sT1}
s_xor_b32 s{sT3}, s{sU}, s{sHG}
s_andn2_b32 s{sT3}, 1, s{sT3}
s_mul_i32 s{sT3}, s{sT3}, 80
s_add_u32 s{sT0}, s{sT0}, s{sT3}
s_add_u32 s{sT0}, s{sT0}, 16
s_mul_i32 s{sT0}, s{sT0}, 1280
v_add_u32 v{vWoB}, s{sT0}, v{vWoB}""")
def su3():
    for j in range(4):
        a.e(f"s_xor_b32 s{sT0}, s{sHG}, {j ^ 3}\ns_and_b32 s{sT0}, s{sT0}, 3\ns_mul_i32 s{sT0}, s{sT0}, 102400\ns_add_u32 s{sPJ+j}, s{sT0}, s{sHGO}")
    a.e(f"""s_lshl_b32 s{sT1}, s{sU}, 1
s_add_u32 s{sT1}, s{sT1}, s{sKH}
s_mul_i32 s{sT0}, s{sT1}, 12288
s_add_u32 s{sT0}, s{sT0}, {L_S}
v_add_u32 v{vA0}, s{sT0}, v{vL16}
s_xor_b32 s{sT0}, s{sT1}, 1
s_mul_i32 s{sT0}, s{sT0}, 12288
s_add_u32 s{sT0}, s{sT0}, {L_S}
v_add_u32 v{vA1}, s{sT0}, v{vL16}
s_mul_i32 s{sT0}, s{sPE}, 6144
v_add_u32 v{vE0}, s{sT0}, v{vA1}
s_mul_i32 s{sT0}, s{sPE}, 9216
v_add_u32 v{vL0}, s{sT0}, v{vA0}""")
def su4():
    a.e(f"""v_and_b32 v{vT0}, 31, v{vLane}
v_lshlrev_b32 v{vK1a}, 4, v{vT0}
v_lshrrev_b32 v{vT1}, 5, v{vLane}
v_mul_u32_u24 v{vT1}, 384, v{vT1}
v_add_u32 v{vVa}, v{vK1a}, v{vT1}
v_mov_b32 v{vT1}, {OOB}
s_mov_b32 vcc_lo, 0xff880000
s_mov_b32 vcc_hi, 0xff880000
v_cndmask_b32 v{vVa}, v{vVa}, v{vT1}, vcc
v_lshlrev_b32 v{vL8}, 3, v{vLane}
s_lshl_b32 s{sT0}, s{sPAR}, 1
s_add_u32 s{sT0}, s{sT0}, s{sKH}
s_lshl_b32 s{sKV}, s{sXCD}, 15
s_lshl_b32 s{sT1}, s{sT0}, 13
s_add_u32 s{sKV}, s{sKV}, s{sT1}
v_lshrrev_b32 v{vFa}, 3, v{vLane}
v_add_u32 v{vFa}, s{sXCD}, v{vFa}
v_and_b32 v{vFa}, 7, v{vFa}
v_lshlrev_b32 v{vFa}, 5, v{vFa}
v_and_b32 v{vT1}, 7, v{vLane}
v_add_u32 v{vFa}, v{vFa}, v{vT1}
v_lshlrev_b32 v{vFa}, 7, v{vFa}
s_lshl_b32 s{sT1}, s{sT0}, 10
s_add_u32 s{sT1}, s{sT1}, {A_F1}
v_add_u32 v{vFa}, s{sT1}, v{vFa}
s_lshl_b32 s{sT1}, s{sT0}, 6
s_add_u32 s{sT1}, s{sT1}, {L_F01}
v_lshl_add_u32 v{vXp1}, v{vLane}, 2, s{sT1}""")
def su5():
    a.e(f"""s_and_b32 s{sT0}, s{sTT}, 2
s_mul_i32 s{sT0}, s{sT0}, 2560
s_add_u32 s{sT0}, s{sT0}, {L_Q2}
s_add_u32 s{sT1}, s{sT0}, 2560
v_lshrrev_b32 v{vT0}, 5, v{vLane}
v_lshl_add_u32 v{vT0}, v{vT0}, 10, v{vK1a}
s_lshl_b32 s{sT2}, s{sKH}, 9
s_xor_b32 s{sT3}, s{sT2}, 512
v_add_u32 v{vT1}, s{sT3}, v{vT0}
v_add_u32 v{vQa}, s{sT0}, v{vT1}
v_add_u32 v{vQa+2}, s{sT1}, v{vT1}
v_add_u32 v{vT1}, s{sT2}, v{vT0}
v_add_u32 v{vQa+1}, s{sT0}, v{vT1}
v_add_u32 v{vQa+3}, s{sT1}, v{vT1}
s_lshr_b32 s{sT3}, s{sT3}, 1
v_xor_b32 v{vT1}, s{sT3}, v{vL8}
v_add_u32 v{vQa+4}, s{sT0}, v{vT1}
v_add_u32 v{vQa+5}, s{sT1}, v{vT1}""")
    if opt.k1: a.e(f"v_and_b32 v{vT1}, 32, v{vLane}\nv_lshl_add_u32 v{vK1a}, v{vT1}, 7, v{vK1a}")
def touch():
    if "o" in opt.touch: a.e(f"s_load_dword s{sISS}, s[18:19], s{sO0}")
    if "u" in opt.touch: a.e(f"s_mul_i32 s{sT0}, s{sT}, 20480\ns_add_u32 s{sT0}, s{sT0}, s{sHGO}\ns_load_dword s{sISS}, s[14:15], s{sT0}")
    if "w" in opt.touch: a.e(f"s_load_dword s{sISS}, s[12:13], s{sHGO}")
def sub():
    a.e(f"v_and_b32 v{vSt}, 0xfffff3ff, v{vFa}\nv_or_b32 v{vSt}, s{sWQB}, v{vSt}")
    a.e(f"s_lshl_b32 s{sT0}, s{sJ}, 6\ns_add_u32 s{sT0}, s{sT0}, {L_F01}\nv_lshl_add_u32 v{vCx}, v{vLane}, 2, s{sT0}")
    a.e(f"v_lshlrev_b32 v{vT0}, 2, v{vLane}\nv_add_u32 v{vT0}, {L_FL}, v{vT0}\nv_mov_b32 v{vT1}, 0\ns_mov_b64 exec, 0xffff\nds_write_b32 v{vT0}, v{vT1}\ns_mov_b64 exec, -1")
def sur():
    a.e(f"""v_mul_u32_u24 v{vT0}, 52, v{vLane}
v_lshrrev_b32 v{vT0}, 9, v{vT0}
s_mul_i32 s{sT0}, s{sJ}, 704
v_lshl_add_u32 v{vRa}, v{vT0}, 4, v{vL16}
v_add_u32 v{vRa}, s{sT0}, v{vRa}
v_add_u32 v{vRb}, 51200, v{vRa}
v_mul_u32_u24 v{vGo}, 1120, v{vT0}
v_add_u32 v{vGo}, v{vGo}, v{vL16}
s_mul_i32 s{sOB}, s{sTB}, 81920
s_mul_i32 s{sT0}, s{sJ}, 5120
s_add_u32 s{sOB}, s{sOB}, s{sT0}
s_add_u32 s{sOB}, s{sOB}, s{sHGO}""")
def suw(g=1):
    a.e(f"""v_and_b32 v{vPw}, 15, v{vLane}
v_mul_u32_u24 v{vPw}, 176, v{vPw}
v_bfe_u32 v{vT1}, v{vLane}, 4, 1
s_mul_i32 s{sT0}, s{sJ}, 25600
v_mul_u32_u24 v{vT1}, 2816, v{vT1}
v_add3_u32 v{vPw}, v{vPw}, v{vT1}, s{sT0}
v_lshrrev_b32 v{vT1}, 5, v{vLane}
v_lshl_add_u32 v{vPw}, v{vT1}, 4, v{vPw}""" + f"\nv_mov_b32 v{vGo}, 0")
SU = [su0, su1, su2, su3, su4, su5]
def kslot(t): return vKr + 6 * (t % 3)
def vslot(t): return vVr + 8 * (t % 3)
def k1slot(t): return kslot(t // 2 if opt.k1 else t) + 4
def k_loads(t):
    b = kslot(t)
    return [(f"buffer_load_dwordx4 {vr(b,4)}, v{vL16}, {sr(sWS,4)}, s{sKV} offen sc1", ("k", t)),
            (f"buffer_load_dwordx2 {vr(k1slot(t),2)}, v{vK1a}, {sr(sWS,4)}, s{sKV} offen offset:1024 sc1", ("k", t))][:1 if opt.k1 and t % 2 else 2]
def v_loads(t):
    b = vslot(t)
    return [(f"buffer_load_dwordx4 {vr(b,4)}, v{vVa}, {sr(sWS,4)}, s{sKV} offen offset:1536 sc1", ("v", t)),
            (f"buffer_load_dwordx4 {vr(b+4,4)}, v{vVa}, {sr(sWS,4)}, s{sKV} offen offset:2304 sc1", ("v", t))]
def kv_advance(t):
    if t % 2 == 0: a.e(f"s_add_u32 s{sKV}, s{sKV}, 4096")
    else: a.e(f"s_add_u32 s{sKV}, s{sKV}, {32768-4096}\ns_and_b32 s{sKV}, s{sKV}, 0x3ffff")
FLOAD = f"buffer_load_dword v{vFlag}, v{vFa}, {sr(sWS,4)}, 0 offen sc1"
def flag_cmp(): a.e(f"v_cmp_ne_u32 {sr(sMSK,2)}, s{sTAG}, v{vFlag}")
def chunk_check(c):
    a.e(f"s_and_b32 s{sT0}, s{sMSK + c//4}, 0x{0xff << (8*(c%4)):x}\ns_cbranch_scc1 L_slow{c}")
    a.label(f"L_back{c}")
    slow_stubs.append(c)
nref = [0]
def flag_refresh():
    k = nref[0]; nref[0] += 1
    a.e(f"s_or_b32 s{sT0}, s{sMSK}, s{sMSK+1}\ns_cbranch_scc0 L_ref{k}\ns_mov_b64 exec, {sr(sMSK,2)}\n{FLOAD}\ns_mov_b64 exec, -1")
    a.label(f"L_ref{k}")
def first_kv(part):
    if part == 0:
        for x in k_loads(0): a.vload(*x)
        return
    if part == 1:
        for x in v_loads(0): a.vload(*x)
        kv_advance(0)
        return
    for x in k_loads(1): a.vload(*x)
a.e(f"""v_lshrrev_b32 v{vT0}, 6, v0
v_and_b32 v{vLane}, 63, v0
s_and_b32 s{sXCD}, s2, 7
s_lshr_b32 s{sT0}, s2, 3
v_readfirstlane_b32 s{sW}, v{vT0}
s_and_b32 s{sHG}, s{sT0}, 7
s_lshr_b32 s{sR}, s{sT0}, 3
s_lshl_b32 s{sTB}, s{sXCD}, 2
s_add_u32 s{sTB}, s{sTB}, s{sR}
v_lshrrev_b32 v{vT0}, 4, v0
v_xor_b32 v{vT0}, v{vT0}, v0
v_and_b32 v{vT0}, 7, v{vT0}
v_bfe_u32 v{vXp}, v0, 3, 4
v_mul_u32_u24 v{vXp}, 1280, v{vXp}
v_lshl_add_u32 v{vXp}, v{vT0}, 4, v{vXp}
s_and_b32 s{sJ}, s{sW}, 3
s_lshr_b32 s{sTK}, s{sHG}, 1
s_lshr_b32 s{sT1}, s{sJ}, 1
s_mul_i32 s{sT1}, s{sT1}, 640
s_mul_i32 s{sJH}, s{sTB}, 81920
s_add_u32 s{sJH}, s{sJH}, s{sT1}
s_and_b32 s{sJE}, s{sJ}, 1
s_lshl_b32 s{sJE}, s{sJE}, 6
s_add_u32 s{sJE}, s{sJE}, s{sT1}
s_lshl_b32 s{sJE}, s{sJE}, 4
v_lshlrev_b32 v{vL16}, 4, v{vLane}
s_mov_b32 s{sX+2}, 2621440
s_mov_b32 s{sX+3}, 0x00020000
""" + (f"""s_lshr_b32 s{sCC}, s2, 4
s_lshl_b32 s{sCC}, s{sCC}, 3
s_add_u32 s{sCC}, s{sCC}, s{sW}
s_mul_i32 s{sCC}, s{sCC}, 200
""" if opt.skv == 1 else "") + f"""s_mul_i32 s{sCA}, s{sJ}, 6400
s_mul_i32 s{sHGO}, s{sHG}, 160
s_cmp_lt_u32 s{sW}, 4
s_cbranch_scc0 L_b1""")
a.e(f"""s_mul_i32 s{sCX}, s{sTK}, 20480
s_add_u32 s{sT0}, s{sCX}, s{sJH}
s_add_u32 s{sT1}, s{sCX}, s{sJE}
s_waitcnt lgkmcnt(0)
s_mov_b32 s{sX}, s4
s_mov_b32 s{sX+1}, s5""")
if opt.debug: a.e("s_memrealtime s[90:91]\ns_memtime s[92:93]")
xtile(0)
skv("A")
light("d0")
a.e("s_branch L_a2")
a.label("L_b1")
a.vm = []
if opt.cpf:
    a.e(f"s_getpc_b64 {sr(sC0,2)}")
    a.label("L_pc")
    a.e(f"""s_lshr_b32 s{sT0}, s2, 3
s_lshl_b32 s{sT0}, s{sT0}, 2
s_add_u32 s{sT0}, s{sT0}, s{sJ}
s_lshl_b32 s{sT0}, s{sT0}, 8
v_lshlrev_b32 v{vT0}, 7, v{vLane}
v_add_u32 v{vT0}, s{sT0}, v{vT0}
v_min_u32 v{vT0}, L_last-L_pc, v{vT0}
s_mov_b64 exec, 3
global_load_dword v{vT2}, v{vT0}, {sr(sC0,2)}
s_mov_b64 exec, -1""")
vWa = 38
def waddr():
    a.e(f"v_and_b32 v{vWa+5}, 255, v0\ns_movk_i32 s{sT0}, 1120\ns_movk_i32 s{sT1}, 1280\ns_movk_i32 s{sT2}, -960")
    for m in range(5):
        d = vWa + m
        if m: a.e(f"v_add_u32 v{vWa+5}, 256, v{vWa+5}")
        a.e(f"""v_mul_u32_u24 v{vT1}, 6554, v{vWa+5}
v_lshlrev_b32 v{d}, 4, v{vWa+5}
v_lshrrev_b32 v{vT1}, 16, v{vT1}
v_mad_u32_u24 v{d}, v{vT1}, s{sT0}, v{d}
v_and_b32 v{vT0}, 12, v{vT1}
v_mad_u32_u24 v{d}, v{vT0}, s{sT1}, v{d}
v_and_b32 v{vT0}, 16, v{vT1}
v_mad_i32_i24 v{d}, v{vT0}, s{sT2}, v{d}""")
def slab_b(sl):
    rho, e = divmod(sl, 4)
    if e == 0 and rho: a.e(f"s_add_u32 s{sRG}, s{sRG}, 163840\ns_sub_u32 s{sRG+1}, s{sRG}, 819200\ns_min_u32 s{sRG}, s{sRG}, s{sRG+1}")
    for m in ((0, 1) if e == 0 else (e + 1,)):
        a.e(f"s_add_u32 m0, s{sWQB}, {P_R[rho] + 4096*m}\ns_nop 0")
        a.vload(f"buffer_load_dwordx4 v{vWa+m}, {sr(sWQ,4)}, s{sRG} offen lds", ("w", sl))
def wkv_dma(half):
    if half == 0:
        a.e(f"s_add_u32 m0, s{sCA}, {P_KVW}\ns_nop 0")
        for i in range(4): a.vload(f"buffer_load_dwordx4 v{vL16}, {sr(sWKV,4)}, s{sCA} offen offset:{1024*i} lds", ("kv",))
        return
    a.e(f"s_add_u32 m0, s{sCA}, {P_KVW+4096}\ns_add_u32 s{sT0}, s{sCA}, 4096")
    for i in range(3):
        if i == 2: a.e("s_mov_b64 exec, 0xffff")
        a.vload(f"buffer_load_dwordx4 v{vL16}, {sr(sWKV,4)}, s{sT0} offen offset:{1024*i} lds", ("kv",))
    a.e("s_mov_b64 exec, -1")
a.e(f"""s_mov_b32 s{sWKV+2}, 25600
s_mov_b32 s{sWKV+3}, 0x00020000
s_mov_b32 s{sWQ+2}, 819200
s_mov_b32 s{sWQ+3}, 0x00020000
s_lshl_b32 s{sWQB}, s{sJ}, 10
s_mul_i32 s{sRG}, s{sR}, 163840
s_add_u32 s{sRG}, s{sRG}, s{sHGO}""")
if opt.skv == 2: a.e(f"v_lshlrev_b32 v{vT3}, 7, v{vLane}\ns_lshr_b32 s{sCC}, s2, 4\ns_lshl_b32 s{sCC}, s{sCC}, 2\ns_add_u32 s{sCC}, s{sCC}, s{sJ}\ns_lshl_b32 s{sCC}, s{sCC}, 9")
if "a" not in opt.head: waddr()
a.e("s_waitcnt lgkmcnt(0)")
if opt.debug: a.e("s_memrealtime s[90:91]\ns_memtime s[92:93]")
skv("B")
a.e(f"s_mov_b32 s{sX}, s4\ns_mov_b32 s{sX+1}, s5\ns_mov_b32 s{sWQ}, s6\ns_mov_b32 s{sWQ+1}, s7")
kst = nstamp[0]
if opt.debug and (opt.only is None or "A" in opt.only):
    nstamp[0] += 3; STAMPS += ["A:data B:x", "A:chain B:k", "A:pub B:last"]
F0 = f"s_mov_b64 exec, 0xffff\nbuffer_load_dword v{vT1}, v{vSt}, {sr(sWS,4)}, 0 offen sc1\ns_mov_b64 exec, -1"
nsl = 0
todo = SU[:2] + [touch] + SU[2:] + [sub, sur]
for k, ch in enumerate(opt.head):
    if ch == "k": light("cA"); wkv_dma(0)
    elif ch == "K": wkv_dma(1); light("c0")
    elif ch == "a": waddr()
    elif ch == "p": a.e(f"s_setprio {opt.bprio}")
    elif ch in "123": xtile(int(ch))
    elif ch == "s": slab_b(nsl); nsl += 1
    elif ch == "t":
        a.e(f"s_lshr_b32 s{sT0}, s2, 3\ns_lshl_b32 s{sT0}, s{sT0}, 2\ns_add_u32 s{sT0}, s{sT0}, s{sJ}\ns_mul_i32 s{sT0}, s{sT0}, {128*opt.tn}\ns_add_u32 s{sT0}, s{sT0}, {819200 - 128*128*opt.tn}\ns_mov_b64 exec, {(1 << opt.tn) - 1}")
        a.vload(f"buffer_load_dword v{vT2}, v{vT3}, {sr(sWQ,4)}, s{sT0} offen", ("t",))
        a.e("s_mov_b64 exec, -1")
    elif ch == "u": todo.pop(0)()
    elif ch == "w": light("c1"); a.wait_vm(("kv",)); light("c2"); a.e("s_barrier")
assert nsl <= 8
light("c3")
tagwait()
a.wait_vm(("x",)); light("c4"); stamp_at(kst); a.e("s_barrier")
for sl in range(20 + opt.lead):
    if nsl <= sl < 20: slab_b(sl)
    if sl == opt.fl_at:
        assert not todo
        if opt.nof0 == 2: a.e(f"v_mov_b32 v{vT1}, s{sTAG}")
        else: a.e(F0); a.vm.append(("f0",))
    d = sl - opt.lead
    if d in opt.syncs:
        for k in range(opt.upers):
            if todo: todo.pop(0)()
        for p in opt.kv_at.get(d, ()): first_kv(p)
        hop(f"B{d}")
        a.wait_vm_if(("w", d))
        if d == opt.bk:
            assert sl >= 19
            a.wait_vm_if(("f0",))
            a.label("L_f0")
            a.e(f"s_mov_b64 exec, 0xff\nv_cmp_ne_u32 vcc, s{sTAG}, v{vT1}\n{'s_nop 0' if opt.nof0 else 's_cbranch_vccnz L_slowf0'}\ns_mov_b64 exec, 0xffff\nds_write_b32 v{vCx}, v{vT1}\ns_mov_b64 exec, -1")
            stamp_at(kst + 1)
        if d == 19: stamp_at(kst + 2)
        a.e("s_barrier")
for p in opt.kv_at.get(20, ()): first_kv(p)
hop("B20")
vm_join = list(a.vm)
a.e("s_waitcnt lgkmcnt(0)\ns_barrier")
a.e("s_branch L_bq")
a.label("L_a2")
cX, cW, cA, cR = 38, 98, 78, 138
light("d1")
for f in SU: f()
suw(0)
a.e(f"""s_add_u32 s{sCA}, s{sCA}, {P_KVW}
v_bfe_u32 v{vT0}, v{vLane}, 1, 3
v_lshrrev_b32 v{vT1}, 4, v{vLane}
v_xor_b32 v{vT0}, v{vT0}, v{vT1}
v_and_b32 v{vT1}, 15, v{vLane}
v_lshlrev_b32 v{vT1}, 7, v{vT1}
v_lshl_add_u32 v{vT0}, v{vT0}, 4, v{vT1}
s_lshl_b32 s{sT2}, s{sKH}, 6
v_xor_b32 v{vCx}, s{sT2}, v{vT0}
s_mul_i32 s{sT2}, s{sKH}, 3072
s_add_u32 s{sT2}, s{sT2}, s{sJE}
s_add_u32 s{sT2}, s{sT2}, s{sCX}
v_add_u32 v{vCx}, s{sT2}, v{vCx}
s_lshl_b32 s{sT2}, s{sKH}, 11
v_xor_b32 v{vCx2}, 64, v{vCx}
v_add_u32 v{vCx2}, s{sT2}, v{vCx2}
v_add_u32 v{vTq1}, {P_R[0]}, v{vTq0}
s_mul_i32 s{sT0}, s{sJ}, 20480
v_add_u32 v{vT0}, s{sT0}, v{vT0}
s_lshl_b32 s{sT0}, s{sR}, 12""")
for rho in range(5):
    if rho: a.e(f"s_add_u32 s{sT0}, s{sT0}, 4096\ns_sub_u32 s{sT1}, s{sT0}, 20480\ns_min_u32 s{sT0}, s{sT0}, s{sT1}")
    a.e(f"v_add_u32 v{vXa+rho}, s{sT0}, v{vT0}")
a.e(f"""v_lshrrev_b32 v{vT0}, 4, v{vLane}
v_bfe_u32 v{vT1}, v{vLane}, 2, 2
v_lshl_add_u32 v{vT0}, v{vT0}, 3, v{vT1}
v_mul_u32_u24 v{vT0}, 40, v{vT0}
v_add_u32 v{vT0}, s{sCA}, v{vT0}
v_and_b32 v{vT1}, 3, v{vLane}
v_lshlrev_b32 v{vT1}, 4, v{vT1}
v_min_u32 v{vCw}, 32, v{vT1}
v_add_u32 v{vCw}, v{vCw}, v{vT0}
v_add_u32 v{vT1}, 8, v{vT1}
v_min_u32 v{vCw+1}, 32, v{vT1}
v_add_u32 v{vCw+1}, v{vCw+1}, v{vT0}
s_mul_i32 s{sT0}, s{sJ}, 2560
s_add_u32 s{sT0}, s{sT0}, {L_Q2}
v_add_u32 v{vM2w}, s{sT0}, v{vL16}
v_add_u32 v{vM2h}, s{sT0}, v{vL8}
s_add_u32 s{sT1}, s{sW}, {L_FLG}
v_mov_b32 v{vT3}, s{sT1}
v_mov_b32 v{vFlag}, 0
s_mov_b64 exec, 1
ds_write_b8 v{vT3}, v{vFlag}
s_mov_b64 exec, -1
v_mov_b32 v{vFlag}, 1""")
a.e(f"""s_bitcmp1_b32 s{sHG}, 0
s_cbranch_scc1 L_ofv
v_lshrrev_b32 v{vT0}, 4, v{vLane}
v_and_b32 v{vT1}, 15, v{vLane}
v_lshlrev_b32 v{vT1}, 4, v{vT1}
v_lshl_add_u32 v{vSt}, v{vT0}, 9, v{vT1}
s_and_b32 s{sT1}, s{sTK}, 1
s_lshl_b32 s{sT1}, s{sT1}, 8
s_branch L_ofd""")
a.label("L_ofv")
a.e(f"""v_and_b32 v{vT0}, 7, v{vLane}
v_lshlrev_b32 v{vT0}, 2, v{vT0}
v_mov_b32 v{vT1}, 0x73625410
v_lshrrev_b32 v{vT0}, v{vT0}, v{vT1}
v_and_b32 v{vT0}, 7, v{vT0}
v_add_u32 v{vT0}, 16, v{vT0}
v_and_b32 v{vT1}, 4, v{vLane}
v_lshlrev_b32 v{vT1}, 1, v{vT1}
v_and_b32 v{vT2}, 3, v{vLane}
v_add_u32 v{vT1}, v{vT1}, v{vT2}
v_lshrrev_b32 v{vT2}, 5, v{vLane}
v_lshl_add_u32 v{vT1}, v{vT2}, 2, v{vT1}
s_mov_b32 vcc_lo, 0xff00ff00
s_mov_b32 vcc_hi, 0xff00ff00
v_cndmask_b32 v{vT0}, v{vT1}, v{vT0}, vcc
v_bfe_u32 v{vT1}, v{vLane}, 4, 1
v_mul_u32_u24 v{vT1}, 384, v{vT1}
v_lshl_add_u32 v{vSt}, v{vT0}, 4, v{vT1}
s_and_b32 s{sT1}, s{sTK}, 1
s_mul_i32 s{sT1}, s{sT1}, 768
s_add_u32 s{sT1}, s{sT1}, 1536""")
a.label("L_ofd")
a.e(f"""s_lshl_b32 s{sT0}, s{sTB}, 13
s_lshr_b32 s{sT2}, s{sTK}, 1
s_lshl_b32 s{sT2}, s{sT2}, 12
s_add_u32 s{sT0}, s{sT0}, s{sT2}
s_add_u32 s{sT0}, s{sT0}, s{sT1}
v_add_u32 v{vT2}, s{sCA}, v{vL16}""")
light("d2")
tagwait()
light("d3")
a.e("s_waitcnt vmcnt(0)")
light("cA")
a.e("s_barrier")
stamp_at(kst)
light("c0")
def cw_read(i):
    a.lds(f"ds_read_b128 {vr(cX+4*i,4)}, v{vCx2 if i%2 else vCx} offset:{2048*(i//2)}", ("cx", i))
    for h in range(2):
        for q in range(2):
            a.lds(f"ds_read_b64_tr_b16 {vr(cW+8*i+4*h+2*q,2)}, v{vCw+h} offset:{i*1280+q*160}", ("cw", i, h))
for i in range(5): cw_read(i)
light("c1")
a.e(f"s_bitcmp1_b32 s{sHG}, 0\ns_cbranch_scc1 L_chv")
save = list(a.lg)
for mat in range(2):
    a.lg = list(save)
    if mat: a.label("L_chv")
    for i in range(5):
        for h in range(2):
            a.wait_lg(("cw", i, h))
            W, X = vr(cW + 8 * i + 4 * h, 4), vr(cX + 4 * i, 4)
            c = "0" if i == 0 else vr(cA + 4 * h, 4)
            a.e(f"v_mfma_f32_16x16x32_bf16 {vr(cA+4*h,4)}, {W if not mat else X}, {X if not mat else W}, {c}")
    if not mat: a.e("s_branch L_chd")
a.label("L_chd")
light("c2")
a.e(f"s_cmp_eq_u32 s{sW}, 0\ns_cbranch_scc1 L_fin0\ns_nop 5")
a.e(f"ds_write_b128 v{vT2}, {vr(cA,4)}\nds_write_b128 v{vT2}, {vr(cA+4,4)} offset:1024")
a.e(f"s_mov_b64 exec, 1\nds_write_b8 v{vT3}, v{vFlag}\ns_mov_b64 exec, -1")
stamp_at(kst + 1)
hop("A")
a.e("s_branch L_bx")
a.label("L_fin0")
a.e(f"ds_read_b32 v{cR+24}, v{vT3}")
for j in range(1, 4):
    for h in range(2): a.e(f"ds_read_b128 {vr(cR+8*(j-1)+4*h,4)}, v{vT2} offset:{6400*j+1024*h}")
a.e(f"""s_add_u32 s{sSPIN}, s{sSPIN}, 1
s_cmp_lt_u32 s{sSPIN}, 1000000
s_cbranch_scc0 L_end
s_waitcnt lgkmcnt(6)
v_cmp_ne_u32 vcc, 0x01010100, v{cR+24}
s_waitcnt lgkmcnt(0)
s_cbranch_vccnz L_fin0""")
light("c3")
stamp_at(kst + 1)
for i in range(8):
    a.e(f"v_add_f32 v{cA+i}, v{cA+i}, v{cR+i}\nv_add_f32 v{cR+8+i}, v{cR+8+i}, v{cR+16+i}")
for i in range(8): a.e(f"v_add_f32 v{cA+i}, v{cA+i}, v{cR+8+i}")
SCALE = math.log2(math.e) / math.sqrt(20.0)
SCX = f"0x{struct.unpack('<I', struct.pack('<f', SCALE))[0]:08x}"
a.e(f"s_bitcmp1_b32 s{sHG}, 0\ns_cbranch_scc1 L_stv")
for i in range(8): a.e(f"v_mul_f32 v{cA+i}, {SCX}, v{cA+i}")
for i in range(4): a.e(f"v_cvt_pk_bf16_f32 v{cR+i}, v{cA+2*i}, v{cA+2*i+1}")
a.e("s_mov_b32 exec_hi, 0xffff\ns_branch L_std")
a.label("L_stv")
for i in range(4): a.e(f"v_cvt_pk_bf16_f32 v{cR+i}, v{cA+2*i}, v{cA+2*i+1}")
a.e(f"v_add_f32 v{vT0}, abs(v{cA}), abs(v{cA+1})")
for i in range(2, 8): a.e(f"v_add_f32 v{vT0}, v{vT0}, abs(v{cA+i})")
a.e(f"v_permlane32_swap_b32 v{cR}, v{cR+2}\nv_permlane32_swap_b32 v{cR+1}, v{cR+3}")
a.e(f"v_cmp_nge_f32 vcc, 0x5c000000, v{vT0}\ns_mov_b32 s{sT1}, 0x3f803f80\ns_nop 0\ns_cmp_lg_u64 vcc, 0\ns_cselect_b32 s{sT1}, 0x7f807f80, s{sT1}")
a.e("s_mov_b64 exec, 0x30003000")
for i in range(4): a.e(f"v_mov_b32 v{cR+i}, s{sT1}")
a.e("s_mov_b32 exec_lo, 0xc000c000")
for i in range(4): a.e(f"v_mov_b32 v{cR+i}, 0")
a.e("s_mov_b32 exec_lo, -1\ns_mov_b32 exec_hi, 0x00ff00ff")
a.label("L_std")
a.e(f"""buffer_store_dwordx4 {vr(cR,4)}, v{vSt}, {sr(sWS,4)}, s{sT0} offen sc1
s_mov_b64 exec, -1
s_lshl_b32 s{sCC}, s{sTB}, 3
s_add_u32 s{sCC}, s{sCC}, s{sHG}
s_lshl_b32 s{sCC}, s{sCC}, 7
s_add_u32 s{sCC}, s{sCC}, {A_F1}
v_mov_b32 v{vT1}, s{sTAG}""")
def publish():
    a.e(f"s_cmp_eq_u32 s{sW}, 0\ns_cbranch_scc0 L_pubd\ns_mov_b64 exec, 1\ns_waitcnt vmcnt(0)\nbuffer_store_dword v{vT1}, v{vL16}, {sr(sWS,4)}, s{sCC} offen sc1\ns_mov_b64 exec, -1")
    keep = list(a.lg); stamp_at(kst + 2); a.lg = keep
    a.label("L_pubd")
a.label("L_bx")
light("c4")
a.lg = []; a.vm = []
a.e("s_barrier")
stamp("Bx")
for e in range(2):
    for i in range(e, 20, 2):
        a.lds(f"ds_read_b128 {vr(vXf+4*i,4)}, v{vXa+i//4} offset:{2048*(i%4//2)}", ("x", i))
        if e == 0 and i % 4 == 2: a.e(f"v_xor_b32 v{vXa+i//4}, 64, v{vXa+i//4}")
js = [(i, t) for i in range(10) for t in range(5)]
qs = [(i, t) for i in range(20) for t in range(opt.dskip)]
for i in range(4 * opt.dskip, 20): a.e(f"v_mov_b32 v{vAcc+i}, 0")
NR1 = 11
assert opt.pub_at in opt.syncs and opt.bk in opt.syncs and 19 in opt.syncs and opt.pub_at < opt.bk
issued = 0
avail = -1
def trq(f, i, t):
    if opt.dmode == "m" and t and i > 2: return
    rho, e = divmod(i, 4)
    base, off = (vTq1, P_R[rho] - P_R[0]) if rho < 3 else (vTq0, P_R[rho])
    for q in range(2):
        a.lds(f"ds_read_b64_tr_b16 {vr(f+2*q,2)}, v{base} offset:{off + e*5120 + 8*t + q*2560}", ("fr", i, t))
for j, (i, t) in enumerate(qs):
    while issued < len(qs) and issued < j + opt.ahead:
        if qs[issued][0] > avail:
            if qs[issued][0] >= opt.drain and issued > j: break
            nxt_s = min(x for x in opt.syncs if x > avail)
            if avail < 0: a.wait_lg(("x", 19))
            if nxt_s == opt.pub_at: publish()
            for p in opt.kv_a.get(nxt_s, ()): first_kv(p)
            a.e("s_barrier")
            avail = nxt_s
            stamp(f"S{avail}")
        trq(vFr + 4 * (issued % NR1), *qs[issued]); issued += 1
    a.wait_lg(("fr", i, t))
    c = "0" if i == 0 else vr(vAcc + 4 * t, 4)
    if opt.dmode == "r" and t and 0 < i < 19: continue
    a.e(f"v_mfma_f32_16x16x32_bf16 {vr(vAcc+4*t,4)}, {vr(vFr+4*(j%NR1),4)}, {vr(vXf+4*i,4)}, {c}")
stamp("qgemm")
vPk = vXf
a.e("s_nop 3")
for i in range(4): a.e(f"v_cvt_pk_bf16_f32 v{vPk+i}, v{vAcc+2*i}, v{vAcc+2*i+1}")
a.e(f"ds_write_b128 v{vM2w}, {vr(vPk,4)}")
for i in range(4, 8): a.e(f"v_cvt_pk_bf16_f32 v{vPk+i}, v{vAcc+2*i}, v{vAcc+2*i+1}")
a.e(f"ds_write_b128 v{vM2w}, {vr(vPk+4,4)} offset:1024")
for i in range(8, 10): a.e(f"v_cvt_pk_bf16_f32 v{vPk+i}, v{vAcc+2*i}, v{vAcc+2*i+1}")
a.e(f"ds_write_b64 v{vM2h}, {vr(vPk+8,2)} offset:2048")
for p in opt.kv_a.get(20, ()): first_kv(p)
a.e("s_waitcnt lgkmcnt(0)\ns_barrier")
for p in opt.kv_a.get(21, ()): first_kv(p)
assert a.vm == vm_join, (a.vm, vm_join)
for kv in (opt.kv_at, opt.kv_a): assert min(kv) > opt.bk and all(k in opt.syncs or k >= 20 for k in kv)
a.label("L_bq")
a.lg = []
stamp("E2")
a.lds(f"ds_read_b64 {vr(vQH[0],2)}, v{vQa+4} offset:2048", ("q", 0))
a.lds(f"ds_read_b128 {vr(vQ[0],4)}, v{vQa}", ("q", 0))
a.lds(f"ds_read_b128 {vr(vQ[1],4)}, v{vQa+1}", ("q", 0))
a.lds(f"ds_read_b64 {vr(vQH[1],2)}, v{vQa+5} offset:2048", ("q", 1))
a.lds(f"ds_read_b128 {vr(vQ[2],4)}, v{vQa+2}", ("q", 1))
a.lds(f"ds_read_b128 {vr(vQ[3],4)}, v{vQa+3}", ("q", 1))
a.e(f"s_not_b32 s{sT0}, s{sTAG}\nv_mov_b32 v{vFlag}, s{sT0}\ns_mov_b64 exec, 0xffff")
a.lds(f"ds_read_b32 v{vFlag}, v{vXp1}", ("q", 1))
a.e("s_mov_b64 exec, -1")
seq = [(t, p) for t in range(13) for p in range(2)] + [(t, p) for p in range(2) for t in (13, 14, 15)]
NS = 32
def s2b(n): t, p = seq[n]; S = vS[n % 2]; return f"v_mfma_f32_32x32x4_2b_bf16 {vr(S,32)}, {vr(k1slot(t),2)}, {vr(vQH[p],2)}, 0" + (f" cbsz:1 abid:{t&1}" if opt.k1 else "")
def s16(n, x): t, p = seq[n]; S = vS[n % 2] + 16 * x; return f"v_mfma_f32_32x32x16_bf16 {vr(S,16)}, {vr(kslot(t),4)}, {vr(vQ[2*p+x],4)}, {vr(S,16)}"
def pv(n, g):
    t, p = seq[n]; O = vO + 16 * (2 * p + g // 2)
    c = "0" if (t == 0 and g % 2 == 0) else vr(O, 16)
    return f"v_mfma_f32_32x32x16_bf16 {vr(O,16)}, {vr(vslot(t)+4*(g%2),4)}, {vr(vP+4*g,4)}, {c}"
a.wait_vm(("k", 0))
a.wait_lg(("q", 0))
if opt.dly:
    a.e(f"s_mov_b32 s{sT0}, {opt.dly}")
    a.label("L_dly")
    a.e(f"s_nop 15\ns_sub_u32 s{sT0}, s{sT0}, 1\ns_cbranch_scc0 L_dly")
stamp("kv0")
a.e(s2b(0))
a.e(f"v_mov_b32 v{vR1}, -1\nv_mov_b32 v{vR1+1}, -1\nv_mov_b32 v{vR1+2}, -1\nv_mov_b32 v{vR1+3}, -1\ns_xor_b32 s{sT0}, s{sTAG}, s{sXCC}\nv_mov_b32 v{vR1+4}, s{sT0}")
for x in v_loads(1): a.vload(*x)
kv_advance(1)
a.e("s_nop 7"); a.e(s16(0, 0)); a.e(s16(0, 1)); a.wait_lg0(); a.e("s_nop 9")
assert opt.dual and opt.order[0] == 0 and opt.order[3] == 3
vOB = dict(zip(opt.order, (vO, 182, vO, 158)))
vAC = dict(zip(opt.order, ([158, 162, 178, 202, 220], range(18, 38, 4), range(222, 242, 4), range(202, 222, 4))))
vFb, vF8 = vWoB, vWoA
SPIN = f"s_add_u32 s{sSPIN}, s{sSPIN}, 1\ns_cmp_lt_u32 s{sSPIN}, 1000000\ns_cbranch_scc0 L_end"
vRdy = vR1 + 22
def normalize(S, T, fail):
    a.e(f"v_subrev_u32 v{T}, 0x21800000, v{S+10}\nv_cmp_lt_u32 vcc, 0x3c000000, v{T}")
    a.e(f"s_branch {fail}" if opt.force_fallback else f"s_cbranch_vccnz {fail}")
ostubs = []
def ostore(T, pol, tag):
    o = sE0 if tag == "e" else sO0
    a.e(f"buffer_store_dwordx4 {vr(T,4)}, v{vL16}, {sr(sWS,4)}, s{o} offen{pol}")
    a.e(f"buffer_store_dword v{T+4}, v{vL8}, {sr(sWS,4)}, s{o+1} offen{pol}")
def scale(S, T):
    a.e(f"v_rcp_f32 v{S+10}, v{S+10}\ns_or_b32 s{sT0}, s{sMSK}, s{sMSK+1}")
    if opt.pk:
        for i in range(0, 10, 2): a.e(f"v_pk_mul_f32 {vr(S+i,2)}, {vr(S+i,2)}, {vr(S+10,2)} op_sel_hi:[1,0]")
    else:
        for i in range(10): a.e(f"v_mul_f32 v{S+i}, v{S+i}, v{S+10}")
    for i in range(5): a.e(f"v_cvt_pk_bf16_f32 v{T+i}, v{S+2*i}, v{S+2*i+1}")
def finish(S, T, tag):
    scale(S, T)
    a.label(f"L_ost{tag}")
    if opt.fast:
        a.e(f"s_cbranch_scc1 L_osc{tag}")
        ostore(T, opt.opol[tag], tag)
        ostubs.append((T, tag))
    else: ostore(T, " sc1", tag)
    a.label(f"L_osd{tag}")
def opoll(tile, jj):
    b = vOB[tile]
    so = sOJ + jj
    if tile: a.e(f"s_add_u32 s{sT1}, s{so}, {tile*20480}"); so = sT1
    a.e(f"buffer_load_dwordx4 {vr(b+8*jj,4)}, v{vL16}, {sr(sWS,4)}, s{so} offen sc1")
    a.e(f"buffer_load_dwordx4 {vr(b+8*jj+4,4)}, v{vL16}, {sr(sWS,4)}, s{so} offen offset:1024 sc1")
    a.e(f"buffer_load_dwordx2 {vr(b+16+2*jj,2)}, v{vL8}, {sr(sWS,4)}, s{so} offen offset:2048 sc1")
def SETF(off): return f"s_mov_b64 exec, 1\nds_write_b8 v{vFa}, v{vFlag} offset:{off}\ns_mov_b64 exec, -1"
vPkd = vR1 + 12
jd = [(u, t) for u in range(2) for t in range(5)] + [(2 + u, d - u) for d in range(7) for u in (2, 1, 0) if 0 <= d - u < 5]
js = [(u, t) for u in range(5) for t in range(5)]
ring = dict(zip(js, list(range(38, 118, 4)) + list(range(138, 158, 4))))
nblk = [0]
class only_par:
    def __init__(s_, par, reg=sPAR): s_.par = par; s_.reg = reg
    def __enter__(s_):
        s_.k = nblk[0]; nblk[0] += 1
        a.e(f"s_cmp_eq_u32 s{s_.reg}, {s_.par}\ns_cbranch_scc0 L_blk{s_.k}")
    def __exit__(s_, *x): a.label(f"L_blk{s_.k}")
def wr3(addr, off, src):
    for i in range(3): a.e(f"ds_write_b128 v{addr}, {vr(src+4*i,4)} offset:{off+1024*i}")
def rd3(addr, off, dst):
    for i in range(3): a.e(f"ds_read_b128 {vr(dst+4*i,4)}, v{addr} offset:{off+1024*i}")
def add11(dst, src):
    if opt.pk:
        for i in range(0, 10, 2): a.e(f"v_pk_add_f32 {vr(dst+i,2)}, {vr(dst+i,2)}, {vr(src+i,2)}")
        a.e(f"v_add_f32 v{dst+10}, v{dst+10}, v{src+10}")
    else:
        for i in range(11): a.e(f"v_add_f32 v{dst+i}, v{dst+i}, v{src+i}")
vRc = [vO, vVr + 8, vR1]
def roleprio(key):
    if key in opt.prioE:
        with only_par(0, sU): a.e(f"s_setprio {opt.prioE[key]}")
    if key in opt.prioL:
        with only_par(1, sU): a.e(f"s_setprio {opt.prioL[key]}")
def ereads():
    a.e(f"ds_read_b32 v{vT0}, v{vFb} offset:8")
    rd3(vA0, 0, vR1); rd3(vA0, 3072, vR1 + 12); rd3(vA0, 6144, vO)
def lreads():
    a.e(f"ds_read_b32 v{vRdy}, v{vFb}")
    rd3(vA1, 0, vRc[0]); rd3(vA1, 9216, vRc[1])
def l2reads():
    a.e(f"ds_read_u8 v{vRdy+1}, v{vFa} offset:46")
    rd3(vX1, 3072, vRc[2])
def preads():
    a.e(f"ds_read_u8 v{vRdy}, v{vFp}")
    rd3(vL1, 0, vRc[0])
def late1():
    with only_par(1, sU):
        with only_par(1): l2reads()
        preads()
ksched = {2 * t - 4: t for t in range(2, 15)}; vsched = {2 * t - 3: t for t in range(2, 15)}
for n in range(NS):
    t, p = seq[n]
    a.c(f"half-step {n}: tile {t} pair {p}")
    if n in opt.prio: a.e(f"s_setprio {opt.prio[n]}")
    roleprio(n)
    if n == 0 and opt.debug and opt.only and not any(x[0] in "cd" for x in opt.only):
        for r in (0, 4, 6, 8, 10, 16, 12, 14, 18, 20, 22, 24, 26, 28, 30): a.e(f"s_mov_b32 s{r}, 0")
    if n in (4, 8, 16, 24, 29, 30, 31): stamp(f"step{n}")
    light(f"h{n}")
    S = vS[n % 2]
    ex = [f"v_exp_f32 v{S+i}, v{S+i}" for i in range(32)]
    cv = [f"v_cvt_pk_bf16_f32 v{vP+i}, v{S+2*i}, v{S+2*i+1}" for i in range(16)]
    E = lambda lo, hi: [a.e(x) for x in ex[lo:hi]]
    C = lambda lo, hi: [a.e(x) for x in cv[lo:hi]]
    L = k_loads(ksched[n]) if n in ksched else v_loads(vsched[n]) if n in vsched else v_loads(15) if n == 26 else []
    def LD(i):
        if i < len(L): a.vload(*L[i])
    nxt = n + 1 < NS
    E(0, 2)
    if n > 0: a.e(pv(n - 1, 3))
    E(2, 6)
    if nxt:
        a.wait_vm_if(("k", seq[n + 1][0]))
        a.e(s2b(n + 1))
    if n == 30:
        with only_par(0, sPE): ereads()
    if n == 31:
        with only_par(0, sU): a.e(f"ds_read_b64 {vr(vT0,2)}, v{vF8} offset:16")
    E(6, 8)
    if n in (0, 4, 8):
        a.wait_vm_if(("flag",))
        flag_cmp()
    C(0, 4)
    if n in ksched and ksched[n] % 2 == 0: chunk_check(ksched[n] // 2)
    LD(0); E(8, 12); LD(1)
    if n in vsched: kv_advance(vsched[n])
    if n in (1, 5): flag_refresh()
    E(12, 13)
    a.wait_vm_if(("v", t))
    a.e(pv(n, 0))
    E(13, 16)
    if n == opt.clr_at:
        a.e(f"buffer_store_dwordx4 {vr(vR1,4)}, v{vL16}, {sr(sWS,4)}, s{sO0} offen sc1")
        a.e(f"buffer_store_dword v{vR1}, v{vL8}, {sr(sWS,4)}, s{sO1} offen sc1")
    if n == 3:
        a.e(f"""s_mul_i32 s{sT1}, s{sTB}, 81920
s_lshr_b32 s{sT0}, s{sJ}, 1
s_mul_i32 s{sT0}, s{sT0}, 10240
s_add_u32 s{sT1}, s{sT1}, s{sT0}
s_add_u32 s{sT1}, s{sT1}, {A_O}
s_lshl_b32 s{sT0}, s{sJ}, 1
s_xor_b32 s{sT0}, s{sT0}, s{sHG}
s_andn2_b32 s{sT0}, 3, s{sT0}
s_mul_i32 s{sOJ}, s{sT0}, 2560
s_add_u32 s{sOJ}, s{sOJ}, s{sT1}
s_xor_b32 s{sT0}, s{sT0}, 1
s_mul_i32 s{sOJ+1}, s{sT0}, 2560
s_add_u32 s{sOJ+1}, s{sOJ+1}, s{sT1}""")
    if n == 27:
        assert opt.wo0 + 20 / opt.wok <= 25
        a.e(f"s_lshl_b32 s{sT0}, s{sTT}, 1\ns_add_u32 s{sT0}, s{sT0}, s{sKH}\ns_add_u32 s{sT0}, s{sT0}, {L_FL}\nv_mov_b32 v{vFa}, s{sT0}\nv_mov_b32 v{vFlag}, 1\nv_and_b32 v{vFb}, -4, v{vFa}\nv_mov_b32 v{vF8}, {L_FL}")
        if opt.dual: a.e(f"""s_mul_i32 s{sT1}, s{sU}, 20480
s_sub_u32 s{sE0}, s{sO0}, s{sT1}
s_sub_u32 s{sE1}, s{sO1}, s{sT1}
s_lshl_b32 s{sT1}, s{sU}, 1
v_subrev_u32 v{vFe}, s{sT1}, v{vFa}
s_mul_i32 s{sT1}, s{sKH}, {3072 - 12288}
s_add_u32 s{sT1}, s{sT1}, {L_X - L_S - 24576 - 3072}
s_mul_i32 s{sT1}, s{sT1}, s{sU}
v_add_u32 v{vX1}, s{sT1}, v{vA0}
s_mul_i32 s{sT1}, s{sPE}, 9216
v_add_u32 v{vL1}, s{sT1}, v{vA1}
v_xor_b32 v{vFp}, 1, v{vFa}""")
        else: a.e(f"s_mov_b32 s{sE0}, s{sO0}\ns_mov_b32 s{sE1}, s{sO1}\nv_mov_b32 v{vFe}, v{vFa}\nv_mov_b32 v{vX1}, v{vA0}")
    if n == opt.clr_at + 6:
        a.e(f"s_mov_b64 exec, 1\nbuffer_store_dword v{vR1+4}, v{vL16}, {sr(sWS,4)}, s{sF2} offen sc1\ns_mov_b64 exec, -1")
    if n == opt.clr_at + 7 and opt.otouch:
        a.e(f"buffer_load_dwordx4 {vr(vR1+8,4)}, v{vL16}, {sr(sWS,4)}, s{sO0} offen{opt.otouch}")
        a.e(f"buffer_load_dword v{vR1+12}, v{vL8}, {sr(sWS,4)}, s{sO1} offen{opt.otouch}")
    if n == 23:
        a.e(f"v_and_b32 v{vT0}, 15, v{vLane}\nv_lshlrev_b32 v{vT0}, 7, v{vT0}\ns_and_b32 s{sF2}, s{sF2}, 0xfffff800")
        a.vload(f"buffer_load_dword v{vT1}, v{vT0}, {sr(sWS,4)}, s{sF2} offen sc1", ("f2",))
    if n == 25:
        for x in k_loads(15): a.vload(*x)
    if n == 28:
        assert ("f2",) not in a.vm
        a.label("L_f2")
        a.e(f"""v_xor_b32 v{vT1}, s{sTAG}, v{vT1}
v_cmp_lt_u32 vcc, 7, v{vT1}
s_cbranch_vccnz L_slowf2
v_cmp_ne_u32 {sr(sMSK,2)}, s{sXCC}, v{vT1}""")
        assert not any(x[0] == "wo" for x in a.vm) and ("k", 14) not in a.vm and opt.wo0 + 20 / opt.wok <= 24
        a.e(SETF(16))
    if n == 29: wr3(vE0, 0, vO)
    if n == 31:
        with only_par(0, sU):
            a.label("L_okc")
            a.e(f"s_waitcnt lgkmcnt(0)\nv_and_b32 v{vT0}, v{vT0}, v{vT1}\nv_cmp_ne_u32 vcc, 0x01010101, v{vT0}\ns_cbranch_vccnz L_okslow")
    if n == 30:
        with only_par(0, sPE):
            a.label("L_erd")
            a.e(f"s_waitcnt lgkmcnt(3)\nv_cmp_ne_u32 vcc, 0x01010101, v{vT0}\ns_cbranch_vccnz L_eslow"); add11(vO + 16, vR1); add11(vO + 16, vR1 + 12)
    C(4, 8); E(16, 18)
    a.e(pv(n, 1))
    E(18, 22)
    if nxt: a.e(s16(n + 1, 0))
    E(22, 24)
    s = n - opt.wo0
    wol = [x for x in range(s * opt.wok, (s + 1) * opt.wok) if 0 <= x < 20]
    if opt.wpf is not None and 0 <= n - opt.wpf[0] < -(-25 // opt.wpf[1]):
        k0 = (n - opt.wpf[0]) * opt.wpf[1]
        if k0 == 0: a.e(f"s_and_b32 s{sT0}, s2, -8\ns_add_u32 s{sT0}, s{sT0}, s{sW}\ns_lshl_b32 s{sT0}, s{sT0}, 7\ns_add_u32 s{sWP}, s{sWO}, s{sT0}\ns_addc_u32 s{sWP+1}, s{sWO+1}, 0")
        for k in range(k0, min(25, k0 + opt.wpf[1])): a.e(f"s_load_dwordx2 {sr(sJE,2)}, {sr(sWP,2)}, {k*32768 + 60}")
    for s in ([] if opt.nowo else wol):
        khs, i = divmod(s, 10); pp, u = divmod(i, 5)
        if u < 4: so = f"s_add_u32 s{sT2}, s{sPJ + 2*pp + u//2}, {(320*khs + 40*(u%2))*1280}"
        else: so = f"s_min_u32 s{sT2}, s{sPJ+2*pp}, s{sPJ+2*pp+1}\ns_add_u32 s{sT2}, s{sT2}, {320*khs*1280}"
        ld = f"buffer_load_dwordx4 v{vWoA if u < 4 else vWoB}, {sr(sWO,4)}, s{sT2} offen lds"
        m0 = f"s_add_u32 m0, s{sM0B}, {L_W + khs*51200 + i*5120}\n{so}"
        if opt.wo64 == 1:
            a.e(f"s_bitcmp1_b32 s{sWM}, {s}\ns_cbranch_scc0 L_wo{s}\n{m0}\n{ld}")
            a.label(f"L_wo{s}")
            wo_last = len(a.lines)
        elif opt.wo64 == 2:
            a.e(f"{m0}\ns_bitcmp1_b32 s{sWM}, {s}\ns_cselect_b64 exec, -1, 0")
            a.vload(ld, ("wo", s))
            a.e("s_mov_b64 exec, -1")
        else:
            a.e(m0)
            if s == wol[0]: a.e("s_mov_b32 exec_hi, 0xff")
            a.vload(ld + opt.wopol, ("wo", s))
            if s == wol[-1]: a.e("s_mov_b32 exec_hi, -1")
    if n == 29:
        with only_par(1, sPE): wr3(vA0, 3072, vO + 16)
        a.e(SETF(8))
    if n == 30:
        with only_par(0, sPE):
            a.e("s_waitcnt lgkmcnt(0)"); add11(vO + 16, vO)
            normalize(vO + 16, vR1 + 12, "L_defer")
            finish(vO + 16, vR1 + 12, "e")
            a.e(SETF(24).replace(f"v{vFa},", f"v{vFe},"))
            a.label("L_deferred")
    roleprio(n + 0.5)
    C(8, 12); E(24, 26)
    a.e(pv(n, 2))
    if n == 31:
        wr3(vL0, 0, vO + 32)
        a.e(SETF(0))
    E(26, 30)
    if n == 31 and opt.lpos == 1: late1()
    if nxt: a.e(s16(n + 1, 1))
    E(30, 32)
    if n == 31 and opt.lpos == 2: late1()
    C(12, 16)
a.e("s_nop 1")
a.e(pv(NS - 1, 3))
if opt.lpos == 3: late1()
stamp("loop end")
light("t0")
vSum = vO + 48
a.e(f"s_cmp_eq_u32 s{sTT}, 3\ns_cbranch_scc0 L_other")
def wstart(p0=opt.p0):
    for j in range(25):
        if j == p0: [opoll(0, jj) for jj in range(2)]
        trd(ring[js[j]], *js[j], ("fr",) + js[j])
a.label("L_t3")
a.e(f"s_waitcnt lgkmcnt(0)\nv_and_b32 v{vRdy}, v{vRdy}, v{vRdy+1}\nv_cmp_ne_u32 vcc, 1, v{vRdy}\ns_cbranch_vccnz L_t3w")
add11(vRc[0], vRc[2])
stamp("L rd")
light("t1")
add11(vSum, vRc[0])
normalize(vSum, vRc[0], "L_fallback")
finish(vSum, vPkd, "l")
a.e(SETF(24))
stamp("O stored")
light("t2"); light("r2")
a.e(f"s_cmp_eq_u32 s{sDEF}, 0\ns_cbranch_scc0 L_dfb")
a.label("L_role")
a.e(f"s_cmp_eq_u32 s{sU}, 0\ns_cbranch_scc1 L_work")
def otest(e, jj):
    b = vOB[e]
    a.e(f"v_max_u32 v{vT0}, v{b+16+2*jj}, v{b+17+2*jj}\nv_max3_u32 v{vT0}, v{vT0}, v{b+8*jj+3}, v{b+8*jj+7}\nv_cmp_eq_u32 vcc, -1, v{vT0}")
fstubs = []; gdone = []
def fread(reg, op, addr, off): return f"{op} v{reg}, v{addr} offset:{off}"
def fcheck(name, rd, reg, val):
    a.wait_lg(name)
    a.label(f"L_fc{name}")
    a.e(f"v_cmp_ne_u32 vcc, {val}, v{reg}\ns_cbranch_vccnz L_fs{name}")
    fstubs.append((name, rd))
def pub(tile): return fread(vRdy, "ds_read_u16", vF8, 24 + 2 * tile)
def project(first):
    a.lg = [("fr",) + js[j] for j in range(25) for q in range(2)]
    vm = [(0, 0)] * 3 + [(0, 1)] * 3
    order = opt.order
    sfx = "f" if first else ""
    side = {}
    assert opt.ndef >= 1
    def at(i, f): side.setdefault(i, []).append(f)
    def wr(tile, t, c=""): return lambda: a.lds(f"ds_write_b128 v{vPx}, {vr(vAC[tile][t],4)} offset:{5632*tile + 32*t}{c}", "w")
    def flag(tile):
        def f(): a.e(SETF(32 + 4 * tile)); a.lg.append("w"); light(f"g{tile}")
        return f
    def entry():
        a.label("L_work2"); a.lg = []
    at(24, entry)
    for k, tile in enumerate(order):
        b = vOB[tile]
        for jj in range(2):
            i = 25 * k + 10 * jj - 1
            sp = 0 if jj == 0 and k != 2 else 1
            at(i - 2 * sp, lambda tile=tile, jj=jj, b=b: a.e(f"s_waitcnt vmcnt({vm[::-1].index((tile, jj))})\nv_max_u32 v{vT0}, v{b+16+2*jj}, v{b+17+2*jj}"))
            at(i - sp, lambda jj=jj, b=b: a.e(f"v_max3_u32 v{vT0}, v{vT0}, v{b+8*jj+3}, v{b+8*jj+7}"))
            def br(tile=tile, jj=jj):
                a.e(f"v_cmp_eq_u32 vcc, -1, v{vT0}\ns_cbranch_vccnz L_oslow{tile}{jj}{sfx}")
                a.label(f"L_ochk{tile}{jj}{sfx}")
                light(f"k{tile}" if jj == 0 else "t3" if tile == 3 else "-")
            at(i, br)
        if k < opt.ndef:
            for t in range(5): at(25 * (k + 1) + opt.wsl[t], wr(tile, t, " ; spaced"))
            at(25 * (k + 1) + opt.wsl[4], flag(tile))
        else:
            for t in range(3): at(25 * k + 16 + 3 * t, wr(tile, t, " ; spaced"))
            side.setdefault(25 * k + 24, [])[0:0] = [lambda: a.e("s_nop 3"), wr(tile, 3, " ; spaced"), lambda: a.e("s_nop 2"), wr(tile, 4), flag(tile)]
        if k == 0 or not first: gdone.append((tile, sfx))
    for x, (tl, jx) in opt.pp.items():
        i = 25 * order.index(tl) + jx
        if first and i < 25: i = opt.ppf
        assert i + 6 < 24 or i > 25
        if i > 25 and i - 6 < 24: side[24].insert(1, lambda x=x: a.lds(pub(x), f"p{x}{sfx}"))
        else: at(i - 6, lambda x=x: a.lds(pub(x), f"p{x}{sfx}"))
        at(i - 1, lambda x=x: fcheck(f"p{x}{sfx}", pub(x), vRdy, "0x0101"))
        for jj in range(2):
            keep = a.lines; a.lines = []; opoll(x, jj); ls = [l.replace(f's{sT1}', f's{sT2}') for l in a.lines]; a.lines = keep
            for c in range(3):
                def ld(x=x, jj=jj, part=ls[:2] if c == 0 else ls[c+1:c+2]): a.lines.extend(part); vm.append((x, jj))
                side.setdefault(min(i + 3 * jj + c, 25 * order.index(x) - 4), []).append(ld)
    if opt.pre3 is not None: at(75 + opt.pre3, lambda: (a.e(SETF(56)), a.lg.append("w")))
    for f in side.get(-1, ()): f()
    for k, tile in enumerate(order):
        for j, (u, t) in enumerate(js if k < opt.ndef else jd):
            a.wait_lg(("fr", u, t))
            acc = vAC[tile][t]
            a.e(f"v_mfma_f32_16x16x32_bf16 {vr(acc,4)}, {vr(ring[u,t],4)}, {vr(vOB[tile]+4*u,4)}, {'0' if u == 0 else vr(acc,4)}")
            if first and j == 24: return
            for f in side.get(25 * k + j, ()): f()
    a.e("s_waitcnt lgkmcnt(0)")
def worker(g):
    a.e(f"s_setprio {opt.pw[g]}")
    vm = []
    nred = [0]
    def reduce(tile, last):
        if g == 0 and nred[0] == 0: sur()
        Q = ([118, 122, 126, 130, 134, 18, 22, 26, 30], list(range(38, 74, 4)))[nred[0] % 2]; nred[0] += 1
        a.e("s_mov_b32 exec_hi, 0xff")
        def prd():
            for h in range(2):
                for j in range(4):
                    ad, of = vRb if j > 1 else vRa, (j % 2) * 25600 + tile * 5632
                    a.e(f"ds_read_b128 {vr(Q[4*h+j],4)}, v{ad} offset:{of + h*2816}")
        rd = f"ds_read_b32 v{vRdy}, v{vF8} offset:{32+4*tile}"
        if last and opt.pre3 is not None:
            a.label(f"L_rv{tile}")
            a.e(f"ds_read_b32 v{vRdy}, v{vF8} offset:56\n{SPIN}\ns_waitcnt lgkmcnt(0)\nv_cmp_ne_u32 vcc, 0x01010101, v{vRdy}\ns_cbranch_vccnz L_rv{tile}")
            a.label(f"L_rw{tile}")
            a.e(rd); prd()
            a.e(f"{SPIN}\ns_waitcnt lgkmcnt(8)\nv_cmp_ne_u32 vcc, 0x01010101, v{vRdy}\ns_cbranch_vccnz L_rw{tile}")
        else:
            if opt.sp0:
                a.e(rd); prd()
                a.e(f"s_waitcnt lgkmcnt(8)\nv_cmp_ne_u32 vcc, 0x01010101, v{vRdy}\ns_cbranch_vccz L_rd{tile}")
            a.label(f"L_rw{tile}")
            a.e(f"{rd}\n{SPIN}\ns_waitcnt lgkmcnt(0)\nv_cmp_ne_u32 vcc, 0x01010101, v{vRdy}\ns_cbranch_vccnz L_rw{tile}")
            prd()
        a.label(f"L_rd{tile}")
        if last: light("t4")
        a.e(f"s_add_u32 s{sT1}, s{sOB}, {tile*20480}")
        for h in range(2):
            B = Q[4*h:4*h+4]
            a.e(f"s_waitcnt lgkmcnt({6-4*h})")
            for i in range(4): a.e(f"v_add_f32 v{B[0]+i}, v{B[0]+i}, v{B[1]+i}")
            a.e(f"s_waitcnt lgkmcnt({4-4*h})")
            for i in range(4): a.e(f"v_add_f32 v{B[2]+i}, v{B[2]+i}, v{B[3]+i}")
            for i in range(4): a.e(f"v_add_f32 v{B[0]+i}, v{B[0]+i}, v{B[2]+i}")
            for i in range(2): a.e(f"v_cvt_pk_bf16_f32 v{Q[8]+2*h+i}, v{B[0]+2*i}, v{B[0]+2*i+1}")
        a.e(f"buffer_store_dwordx4 {vr(Q[8],4)}, v{vGo}, {sr(sOUT,4)}, s{sT1} offen{opt.outpol}")
        a.e("s_mov_b32 exec_hi, -1")
        vm.append("st")
        a.lg = []
    for tile in opt.order: reduce(tile, tile == 3)
def wstubs(g):
    while gdone:
        tile, sfx = gdone.pop(0)
        for jj in range(2):
            a.label(f"L_oslow{tile}{jj}{sfx}")
            a.e(SPIN)
            opoll(tile, jj)
            if jj == 0:
                a.e("s_waitcnt vmcnt(3)")
                otest(tile, 1)
                a.e(f"s_cbranch_vccz L_ok{tile}{sfx}")
                opoll(tile, 1)
                a.label(f"L_ok{tile}{sfx}")
            a.e("s_waitcnt vmcnt(0)")
            otest(tile, jj)
            a.e(f"s_cbranch_vccnz L_oslow{tile}{jj}{sfx}\ns_branch L_ochk{tile}{jj}{sfx}")
    while fstubs:
        name, rd = fstubs.pop()
        a.label(f"L_fs{name}")
        a.e(f"{rd}\n{SPIN}\ns_waitcnt lgkmcnt(0)\ns_branch L_fc{name}")
worker(1)
a.label("L_fin")
stamp("out st")
light("t5")
a.e(f"s_or_b32 s{sT0}, s2, s{sW}\ns_cmp_eq_u32 s{sT0}, 0\ns_cbranch_scc0 L_noep")
a.e(f"s_mov_b64 exec, 1\nv_mov_b32 v{vT1}, s{sTAG}\nv_mov_b32 v{vT0}, {A_EP}\nbuffer_store_dword v{vT1}, v{vT0}, {sr(sWS,4)}, 0 offen sc1\ns_mov_b64 exec, -1")
a.label("L_noep")
if opt.debug:
    a.e("s_waitcnt vmcnt(0)")
    stamp("end")
    for nm, r in LIGHT.items():
        i = nstamp[0]; nstamp[0] += 1; STAMPS.append(nm)
        a.e(f"v_writelane_b32 v17, s98, {i}\nv_writelane_b32 v17, s{r}, {32+i}")
    a.e(f"s_lshl_b32 s{sT0}, s2, 3\ns_add_u32 s{sT0}, s{sT0}, s{sW}\ns_lshl_b32 s{sT0}, s{sT0}, 8\ns_add_u32 s{sT0}, s{sT0}, {A_DBG}")
    a.e(f"v_writelane_b32 v17, s{sSPIN}, 31\nv_lshlrev_b32 v{vT0}, 2, v{vLane}")
    a.e(f"buffer_store_dword v17, v{vT0}, {sr(sWS,4)}, s{sT0} offen")
    if opt.dbgout:
        assert nstamp[0] <= 15
        srd(sX, 16, 256)
        a.e(f"v_subrev_u32 v{vT1}, s94, v17\nv_cmp_eq_u32 vcc, 0, v17\nv_cndmask_b32 v{vT1}, v{vT1}, v17, vcc\ns_not_b32 s{sT0}, s94\ns_and_b32 s{sT0}, s{sT0}, 0xffffff\ns_and_b32 s98, s98, 0xffffff\nv_writelane_b32 v{vT1}, s{sT0}, 0\nv_writelane_b32 v{vT1}, s98, 15")
        a.e(f"s_mov_b64 exec, 0xffff\nbuffer_atomic_umax v{vT1}, v{vT0}, {sr(sX,4)}, 0 offen")
if opt.pad:
    if opt.pad == "end": a.e("s_waitcnt vmcnt(0)\ns_memrealtime s[92:93]")
    a.label("L_pad")
    a.e("s_memrealtime s[90:91]\ns_waitcnt lgkmcnt(0)\ns_sub_u32 s90, s90, s92\ns_cmp_lt_u32 s90, 6000\ns_cbranch_scc1 L_pad")
a.label("L_end")
a.e("s_endpgm")
a.label("L_t3w")
a.e(SPIN)
l2reads(); preads()
a.e("s_branch L_t3")
a.label("L_t2w")
a.e(SPIN)
preads()
a.label("L_t2")
a.e(f"s_waitcnt lgkmcnt(0)\nv_cmp_ne_u32 vcc, 1, v{vRdy}\ns_cbranch_vccnz L_t2w\ns_nop 4")
add11(vSum, vRc[0])
wr3(vX1, 3072, vSum)
a.e(SETF(48))
light("t1")
a.e("s_branch L_role")
a.label("L_other")
a.e(f"s_cmp_eq_u32 s{sTT}, 2\ns_cbranch_scc1 L_t2\ns_cmp_eq_u32 s{sTT}, 0\ns_cbranch_scc1 L_t0")
wstart(opt.p0f)
if opt.g0e:
    a.e(f"s_setprio {opt.pg0}")
    project(True)
    a.e(f"s_setprio {opt.prd}")
    light("g9")
else: vRc[0] = vKr
lreads()
if opt.l2p == 0: l2reads()
a.label("L_lrd")
a.e(f"s_waitcnt lgkmcnt({0 if opt.l2p else 4})\nv_cmp_ne_u32 vcc, 0x01010101, v{vRdy}\ns_cbranch_vccnz L_lslow")
if opt.l2p == 1: l2reads()
add11(vRc[0], vRc[1])
if opt.l2p == 2: l2reads()
add11(vSum, vRc[0])
if opt.l2p == 3: l2reads()
a.label("L_l2")
a.e(f"s_waitcnt lgkmcnt(0)\nv_cmp_ne_u32 vcc, 1, v{vRdy+1}\ns_cbranch_vccnz L_l2w")
light("t1")
add11(vSum, vRc[2])
normalize(vSum, vRc[0], "L_fallback")
finish(vSum, vPkd, "m")
a.e(SETF(24))
light("t2")
a.e(f"s_setprio {opt.pw[0]}\ns_branch {'L_work2' if opt.g0e else 'L_work'}")
a.label("L_lslow")
a.e(SPIN)
a.e(f"ds_read_b32 v{vRdy}, v{vFb}\ns_waitcnt lgkmcnt(0)\nv_cmp_ne_u32 vcc, 0x01010101, v{vRdy}\ns_cbranch_vccnz L_lslow")
lreads()
if opt.l2p == 0: l2reads()
a.e("s_branch L_lrd")
a.label("L_l2w")
a.e(SPIN)
l2reads()
a.e("s_branch L_l2")
a.label("L_t0")
a.e("s_nop 5")
wr3(vX1, 3072, vSum)
a.e(SETF(48))
light("t1")
a.e(f"s_cmp_eq_u32 s{sDEF}, 0\ns_cbranch_scc0 L_dfb")
wstart()
a.label("L_work")
a.e(f"s_setprio {opt.pw[0]}")
project(False)
a.e("s_branch L_fin")
wstubs(0)
a.label("L_dfb")
a.e(f"s_mov_b32 s{sDEF}, 0\ns_mov_b32 s{sO0}, s{sE0}\ns_mov_b32 s{sO1}, s{sE1}\nv_mov_b32 v{vFa}, v{vFe}")
for i in range(4): a.e(f"v_mov_b32 v{vQ[3]+i}, v{vQ[1]+i}")
for i in range(2): a.e(f"v_mov_b32 v{vQH[1]+i}, v{vQH[0]+i}")
a.e("s_branch L_fallback")
a.label("L_eslow")
a.e(SPIN)
a.e(f"ds_read_b32 v{vT0}, v{vFb} offset:8\ns_waitcnt lgkmcnt(0)\nv_cmp_ne_u32 vcc, 0x01010101, v{vT0}\ns_cbranch_vccnz L_eslow")
ereads()
a.e("s_branch L_erd")
a.label("L_okslow")
a.e(SPIN)
a.e(f"ds_read_b64 {vr(vT0,2)}, v{vF8} offset:16\ns_branch L_okc")
for c in slow_stubs:
    a.label(f"L_slow{c}")
    a.e(f"s_add_u32 s{sSPIN}, s{sSPIN}, 1\ns_cmp_lt_u32 s{sSPIN}, 1000000\ns_cbranch_scc0 L_end")
    a.e(f"s_mov_b64 exec, {sr(sMSK,2)}\n{FLOAD}\ns_mov_b64 exec, -1\ns_waitcnt vmcnt(0)")
    flag_cmp()
    a.e(f"s_nop 0\ns_and_b32 s{sT0}, s{sMSK + c//4}, 0x{0xff << (8*(c%4)):x}\ns_cbranch_scc1 L_slow{c}\ns_branch L_back{c}")
for T, tag in ostubs:
    a.label(f"L_osc{tag}")
    ostore(T, " sc1", tag)
    a.e(f"s_branch L_osd{tag}")
a.label("L_defer")
a.e(f"s_mov_b32 s{sDEF}, 1\ns_branch L_deferred")
a.label("L_slowf0")
a.e(f"s_add_u32 s{sSPIN}, s{sSPIN}, 1\ns_cmp_lt_u32 s{sSPIN}, 1000000\ns_cbranch_scc0 L_end")
a.e(f"{F0}\ns_waitcnt vmcnt(0)\ns_branch L_f0")
a.label("L_slowf2")
a.e(f"s_add_u32 s{sSPIN}, s{sSPIN}, 1\ns_cmp_lt_u32 s{sSPIN}, 1000000\ns_cbranch_scc0 L_end")
a.e(f"buffer_load_dword v{vT1}, v{vT0}, {sr(sWS,4)}, s{sF2} offen sc1\ns_waitcnt vmcnt(0)\ns_branch L_f2")
a.label("L_fallback")
fS = 70; fM = vR1 + 20; fK = vKr; fV = vVr
def f_scores():
    a.e(f"buffer_load_dwordx4 {vr(fK,4)}, v{vL16}, {sr(sWS,4)}, s{sT0} offen sc1")
    a.e(f"buffer_load_dwordx2 {vr(fK+4,2)}, v{vK1a}, {sr(sWS,4)}, s{sT0} offen offset:1024 sc1")
    a.e(f"buffer_load_dwordx4 {vr(fV,4)}, v{vVa}, {sr(sWS,4)}, s{sT0} offen offset:1536 sc1")
    a.e(f"buffer_load_dwordx4 {vr(fV+4,4)}, v{vVa}, {sr(sWS,4)}, s{sT0} offen offset:2304 sc1")
    a.e("s_waitcnt vmcnt(0)\ns_mov_b32 exec_lo, 0x00440000\ns_mov_b32 exec_hi, 0x00440000")
    for i in range(8): a.e(f"v_mov_b32 v{fV+i}, 0x3f803f80")
    a.e("s_mov_b64 exec, -1")
    a.e(f"v_mfma_f32_32x32x4_2b_bf16 {vr(fS,32)}, {vr(fK+4,2)}, {vr(vQH[1],2)}, 0 cbsz:1\ns_nop 15\ns_nop 1")
    a.e(f"v_mfma_f32_32x32x16_bf16 {vr(fS+16,16)}, {vr(fK,4)}, {vr(vQ[3],4)}, {vr(fS+16,16)}\ns_nop 11")
a.e(f"v_mov_b32 v{fM}, 0xff800000\ns_mov_b32 s{sT0}, 0")
a.label("L_fb1")
f_scores()
for i in range(0, 16, 2): a.e(f"v_max3_f32 v{fM}, v{fM}, v{fS+16+i}, v{fS+17+i}")
a.e(f"s_add_u32 s{sT0}, s{sT0}, 4096\ns_cmp_lt_u32 s{sT0}, 262144\ns_cbranch_scc1 L_fb1")
a.e(f"v_mov_b32 v{fM+1}, v{fM}\ns_nop 1\nv_permlane32_swap_b32 v{fM}, v{fM+1}\ns_nop 1\nv_max_f32 v{fM}, v{fM}, v{fM+1}")
for i in range(16): a.e(f"v_mov_b32 v{vSum+i}, 0")
a.e(f"s_mov_b32 s{sT0}, 0")
a.label("L_fb2")
f_scores()
for i in range(16): a.e(f"v_sub_f32 v{fS+16+i}, v{fS+16+i}, v{fM}")
for i in range(16): a.e(f"v_exp_f32 v{fS+16+i}, v{fS+16+i}")
a.e("s_nop 0")
for i in range(8): a.e(f"v_cvt_pk_bf16_f32 v{vP+i}, v{fS+16+2*i}, v{fS+17+2*i}")
a.e("s_nop 1")
for g in range(2):
    a.e(f"v_mfma_f32_32x32x16_bf16 {vr(vSum,16)}, {vr(fV+4*g,4)}, {vr(vP+4*g,4)}, {vr(vSum,16)}")
a.e(f"s_add_u32 s{sT0}, s{sT0}, 4096\ns_cmp_lt_u32 s{sT0}, 262144\ns_cbranch_scc1 L_fb2")
a.e("s_nop 15")
with only_par(0, sU): wstart()
scale(vSum, vPkd)
for i in range(5): a.e(f"v_min_u32 v{vPkd+i}, -2, v{vPkd+i}")
a.label("L_last")
a.e("s_branch L_ostl")
a.raw(open("footer.txt").read())
txt = a.text()
def addresses(lines):
    import subprocess, re
    open("_g5.s", "w").write("\n".join(lines))
    r = subprocess.run(["clang", "-x", "assembler", "-target", "amdgcn-amd-amdhsa", "-mcpu=gfx950", "-c", "_g5.s", "-o", "_g5.o"], capture_output=True, text=True)
    assert r.returncode == 0, r.stderr[:2000]
    d = subprocess.run(["llvm-objdump", "-d", "--mcpu=gfx950", "_g5.o"], capture_output=True, text=True).stdout
    d = d[d.index("_kernel>:"):]
    ad = [int(m.group(1), 16) for m in re.finditer(r"// ([0-9A-F]{12}):", d)]
    k0 = next(i for i, l in enumerate(lines) if l.endswith("_kernel:"))
    idx = [i for i in range(k0, len(lines)) if lines[i].startswith("    ") and parse(lines[i])]
    assert len(idx) == len(ad), (len(idx), len(ad))
    return dict(zip(idx, ad))
if HOPRET:
    lines = txt.split("\n")
    for t, site in HOPRET.items():
        if t.startswith("L_"):
            i = lines.index(t + ":")
            k = i - 1
            while not parse(lines[k]): k -= 1
            assert parse(lines[k])["op"] in ("s_branch", "s_endpgm") and k == i - 1, (t, lines[k])
            lines[i:i] = [f"H_{t}:", f"    s_branch R_{site}"]
    pg = sorted(t for t in HOPRET if t.startswith("P"))
    end = lines.index("L_last:")
    for n, t in enumerate(pg):
        ad = addresses(lines[:end] + [f"H_{x}:" for x in pg[n:]] + lines[end:])
        full = True
        for i in sorted(ad):
            if i >= end: raise SystemExit("no spot for " + t)
            l = lines[i].strip()
            if ad[i] >= int(t[1:]) * 4096 and full: break
            if " exec" in l.split(",")[0]: full = l.endswith(", -1")
        print(t, hex(ad[i]), l, file=sys.stderr)
        lines[i:i] = [f"H_{t}:", f"    s_cbranch_execz R_{HOPRET[t]}"]; end += 2
    txt = "\n".join(lines)
TL = txt.split("\n")
for p in check(txt):
    if not TL[int(p.split(":")[0][5:]) - 1].endswith("; spaced"): print("HAZARD", p, file=sys.stderr)
open(sys.argv[1], "w").write(txt)
if opt.debug: open(sys.argv[1] + ".stamps", "w").write("\n".join(STAMPS))
```

```python
import sys, math, struct
from asmlib import *

class Opt:
    debug = False
    prio = {0: 3, 16: 2}
    prioE = {28.5: 1}
    wsl = (2, 6, 10, 14, 18)
    order = (0, 2, 1, 3)
    pg0 = 0
    prd = 1
    l2p = 0
    pre3 = None
    sp0 = False
    g0e = False
    lpos = 3
    ndef = 1
    prioL = {29.5: 1}
    flip = 0
    dual = 1
    pp = {2: (0, 9), 1: (2, 3), 3: (1, 10)}
    prog = ('G0 G2 G1 G3', 'R0 R2 R1 R3')
    pw = (0, 0)
    p0 = 4
    p0f = 4
    ppf = 17
    nf1 = 25
    prr = 0
    spec = ()
    npf = 8
    pdrop = 1
    force_fallback = False
    fast = True
    touch = 'ouw'
    wo0 = 4
    only = None
    dbgout = False
    pad = None
    syncs = (1, 3, 5, 7, 9, 11, 13, 15, 17, 19)
    lead = 4
    fl_at = 15
    bk = 15
    pub_at = 1
    drain = 20
    ahead = 7
    hrot = 2
    w64 = True
    dskip = 5
    kv_at = {17: (0,), 19: (1,), 20: (2,)}
    kv_a = {21: (0, 1, 2)}
    skv = 2
    head = "kKp12w3ssss"
    upers = 2
    bprio = 2
    epoll = 2
    pge = 0
    dmode = ""
    align = 8
    dry = False
    xfirst = True
    poll_at = 36
    otouch = ' sc1'
    smart = True
    pstep_e = 0
    oa_e = 8
    pstep = 0
    oa_at = 13
    npre_e = 10
    prl = 1
    pre = 3
    outpol = ""
    opol = {"e": "", "l": "", "m": ""}
    epar = 0
    cpf = True
    pk = False
    chk1 = True
    clr_at = 10
    phase = None
    hops = {}
    tn = 5
    dly = 0
    k1 = True
    wo64 = 0
    wok = 1
    wopol = ""
    nowo = False
    wpf = None
    hold = 99
    noout = ()
    outpol3 = ""
    wb = ()
    wbm = 0xf8
    clean = {}
    cl0 = 0
    w32 = False
    wcap = (1, 2, 2, 2)
    wcs = 1
    al = {}
    nops = {}
    okc = 3
    nof0 = False
    pos = (2, 5, 14, 18, 22, 26, 30)
    dg = ''
    kvpol = ' sc1'
    posn = {}
    xsn = {}
    w31 = 29
    xs = (8, 12, 16, 24)
    npre = 40
opt = Opt()
for x in sys.argv[2:]:
    k, v = x.split("=", 1)
    setattr(opt, k, eval(v))

A_KV = 0
A_F1 = 262144
A_EP = A_F1 + 65536
A_F2 = 524288
A_O = 1 << 20
A_DBG = 4 << 20
WS_BYTES = 8 << 20
OOB = 0x40000000
L_W = 0
P_R = [81920, 102400, 122880, 0, 20480]
P_KVW = 122880
L_S = 102400
L_Q2 = 143360
L_FLG = 153600
L_F01 = 153632
L_FL = 153888
LDS_BYTES = 163840
sX, sWQ, sWKV, sWO, sOUT, sWS = 20, 24, 28, 32, 36, 40
sW, sTT, sKH, sHG, sTB, sT, sTK, sTAG, sXCD, sR = 44, 45, 46, 47, 48, 49, 50, 51, 52, 53
sT0, sT1, sT2, sT3 = 54, 55, 56, 57
sKV = 58
sXCC = 59
sO0, sO1 = 60, 61
sHGO = 62
sM0B = 63
sSPIN = 64
sOB = 65
sWQB = 66
sRG = 67
sMSK = 72
sC0 = 74
sF2 = 76
sJH, sJE, sCA, sCX = 77, 78, 79, 80
sJ, sU, sPAR, sISS, sDEF = 81, 82, 83, 84, 85
sPJ = 86
sOJ = 67
sCC = 3
sWP = 92
sWM = 74
sPE, sE0, sE1 = 69, 70, 71
L_X = 154112
vLane, vL16, vK1a, vVa, vFa, vWoA, vWoB, vTr, vA0, vA1, vE0, vL0, vFlag, vT0, vT1, vL8 = range(1, 17)
vQ = [18, 22, 26, 30]; vQH = [34, 36]
vS = [38, 70]
vP = 102
vO = 118
vKr = 182
vVr = 200
vR1 = 224
vXf = 38; vAcc = 118; vFr = 138
vW40, vXp = 224, 225
vXa = 226
vQa = 231
vCx, vCw = 237, 238
vCx2, vXp1 = 247, 248
vSt = 240
vT2, vT3 = 241, 242
vTq0, vTq1, vM2w, vM2h = 243, 244, 245, 246
vX1, vFe = 255, 248
vL1, vFp = 249, 252
vPw, vPx = 254, 254
vRa, vRb, vRs, vGo = 250, 251, 252, 253

a = Asm()
nstamp = [0]
STAMPS = []
def stamp(name):
    if opt.pad == name: a.e("s_memrealtime s[92:93]")
    if not opt.debug: return
    if opt.only is not None and name not in opt.only and not (name.startswith("A:") and "A" in opt.only): return
    i = nstamp[0]; nstamp[0] += 1
    a.c(f"stamp {i}: {name}")
    a.e("s_memrealtime s[98:99]\ns_memtime s[100:101]")
    a.wait_lg0()
    a.e(f"v_writelane_b32 v17, s98, {i}\nv_writelane_b32 v17, s100, {32+i}")
    STAMPS.append(name)
def stamp_at(i):
    if not opt.debug: return
    if opt.only is not None and "A" not in opt.only: return
    a.e("s_memrealtime s[98:99]\ns_memtime s[100:101]")
    a.wait_lg0()
    a.e(f"v_writelane_b32 v17, s98, {i}\nv_writelane_b32 v17, s100, {32+i}")
import re
LIGHT = dict(zip([x for x in (opt.only or ()) if re.match(r"^([cdhtkrgq]\d+|cA)$", x)], [0, 4, 6, 8, 10, 16, 12, 14, 18, 20, 22, 24, 26, 28, 30])) if opt.debug else {}
def light(name):
    if not opt.debug or opt.only is None or name not in opt.only: return
    assert name in LIGHT
    a.e(f"s_mem{'real' if name[0] == 'r' else ''}time {sr(LIGHT[name],2)}")
def srd(base, lo, nbytes):
    a.e(f"s_mov_b32 s{base}, s{lo}\ns_mov_b32 s{base+1}, s{lo+1}\ns_mov_b32 s{base+2}, {nbytes}\ns_mov_b32 s{base+3}, 0x00020000")
def trd(f, i, t, tag):
    off = i * 5120 + 32 * t
    base = vTr
    for q in range(2):
        a.lds(f"ds_read_b64_tr_b16 {vr(f+2*q,2)}, v{base} offset:{off+q*2560}", tag)
slow_stubs = []
HOPRET = {}
def hop(site):
    tg = opt.hops.get(site)
    if not tg: return
    a.e("s_mov_b64 exec, 0")
    for j, t in enumerate(tg):
        if t is None: continue
        assert t not in HOPRET
        HOPRET[t] = site
        a.e(f"s_cmp_eq_u32 s{sJ}, {j}\ns_cbranch_scc1 H_{t}")
    a.label(f"R_{site}")
    a.e("s_mov_b64 exec, -1")

a.raw(open("header.txt").read().replace("@LDS@", str(LDS_BYTES)).replace(".p2align 8", f".p2align 12\n.fill {opt.phase//4}, 4, 0xbf810000" if opt.phase is not None else f".p2align {opt.align}"))
a.e("s_cmp_ge_u32 s2, 256\ns_cbranch_scc1 L_end")
a.e("s_load_dwordx16 s[4:19], s[0:1], 0")
if opt.pad == "start": a.e("s_memrealtime s[92:93]")
if opt.debug:
    a.e("v_mov_b32 v17, 0\ns_memrealtime s[94:95]\ns_memtime s[96:97]"); nstamp[0] = 2; STAMPS.append("start"); STAMPS.append("karg")
def xtile(j):
    if j: a.e(f"s_add_u32 s{sT3}, s{sTK}, {j}\ns_and_b32 s{sT3}, s{sT3}, 3\ns_mul_i32 s{sT1}, s{sT3}, 20480\ns_add_u32 s{sT0}, s{sT1}, s{sJH}\ns_add_u32 s{sT1}, s{sT1}, s{sJE}")
    for i in range(5):
        a.e(f"s_add_u32 m0, s{sT1}, {1920*i}\ns_nop 0")
        a.vload(f"buffer_load_dwordx4 v{vXp}, {sr(sX,4)}, s{sT0} offen offset:{128*i} lds", ("x",))
def skv(role):
    if role == "B" or opt.skv == 1: a.e(f"""s_bitcmp1_b32 s{sHG}, 0
s_cselect_b32 s{sWKV}, s10, s8
s_cselect_b32 s{sWKV+1}, s11, s9""")
    if opt.skv == 2 and role == "B":
        a.e(f"s_mov_b64 exec, 15\nbuffer_load_dword v{vT2}, v{vT3}, {sr(sWKV,4)}, s{sCC} offen\ns_mov_b64 exec, -1")
    if opt.skv == 1:
        a.e(f"s_add_u32 s{sMSK}, s{sWKV}, s{sCC}\ns_addc_u32 s{sMSK+1}, s{sWKV+1}, 0")
        for o in (0, 64, 128, 196): a.e(f"s_load_dword s{sISS}, {sr(sMSK,2)}, {o}")
    if "q" in opt.touch and role == "B": a.e(f"s_load_dword s{sISS}, s[6:7], s{sRG}")
    a.e(f"s_load_dword s{sTAG}, s[18:19], {A_EP}")
    if opt.debug: a.e("v_writelane_b32 v17, s94, 0\nv_writelane_b32 v17, s96, 32")
def tagwait():
    a.e(f"s_waitcnt lgkmcnt(0)\ns_mul_i32 s{sTAG}, s{sTAG}, 1664525\ns_add_u32 s{sTAG}, s{sTAG}, 1013904223")
    if opt.debug: a.e("v_writelane_b32 v17, s90, 1\nv_writelane_b32 v17, s92, 33")
def su0():
    srd(sWS, 18, WS_BYTES); srd(sWO, 12, 819200); srd(sOUT, 14, 2621440)
    a.e(f"""s_lshr_b32 s{sU}, s{sW}, 2
s_lshr_b32 s{sTT}, s{sW}, 1
{f"s_xor_b32 s{sTT}, s{sTT}, s{sU}" if opt.flip else "s_nop 0"}
s_and_b32 s{sPAR}, s{sTT}, 1
{f's_xor_b32 s{sPE}, s{sPAR}, s{sU}' if opt.dual else f's_mov_b32 s{sPE}, s{sPAR}'}
s_and_b32 s{sKH}, s{sW}, 1
s_mov_b32 s{sDEF}, 0
s_lshl_b32 s{sT}, s{sTB}, 2
s_add_u32 s{sT}, s{sT}, s{sTT}
{"" if opt.wo64 else f"s_mul_i32 s{sM0B}, s{sW}, 640"}
s_getreg_b32 s{sXCC}, hwreg(HW_REG_XCC_ID, 0, 3)
s_mov_b32 s{sSPIN}, 0""")
def su1():
    a.e(f"""s_mul_i32 s{sOB}, s{sT}, 20480
s_add_u32 s{sOB}, s{sOB}, {A_O}
s_lshl_b32 s{sT2}, s{sHGO}, 4
s_add_u32 s{sT2}, s{sT2}, s{sOB}
s_lshl_b32 s{sT3}, s{sKH}, 10
s_add_u32 s{sO0}, s{sT2}, s{sT3}
s_lshl_b32 s{sT3}, s{sKH}, 2
s_add_u32 s{sO1}, s{sT2}, s{sT3}
s_add_u32 s{sO1}, s{sO1}, 2048
s_lshl_b32 s{sF2}, s{sT}, 4
s_lshl_b32 s{sT0}, s{sHG}, 1
s_add_u32 s{sT0}, s{sT0}, s{sKH}
s_add_u32 s{sF2}, s{sF2}, s{sT0}
s_lshl_b32 s{sF2}, s{sF2}, 7
s_add_u32 s{sF2}, s{sF2}, {A_F2}
s_mul_i32 s{sT1}, s{sJ}, 25600
v_mul_u32_u24 v{vTq0}, 40, v{vLane}
v_and_b32 v{vT0}, 3, v{vLane}
v_lshlrev_b32 v{vT0}, 5, v{vT0}
v_sub_u32 v{vTr}, v{vTq0}, v{vT0}
v_add_u32 v{vTr}, s{sT1}, v{vTr}""")
def su2():
    if not opt.wo64: return su2o()
    X, Y = vWoA, vWoB
    a.e(f"""s_min_u32 s{sM0B}, s{sW}, 4
s_lshl_b32 s{sM0B}, s{sM0B}, 10
s_mul_i32 s{sT0}, s{sJ}, 5
s_lshl_b32 s{sWM}, 31, s{sT0}
s_cmp_eq_u32 s{sU}, 0
s_cselect_b32 s{sWM}, -1, s{sWM}
v_add_u32 v{vT1}, s{sM0B}, v{vL16}
v_mul_u32_u24 v{vT0}, 6554, v{vT1}
v_lshrrev_b32 v{vT0}, 20, v{vT0}
s_movk_i32 s{sT0}, -160
v_mad_i32_i24 v{vT1}, v{vT0}, s{sT0}, v{vT1}
v_and_b32 v{X}, 4, v{vT0}
v_mul_u32_u24 v{X}, 5, v{X}
v_and_b32 v{Y}, 3, v{vT0}
v_add_u32 v{X}, v{X}, v{Y}
v_and_b32 v{Y}, 2, v{vT0}
s_movk_i32 s{sT1}, 1280
v_mad_u32_u24 v{vT1}, v{X}, s{sT1}, v{vT1}
v_mul_u32_u24 v{Y}, {19*1280}, v{Y}
v_and_b32 v{X}, 8, v{vT0}
s_movk_i32 s{sT0}, 320
v_mad_u32_u24 v{Y}, v{X}, s{sT0}, v{Y}
s_lshl_b32 s{sT2}, s{sHG}, 4
v_xor_b32 v{X}, s{sT2}, v{vT0}
v_and_b32 v{X}, 16, v{X}
s_movk_i32 s{sT0}, -6400
v_mad_i32_i24 v{Y}, v{X}, s{sT0}, v{Y}
v_add_u32 v{Y}, {96*1280}, v{Y}
v_add_u32 v{Y}, v{Y}, v{vT1}
v_and_b32 v{X}, 24, v{vT0}
s_movk_i32 s{sT0}, 640
v_mad_u32_u24 v{X}, v{X}, s{sT0}, v{vT1}""")
def su2o():
    a.e(f"""v_mul_u32_u24 v{vT0}, 6554, v{vLane}
v_lshrrev_b32 v{vT0}, 16, v{vT0}
v_mul_u32_u24 v{vT1}, 10, v{vT0}
v_sub_u32 v{vT1}, v{vLane}, v{vT1}
v_lshlrev_b32 v{vT1}, 4, v{vT1}
v_mul_u32_u24 v{vWoA}, 1280, v{vT0}
v_add_u32 v{vWoA}, v{vWoA}, v{vT1}
v_lshrrev_b32 v{vWoB}, 1, v{vT0}
v_mul_u32_u24 v{vWoB}, 38, v{vWoB}
v_add_u32 v{vWoB}, v{vWoB}, v{vT0}
v_mul_u32_u24 v{vWoB}, 1280, v{vWoB}
v_add_u32 v{vWoB}, v{vWoB}, v{vT1}
s_and_b32 s{sT0}, s{sJ}, 1
s_mul_i32 s{sT0}, s{sT0}, 20
s_and_b32 s{sT1}, s{sJ}, 2
s_lshl_b32 s{sT2}, s{sT1}, 1
s_add_u32 s{sT2}, s{sT2}, s{sT0}
s_lshl_b32 s{sT3}, s{sU}, 3
s_add_u32 s{sT2}, s{sT2}, s{sT3}
s_mul_i32 s{sT2}, s{sT2}, 1280
v_add_u32 v{vWoA}, s{sT2}, v{vWoA}
s_add_u32 s{sT0}, s{sT0}, s{sT1}
s_xor_b32 s{sT3}, s{sU}, s{sHG}
s_andn2_b32 s{sT3}, 1, s{sT3}
s_mul_i32 s{sT3}, s{sT3}, 80
s_add_u32 s{sT0}, s{sT0}, s{sT3}
s_add_u32 s{sT0}, s{sT0}, 16
s_mul_i32 s{sT0}, s{sT0}, 1280
v_add_u32 v{vWoB}, s{sT0}, v{vWoB}""")
def su3():
    for j in range(4):
        a.e(f"s_xor_b32 s{sT0}, s{sHG}, {j ^ 3}\ns_and_b32 s{sT0}, s{sT0}, 3\ns_mul_i32 s{sT0}, s{sT0}, 102400\ns_add_u32 s{sPJ+j}, s{sT0}, s{sHGO}")
    a.e(f"""s_lshl_b32 s{sT1}, s{sU}, 1
s_add_u32 s{sT1}, s{sT1}, s{sKH}
s_mul_i32 s{sT0}, s{sT1}, 12288
s_add_u32 s{sT0}, s{sT0}, {L_S}
v_add_u32 v{vA0}, s{sT0}, v{vL16}
s_xor_b32 s{sT0}, s{sT1}, 1
s_mul_i32 s{sT0}, s{sT0}, 12288
s_add_u32 s{sT0}, s{sT0}, {L_S}
v_add_u32 v{vA1}, s{sT0}, v{vL16}
s_mul_i32 s{sT0}, s{sPE}, 6144
v_add_u32 v{vE0}, s{sT0}, v{vA1}
s_mul_i32 s{sT0}, s{sPE}, 9216
v_add_u32 v{vL0}, s{sT0}, v{vA0}""")
def su4():
    a.e(f"""v_and_b32 v{vT0}, 31, v{vLane}
v_lshlrev_b32 v{vK1a}, 4, v{vT0}
v_lshrrev_b32 v{vT1}, 5, v{vLane}
v_mul_u32_u24 v{vT1}, 384, v{vT1}
v_add_u32 v{vVa}, v{vK1a}, v{vT1}
v_mov_b32 v{vT1}, {OOB}
s_mov_b32 vcc_lo, 0xff880000
s_mov_b32 vcc_hi, 0xff880000
v_cndmask_b32 v{vVa}, v{vVa}, v{vT1}, vcc
v_lshlrev_b32 v{vL8}, 3, v{vLane}
s_lshl_b32 s{sT0}, s{sPAR}, 1
s_add_u32 s{sT0}, s{sT0}, s{sKH}
s_lshl_b32 s{sKV}, s{sXCD}, 15
s_lshl_b32 s{sT1}, s{sT0}, 13
s_add_u32 s{sKV}, s{sKV}, s{sT1}
v_lshrrev_b32 v{vFa}, 3, v{vLane}
v_add_u32 v{vFa}, s{sXCD}, v{vFa}
v_and_b32 v{vFa}, 7, v{vFa}
v_lshlrev_b32 v{vFa}, 5, v{vFa}
v_and_b32 v{vT1}, 7, v{vLane}
v_add_u32 v{vFa}, v{vFa}, v{vT1}
v_lshlrev_b32 v{vFa}, 7, v{vFa}
s_lshl_b32 s{sT1}, s{sT0}, 10
s_add_u32 s{sT1}, s{sT1}, {A_F1}
v_add_u32 v{vFa}, s{sT1}, v{vFa}
s_lshl_b32 s{sT1}, s{sT0}, 6
s_add_u32 s{sT1}, s{sT1}, {L_F01}
v_lshl_add_u32 v{vXp1}, v{vLane}, 2, s{sT1}""")
def su5():
    a.e(f"""s_and_b32 s{sT0}, s{sTT}, 2
s_mul_i32 s{sT0}, s{sT0}, 2560
s_add_u32 s{sT0}, s{sT0}, {L_Q2}
s_add_u32 s{sT1}, s{sT0}, 2560
v_lshrrev_b32 v{vT0}, 5, v{vLane}
v_lshl_add_u32 v{vT0}, v{vT0}, 10, v{vK1a}
s_lshl_b32 s{sT2}, s{sKH}, 9
s_xor_b32 s{sT3}, s{sT2}, 512
v_add_u32 v{vT1}, s{sT3}, v{vT0}
v_add_u32 v{vQa}, s{sT0}, v{vT1}
v_add_u32 v{vQa+2}, s{sT1}, v{vT1}
v_add_u32 v{vT1}, s{sT2}, v{vT0}
v_add_u32 v{vQa+1}, s{sT0}, v{vT1}
v_add_u32 v{vQa+3}, s{sT1}, v{vT1}
s_lshr_b32 s{sT3}, s{sT3}, 1
v_xor_b32 v{vT1}, s{sT3}, v{vL8}
v_add_u32 v{vQa+4}, s{sT0}, v{vT1}
v_add_u32 v{vQa+5}, s{sT1}, v{vT1}""")
    if opt.k1: a.e(f"v_and_b32 v{vT1}, 32, v{vLane}\nv_lshl_add_u32 v{vK1a}, v{vT1}, 7, v{vK1a}")
def touch():
    if "o" in opt.touch: a.e(f"s_load_dword s{sISS}, s[18:19], s{sO0}")
    if "u" in opt.touch: a.e(f"s_mul_i32 s{sT0}, s{sT}, 20480\ns_add_u32 s{sT0}, s{sT0}, s{sHGO}\ns_load_dword s{sISS}, s[14:15], s{sT0}")
    if "w" in opt.touch: a.e(f"s_load_dword s{sISS}, s[12:13], s{sHGO}")
def sub():
    a.e(f"v_and_b32 v{vSt}, 0xfffff3ff, v{vFa}\nv_or_b32 v{vSt}, s{sWQB}, v{vSt}")
    a.e(f"s_lshl_b32 s{sT0}, s{sJ}, 6\ns_add_u32 s{sT0}, s{sT0}, {L_F01}\nv_lshl_add_u32 v{vCx}, v{vLane}, 2, s{sT0}")
    a.e(f"v_lshlrev_b32 v{vT0}, 2, v{vLane}\nv_add_u32 v{vT0}, {L_FL}, v{vT0}\nv_mov_b32 v{vT1}, 0\ns_mov_b64 exec, 0xffff\nds_write_b32 v{vT0}, v{vT1}\ns_mov_b64 exec, -1")
def sur():
    a.e(f"""v_mul_u32_u24 v{vT0}, 52, v{vLane}
v_lshrrev_b32 v{vT0}, 9, v{vT0}
s_mul_i32 s{sT0}, s{sJ}, 704
v_lshl_add_u32 v{vRa}, v{vT0}, 4, v{vL16}
v_add_u32 v{vRa}, s{sT0}, v{vRa}
v_add_u32 v{vRb}, 51200, v{vRa}
v_mul_u32_u24 v{vGo}, 1120, v{vT0}
v_add_u32 v{vGo}, v{vGo}, v{vL16}
s_mul_i32 s{sOB}, s{sTB}, 81920
s_mul_i32 s{sT0}, s{sJ}, 5120
s_add_u32 s{sOB}, s{sOB}, s{sT0}
s_add_u32 s{sOB}, s{sOB}, s{sHGO}""")
def suw(g=1):
    if opt.w32:
        a.e(f"""v_lshrrev_b32 v{vPw}, 4, v{vLane}
v_mul_u32_u24 v{vPw}, 704, v{vPw}
v_and_b32 v{vT1}, 4, v{vLane}
s_mul_i32 s{sT0}, s{sJ}, 25600
v_mul_u32_u24 v{vT1}, 704, v{vT1}
v_add3_u32 v{vPw}, v{vPw}, v{vT1}, s{sT0}
v_and_b32 v{vT1}, 8, v{vLane}
v_lshl_add_u32 v{vPw}, v{vT1}, 1, v{vPw}
v_and_b32 v{vT1}, 3, v{vLane}
v_lshl_add_u32 v{vPw}, v{vT1}, 2, v{vPw}
v_mov_b32 v{vGo}, 0""")
        return
    a.e(f"""v_and_b32 v{vPw}, 15, v{vLane}
v_mul_u32_u24 v{vPw}, 176, v{vPw}
v_bfe_u32 v{vT1}, v{vLane}, 4, 1
s_mul_i32 s{sT0}, s{sJ}, 25600
v_mul_u32_u24 v{vT1}, 2816, v{vT1}
v_add3_u32 v{vPw}, v{vPw}, v{vT1}, s{sT0}
v_lshrrev_b32 v{vT1}, 5, v{vLane}
v_lshl_add_u32 v{vPw}, v{vT1}, 4, v{vPw}""" + f"\nv_mov_b32 v{vGo}, 0")
vIx = vP + 2
def zero_o():
    a.e(f"v_mov_b32 v{vP}, 0\nv_mov_b32 v{vP+1}, 0\nv_mov_b32 v{vIx}, 0xdddddddd")
    if "f" in opt.dg: a.e(f"v_mov_b32 v{vP+4}, 0x3db5be12\nv_mov_b32 v{vP+5}, 0x3e21bd77\nv_mov_b32 v{vP+6}, 0\nv_mov_b32 v{vP+7}, 0\ns_mov_b32 exec_lo, 0\nv_mov_b32 v{vP+4}, 0\nv_mov_b32 v{vP+5}, 0\ns_mov_b32 exec_lo, -1")
def zero_m():
    for i in range(2): a.e(f"v_mfma_f32_32x32x4_2b_bf16 {vr(vO+32*i,32)}, {vr(vP,2)}, {vr(vP,2)}, 0")
def zero_b(): zero_o(); a.e("s_nop 0"); zero_m()
SU = [su0, su1, su2, su3, su4, su5]
def kslot(t): return vKr + 6 * (t % 3)
def vslot(t): return vVr + 8 * (t % 3)
def k1slot(t): return kslot(t // 2 if opt.k1 else t) + 4
def k_loads(t):
    b = kslot(t)
    return [(f"buffer_load_dwordx4 {vr(b,4)}, v{vL16}, {sr(sWS,4)}, s{sKV} offen{opt.kvpol}", ("k", t)),
            (f"buffer_load_dwordx2 {vr(k1slot(t),2)}, v{vK1a}, {sr(sWS,4)}, s{sKV} offen offset:1024{opt.kvpol}", ("k", t))][:1 if opt.k1 and t % 2 else 2]
def v_loads(t):
    b = vslot(t)
    return [(f"buffer_load_dwordx4 {vr(b,4)}, v{vVa}, {sr(sWS,4)}, s{sKV} offen offset:1536{opt.kvpol}", ("v", t)),
            (f"buffer_load_dwordx4 {vr(b+4,4)}, v{vVa}, {sr(sWS,4)}, s{sKV} offen offset:2304{opt.kvpol}", ("v", t))]
def kv_advance(t):
    if t % 2 == 0: a.e(f"s_add_u32 s{sKV}, s{sKV}, 4096")
    else: a.e(f"s_add_u32 s{sKV}, s{sKV}, {32768-4096}\ns_and_b32 s{sKV}, s{sKV}, 0x3ffff")
FLOAD = f"buffer_load_dword v{vFlag}, v{vFa}, {sr(sWS,4)}, 0 offen sc1"
def flag_cmp(): a.e(f"v_cmp_ne_u32 {sr(sMSK,2)}, s{sTAG}, v{vFlag}")
def chunk_check(c):
    a.e(f"s_and_b32 s{sT0}, s{sMSK + c//4}, 0x{0xff << (8*(c%4)):x}\ns_cbranch_scc1 L_slow{c}")
    a.label(f"L_back{c}")
    slow_stubs.append(c)
nref = [0]
def flag_refresh():
    k = nref[0]; nref[0] += 1
    a.e(f"s_or_b32 s{sT0}, s{sMSK}, s{sMSK+1}\ns_cbranch_scc0 L_ref{k}\ns_mov_b64 exec, {sr(sMSK,2)}\n{FLOAD}\ns_mov_b64 exec, -1")
    a.label(f"L_ref{k}")
def first_kv(part):
    if part == 0:
        for x in k_loads(0): a.vload(*x)
        return
    if part == 1:
        for x in v_loads(0): a.vload(*x)
        kv_advance(0)
        return
    for x in k_loads(1): a.vload(*x)
a.e(f"""v_lshrrev_b32 v{vT0}, 6, v0
v_and_b32 v{vLane}, 63, v0
s_and_b32 s{sXCD}, s2, 7
s_lshr_b32 s{sT0}, s2, 3
v_readfirstlane_b32 s{sW}, v{vT0}
s_and_b32 s{sHG}, s{sT0}, 7
s_lshr_b32 s{sR}, s{sT0}, 3
s_lshl_b32 s{sTB}, s{sXCD}, 2
s_add_u32 s{sTB}, s{sTB}, s{sR}
v_lshrrev_b32 v{vT0}, 4, v0
v_xor_b32 v{vT0}, v{vT0}, v0
v_and_b32 v{vT0}, 7, v{vT0}
v_bfe_u32 v{vXp}, v0, 3, 4
v_mul_u32_u24 v{vXp}, 1280, v{vXp}
v_lshl_add_u32 v{vXp}, v{vT0}, 4, v{vXp}
s_and_b32 s{sJ}, s{sW}, 3
s_lshr_b32 s{sTK}, s{sHG}, 1
s_lshr_b32 s{sT1}, s{sJ}, 1
s_mul_i32 s{sT1}, s{sT1}, 640
s_mul_i32 s{sJH}, s{sTB}, 81920
s_add_u32 s{sJH}, s{sJH}, s{sT1}
s_and_b32 s{sJE}, s{sJ}, 1
s_lshl_b32 s{sJE}, s{sJE}, 6
s_add_u32 s{sJE}, s{sJE}, s{sT1}
s_lshl_b32 s{sJE}, s{sJE}, 4
v_lshlrev_b32 v{vL16}, 4, v{vLane}
s_mov_b32 s{sX+2}, 2621440
s_mov_b32 s{sX+3}, 0x00020000
""" + (f"""s_lshr_b32 s{sCC}, s2, 4
s_lshl_b32 s{sCC}, s{sCC}, 3
s_add_u32 s{sCC}, s{sCC}, s{sW}
s_mul_i32 s{sCC}, s{sCC}, 200
""" if opt.skv == 1 else "") + f"""s_mul_i32 s{sCA}, s{sJ}, 6400
s_mul_i32 s{sHGO}, s{sHG}, 160
s_cmp_lt_u32 s{sW}, 4
s_cbranch_scc0 L_b1""")
a.e(f"""s_mul_i32 s{sCX}, s{sTK}, 20480
s_add_u32 s{sT0}, s{sCX}, s{sJH}
s_add_u32 s{sT1}, s{sCX}, s{sJE}
s_waitcnt lgkmcnt(0)
s_mov_b32 s{sX}, s4
s_mov_b32 s{sX+1}, s5""")
if opt.debug: a.e("s_memrealtime s[90:91]\ns_memtime s[92:93]")
xtile(0)
skv("A")
light("d0")
a.e("s_branch L_a2")
a.label("L_b1")
a.vm = []
if opt.cpf:
    a.e(f"s_getpc_b64 {sr(sC0,2)}")
    a.label("L_pc")
    a.e(f"""s_lshr_b32 s{sT0}, s2, 3
s_lshl_b32 s{sT0}, s{sT0}, 2
s_add_u32 s{sT0}, s{sT0}, s{sJ}
s_lshl_b32 s{sT0}, s{sT0}, 8
v_lshlrev_b32 v{vT0}, 7, v{vLane}
v_add_u32 v{vT0}, s{sT0}, v{vT0}
v_min_u32 v{vT0}, L_last-L_pc, v{vT0}
s_mov_b64 exec, 3
global_load_dword v{vT2}, v{vT0}, {sr(sC0,2)}
s_mov_b64 exec, -1""")
vWa = 38
def waddr():
    a.e(f"v_and_b32 v{vWa+5}, 255, v0\ns_movk_i32 s{sT0}, 1120\ns_movk_i32 s{sT1}, 1280\ns_movk_i32 s{sT2}, -960")
    for m in range(5):
        d = vWa + m
        if m: a.e(f"v_add_u32 v{vWa+5}, 256, v{vWa+5}")
        a.e(f"""v_mul_u32_u24 v{vT1}, 6554, v{vWa+5}
v_lshlrev_b32 v{d}, 4, v{vWa+5}
v_lshrrev_b32 v{vT1}, 16, v{vT1}
v_mad_u32_u24 v{d}, v{vT1}, s{sT0}, v{d}
v_and_b32 v{vT0}, 12, v{vT1}
v_mad_u32_u24 v{d}, v{vT0}, s{sT1}, v{d}
v_and_b32 v{vT0}, 16, v{vT1}
v_mad_i32_i24 v{d}, v{vT0}, s{sT2}, v{d}""")
def slab_b(sl):
    rho, e = divmod(sl, 4)
    if e == 0 and rho: a.e(f"s_add_u32 s{sRG}, s{sRG}, 163840\ns_sub_u32 s{sRG+1}, s{sRG}, 819200\ns_min_u32 s{sRG}, s{sRG}, s{sRG+1}")
    for m in ((0, 1) if e == 0 else (e + 1,)):
        a.e(f"s_add_u32 m0, s{sWQB}, {P_R[rho] + 4096*m}\ns_nop 0")
        a.vload(f"buffer_load_dwordx4 v{vWa+m}, {sr(sWQ,4)}, s{sRG} offen lds", ("w", sl))
def wkv_dma(half):
    if half == 0:
        a.e(f"s_add_u32 m0, s{sCA}, {P_KVW}\ns_nop 0")
        for i in range(4): a.vload(f"buffer_load_dwordx4 v{vL16}, {sr(sWKV,4)}, s{sCA} offen offset:{1024*i} lds", ("kv",))
        return
    a.e(f"s_add_u32 m0, s{sCA}, {P_KVW+4096}\ns_add_u32 s{sT0}, s{sCA}, 4096")
    for i in range(3):
        if i == 2: a.e("s_mov_b64 exec, 0xffff")
        a.vload(f"buffer_load_dwordx4 v{vL16}, {sr(sWKV,4)}, s{sT0} offen offset:{1024*i} lds", ("kv",))
    a.e("s_mov_b64 exec, -1")
a.e(f"""s_mov_b32 s{sWKV+2}, 25600
s_mov_b32 s{sWKV+3}, 0x00020000
s_mov_b32 s{sWQ+2}, 819200
s_mov_b32 s{sWQ+3}, 0x00020000
s_lshl_b32 s{sWQB}, s{sJ}, 10
s_mul_i32 s{sRG}, s{sR}, 163840
s_add_u32 s{sRG}, s{sRG}, s{sHGO}""")
if opt.skv == 2: a.e(f"v_lshlrev_b32 v{vT3}, 7, v{vLane}\ns_lshr_b32 s{sCC}, s2, 4\ns_lshl_b32 s{sCC}, s{sCC}, 2\ns_add_u32 s{sCC}, s{sCC}, s{sJ}\ns_lshl_b32 s{sCC}, s{sCC}, 9")
if "a" not in opt.head: waddr()
a.e("s_waitcnt lgkmcnt(0)")
if opt.debug: a.e("s_memrealtime s[90:91]\ns_memtime s[92:93]")
skv("B")
a.e(f"s_mov_b32 s{sX}, s4\ns_mov_b32 s{sX+1}, s5\ns_mov_b32 s{sWQ}, s6\ns_mov_b32 s{sWQ+1}, s7")
kst = nstamp[0]
if opt.debug and (opt.only is None or "A" in opt.only):
    nstamp[0] += 3; STAMPS += ["A:data B:x", "A:chain B:k", "A:pub B:last"]
F0 = f"s_mov_b64 exec, 0xffff\nbuffer_load_dword v{vT1}, v{vSt}, {sr(sWS,4)}, 0 offen sc1\ns_mov_b64 exec, -1"
nsl = 0
todo = SU[:2] + [touch] + SU[2:] + [sub, sur, zero_b]
for k, ch in enumerate(opt.head):
    if ch == "k": light("cA"); wkv_dma(0)
    elif ch == "K": wkv_dma(1); light("c0")
    elif ch == "a": waddr()
    elif ch == "p": a.e(f"s_setprio {opt.bprio}")
    elif ch in "123": xtile(int(ch))
    elif ch == "s": slab_b(nsl); nsl += 1
    elif ch == "t":
        a.e(f"s_lshr_b32 s{sT0}, s2, 3\ns_lshl_b32 s{sT0}, s{sT0}, 2\ns_add_u32 s{sT0}, s{sT0}, s{sJ}\ns_mul_i32 s{sT0}, s{sT0}, {128*opt.tn}\ns_add_u32 s{sT0}, s{sT0}, {819200 - 128*128*opt.tn}\ns_mov_b64 exec, {(1 << opt.tn) - 1}")
        a.vload(f"buffer_load_dword v{vT2}, v{vT3}, {sr(sWQ,4)}, s{sT0} offen", ("t",))
        a.e("s_mov_b64 exec, -1")
    elif ch == "u": todo.pop(0)()
    elif ch == "w": light("c1"); a.wait_vm(("kv",)); light("c2"); a.e("s_barrier")
assert nsl <= 8
light("c3")
tagwait()
a.wait_vm(("x",)); light("c4"); stamp_at(kst); a.e("s_barrier")
def f0check():
    a.wait_vm_if(("f0",))
    a.label("L_f0")
    a.e(f"s_mov_b64 exec, 0xff\nv_cmp_ne_u32 vcc, s{sTAG}, v{vT1}\n{'s_nop 0' if opt.nof0 else 's_cbranch_vccnz L_slowf0'}\ns_mov_b64 exec, 0xffff\nds_write_b32 v{vCx}, v{vT1}\ns_mov_b64 exec, -1")
    stamp_at(kst + 1)
for sl in range(20 + opt.lead):
    while nsl <= sl and nsl < 20 and not (sl <= opt.lead + opt.syncs[0] and nsl >= opt.hold): slab_b(nsl); nsl += 1
    if sl == opt.fl_at:
        assert not todo
        if opt.nof0 == 2: a.e(f"v_mov_b32 v{vT1}, s{sTAG}")
        else: a.e(F0); a.vm.append(("f0",))
    d = sl - opt.lead
    if d in opt.syncs:
        for k in range(opt.upers):
            if todo: todo.pop(0)()
        for p in opt.kv_at.get(d, ()): first_kv(p)
        hop(f"B{d}")
        a.wait_vm_if(("w", d))
        if d == opt.bk: f0check()
        if d == 19: stamp_at(kst + 2)
        a.e("s_barrier")
if opt.bk == 20: f0check()
for p in opt.kv_at.get(20, ()): first_kv(p)
hop("B20")
vm_join = list(a.vm)
a.e("s_waitcnt lgkmcnt(0)\ns_barrier")
light("q0")
a.e("s_branch L_bq")
a.raw(";PAD L_bq")
a.label("L_a2")
cX, cW, cA, cR = 38, 98, 78, 138
light("d1")
for f in SU: f()
suw(0)
a.e(f"""s_add_u32 s{sCA}, s{sCA}, {P_KVW}
v_bfe_u32 v{vT0}, v{vLane}, 1, 3
v_lshrrev_b32 v{vT1}, 4, v{vLane}
v_xor_b32 v{vT0}, v{vT0}, v{vT1}
v_and_b32 v{vT1}, 15, v{vLane}
v_lshlrev_b32 v{vT1}, 7, v{vT1}
v_lshl_add_u32 v{vT0}, v{vT0}, 4, v{vT1}
s_lshl_b32 s{sT2}, s{sKH}, 6
v_xor_b32 v{vCx}, s{sT2}, v{vT0}
s_mul_i32 s{sT2}, s{sKH}, 3072
s_add_u32 s{sT2}, s{sT2}, s{sJE}
s_add_u32 s{sT2}, s{sT2}, s{sCX}
v_add_u32 v{vCx}, s{sT2}, v{vCx}
s_lshl_b32 s{sT2}, s{sKH}, 11
v_xor_b32 v{vCx2}, 64, v{vCx}
v_add_u32 v{vCx2}, s{sT2}, v{vCx2}
v_add_u32 v{vTq1}, {P_R[0]}, v{vTq0}
s_mul_i32 s{sT0}, s{sJ}, 20480
v_add_u32 v{vT0}, s{sT0}, v{vT0}
s_lshl_b32 s{sT0}, s{sR}, 12""")
for rho in range(5):
    if rho: a.e(f"s_add_u32 s{sT0}, s{sT0}, 4096\ns_sub_u32 s{sT1}, s{sT0}, 20480\ns_min_u32 s{sT0}, s{sT0}, s{sT1}")
    a.e(f"v_add_u32 v{vXa+rho}, s{sT0}, v{vT0}")
a.e(f"""v_lshrrev_b32 v{vT0}, 4, v{vLane}
v_bfe_u32 v{vT1}, v{vLane}, 2, 2
v_lshl_add_u32 v{vT0}, v{vT0}, 3, v{vT1}
v_mul_u32_u24 v{vT0}, 40, v{vT0}
v_add_u32 v{vT0}, s{sCA}, v{vT0}
v_and_b32 v{vT1}, 3, v{vLane}
v_lshlrev_b32 v{vT1}, 4, v{vT1}
v_min_u32 v{vCw}, 32, v{vT1}
v_add_u32 v{vCw}, v{vCw}, v{vT0}
v_add_u32 v{vT1}, 8, v{vT1}
v_min_u32 v{vCw+1}, 32, v{vT1}
v_add_u32 v{vCw+1}, v{vCw+1}, v{vT0}
s_mul_i32 s{sT0}, s{sJ}, 2560
s_add_u32 s{sT0}, s{sT0}, {L_Q2}
v_add_u32 v{vM2w}, s{sT0}, v{vL16}
v_add_u32 v{vM2h}, s{sT0}, v{vL8}
s_add_u32 s{sT1}, s{sW}, {L_FLG}
v_mov_b32 v{vT3}, s{sT1}
v_mov_b32 v{vFlag}, 0
s_mov_b64 exec, 1
ds_write_b8 v{vT3}, v{vFlag}
s_mov_b64 exec, -1
v_mov_b32 v{vFlag}, 1""")
a.e(f"""s_bitcmp1_b32 s{sHG}, 0
s_cbranch_scc1 L_ofv
v_lshrrev_b32 v{vT0}, 4, v{vLane}
v_and_b32 v{vT1}, 3, v{vLane}
v_lshlrev_b32 v{vT1}, 4, v{vT1}
v_lshl_add_u32 v{vSt}, v{vT0}, 9, v{vT1}
v_and_b32 v{vT1}, 4, v{vLane}
v_lshl_add_u32 v{vSt}, v{vT1}, 5, v{vSt}
v_and_b32 v{vT1}, 8, v{vLane}
v_lshl_add_u32 v{vSt}, v{vT1}, 3, v{vSt}
s_and_b32 s{sT1}, s{sTK}, 1
s_lshl_b32 s{sT1}, s{sT1}, 8
s_branch L_ofd""")
a.label("L_ofv")
a.e(f"""v_and_b32 v{vT0}, 7, v{vLane}
v_lshlrev_b32 v{vT0}, 2, v{vT0}
v_mov_b32 v{vT1}, 0x73625410
v_lshrrev_b32 v{vT0}, v{vT0}, v{vT1}
v_and_b32 v{vT0}, 7, v{vT0}
v_add_u32 v{vT0}, 16, v{vT0}
v_and_b32 v{vT1}, 4, v{vLane}
v_lshlrev_b32 v{vT1}, 1, v{vT1}
v_and_b32 v{vT2}, 3, v{vLane}
v_add_u32 v{vT1}, v{vT1}, v{vT2}
v_lshrrev_b32 v{vT2}, 5, v{vLane}
v_lshl_add_u32 v{vT1}, v{vT2}, 2, v{vT1}
s_mov_b32 vcc_lo, 0xff00ff00
s_mov_b32 vcc_hi, 0xff00ff00
v_cndmask_b32 v{vT0}, v{vT1}, v{vT0}, vcc
v_bfe_u32 v{vT1}, v{vLane}, 4, 1
v_mul_u32_u24 v{vT1}, 384, v{vT1}
v_lshl_add_u32 v{vSt}, v{vT0}, 4, v{vT1}
s_and_b32 s{sT1}, s{sTK}, 1
s_mul_i32 s{sT1}, s{sT1}, 768
s_add_u32 s{sT1}, s{sT1}, 1536""")
a.label("L_ofd")
a.e(f"""s_lshl_b32 s{sT0}, s{sTB}, 13
s_lshr_b32 s{sT2}, s{sTK}, 1
s_lshl_b32 s{sT2}, s{sT2}, 12
s_add_u32 s{sT0}, s{sT0}, s{sT2}
s_add_u32 s{sT0}, s{sT0}, s{sT1}
v_add_u32 v{vT2}, s{sCA}, v{vL16}""")
light("d2")
tagwait()
light("d3")
a.e("s_waitcnt vmcnt(0)")
light("cA")
a.e("s_barrier")
stamp_at(kst)
light("c0")
def cw_read(i):
    a.lds(f"ds_read_b128 {vr(cX+4*i,4)}, v{vCx2 if i%2 else vCx} offset:{2048*(i//2)}", ("cx", i))
    for h in range(2):
        for q in range(2):
            a.lds(f"ds_read_b64_tr_b16 {vr(cW+8*i+4*h+2*q,2)}, v{vCw+h} offset:{i*1280+q*160}", ("cw", i, h))
for i in range(5): cw_read(i)
light("c1")
a.e(f"s_bitcmp1_b32 s{sHG}, 0\ns_cbranch_scc1 L_chv")
save = list(a.lg)
for mat in range(2):
    a.lg = list(save)
    if mat: a.label("L_chv")
    for i in range(5):
        for h in range(2):
            a.wait_lg(("cw", i, h))
            W, X = vr(cW + 8 * i + 4 * h, 4), vr(cX + 4 * i, 4)
            c = "0" if i == 0 else vr(cA + 4 * h, 4)
            a.e(f"v_mfma_f32_16x16x32_bf16 {vr(cA+4*h,4)}, {W if not mat else X}, {X if not mat else W}, {c}")
    if not mat: a.e("s_branch L_chd")
a.label("L_chd")
light("c2")
a.e(f"s_cmp_eq_u32 s{sW}, 0\ns_cbranch_scc1 L_fin0\ns_nop 5")
a.e(f"ds_write_b128 v{vT2}, {vr(cA,4)}\nds_write_b128 v{vT2}, {vr(cA+4,4)} offset:1024")
a.e(f"s_mov_b64 exec, 1\nds_write_b8 v{vT3}, v{vFlag}\ns_mov_b64 exec, -1")
stamp_at(kst + 1)
hop("A")
a.e("s_branch L_bx")
a.label("L_fin0")
a.e(f"ds_read_b32 v{cR+24}, v{vT3}")
for j in range(1, 4):
    for h in range(2): a.e(f"ds_read_b128 {vr(cR+8*(j-1)+4*h,4)}, v{vT2} offset:{6400*j+1024*h}")
a.e(f"""s_add_u32 s{sSPIN}, s{sSPIN}, 1
s_cmp_lt_u32 s{sSPIN}, 1000000
s_cbranch_scc0 L_end
s_waitcnt lgkmcnt(6)
v_cmp_ne_u32 vcc, 0x01010100, v{cR+24}
s_waitcnt lgkmcnt(0)
s_cbranch_vccnz L_fin0""")
light("c3")
stamp_at(kst + 1)
for i in range(8):
    a.e(f"v_add_f32 v{cA+i}, v{cA+i}, v{cR+i}\nv_add_f32 v{cR+8+i}, v{cR+8+i}, v{cR+16+i}")
for i in range(8): a.e(f"v_add_f32 v{cA+i}, v{cA+i}, v{cR+8+i}")
SCALE = math.log2(math.e) / math.sqrt(20.0)
SCX = f"0x{struct.unpack('<I', struct.pack('<f', SCALE))[0]:08x}"
a.e(f"s_bitcmp1_b32 s{sHG}, 0\ns_cbranch_scc1 L_stv")
for i in range(8): a.e(f"v_mul_f32 v{cA+i}, {SCX}, v{cA+i}")
for i in range(4): a.e(f"v_cvt_pk_bf16_f32 v{cR+i}, v{cA+2*i}, v{cA+2*i+1}")
a.e("s_mov_b32 exec_hi, 0xffff\ns_branch L_std")
a.label("L_stv")
for i in range(4): a.e(f"v_cvt_pk_bf16_f32 v{cR+i}, v{cA+2*i}, v{cA+2*i+1}")
a.e(f"v_add_f32 v{vT0}, abs(v{cA}), abs(v{cA+1})")
for i in range(2, 8): a.e(f"v_add_f32 v{vT0}, v{vT0}, abs(v{cA+i})")
a.e(f"v_permlane32_swap_b32 v{cR}, v{cR+2}\nv_permlane32_swap_b32 v{cR+1}, v{cR+3}")
a.e(f"v_cmp_nge_f32 vcc, 0x5c000000, v{vT0}\ns_mov_b32 s{sT1}, 0x3f803f80\ns_nop 0\ns_cmp_lg_u64 vcc, 0\ns_cselect_b32 s{sT1}, 0x7f807f80, s{sT1}")
a.e("s_mov_b64 exec, 0x30003000")
for i in range(4): a.e(f"v_mov_b32 v{cR+i}, s{sT1}")
a.e("s_mov_b32 exec_lo, 0xc000c000")
for i in range(4): a.e(f"v_mov_b32 v{cR+i}, 0")
a.e("s_mov_b32 exec_lo, -1\ns_mov_b32 exec_hi, 0x00ff00ff")
a.label("L_std")
a.e(f"""buffer_store_dwordx4 {vr(cR,4)}, v{vSt}, {sr(sWS,4)}, s{sT0} offen sc1
s_mov_b64 exec, -1
s_lshl_b32 s{sCC}, s{sTB}, 3
s_add_u32 s{sCC}, s{sCC}, s{sHG}
s_lshl_b32 s{sCC}, s{sCC}, 7
s_add_u32 s{sCC}, s{sCC}, {A_F1}
v_mov_b32 v{vT1}, s{sTAG}""")
def publish():
    a.e(f"s_cmp_eq_u32 s{sW}, 0\ns_cbranch_scc0 L_pubd\ns_mov_b64 exec, 1\ns_waitcnt vmcnt(0)\nbuffer_store_dword v{vT1}, v{vL16}, {sr(sWS,4)}, s{sCC} offen sc1\ns_mov_b64 exec, -1")
    keep = list(a.lg); stamp_at(kst + 2); a.lg = keep
    a.label("L_pubd")
a.label("L_bx")
light("c4")
a.lg = []; a.vm = []
a.e("s_barrier")
stamp("Bx")
for e in range(2):
    for i in range(e, 20, 2):
        a.lds(f"ds_read_b128 {vr(vXf+4*i,4)}, v{vXa+i//4} offset:{2048*(i%4//2)}", ("x", i))
        if e == 0 and i % 4 == 2: a.e(f"v_xor_b32 v{vXa+i//4}, 64, v{vXa+i//4}")
js = [(i, t) for i in range(10) for t in range(5)]
qs = [(i, t) for i in range(20) for t in range(opt.dskip)]
for i in range(4 * opt.dskip, 20): a.e(f"v_mov_b32 v{vAcc+i}, 0")
NR1 = 11
assert opt.pub_at in opt.syncs and (opt.bk in opt.syncs or opt.bk == 20) and opt.bk + opt.lead >= 19 and 19 in opt.syncs and opt.pub_at < opt.bk
issued = 0
avail = -1
def trq(f, i, t):
    if opt.dmode == "m" and t and i > 2: return
    rho, e = divmod(i, 4)
    base, off = (vTq1, P_R[rho] - P_R[0]) if rho < 3 else (vTq0, P_R[rho])
    for q in range(2):
        a.lds(f"ds_read_b64_tr_b16 {vr(f+2*q,2)}, v{base} offset:{off + e*5120 + 8*t + q*2560}", ("fr", i, t))
for j, (i, t) in enumerate(qs):
    while issued < len(qs) and issued < j + opt.ahead:
        if qs[issued][0] > avail:
            if qs[issued][0] >= opt.drain and issued > j: break
            nxt_s = min(x for x in opt.syncs if x > avail)
            if avail < 0: a.wait_lg(("x", 19))
            if nxt_s == opt.pub_at: publish()
            for p in opt.kv_a.get(nxt_s, ()): first_kv(p)
            a.e("s_barrier")
            avail = nxt_s
            stamp(f"S{avail}")
        trq(vFr + 4 * (issued % NR1), *qs[issued]); issued += 1
    a.wait_lg(("fr", i, t))
    c = "0" if i == 0 else vr(vAcc + 4 * t, 4)
    if opt.dmode == "r" and t and 0 < i < 19: continue
    a.e(f"v_mfma_f32_16x16x32_bf16 {vr(vAcc+4*t,4)}, {vr(vFr+4*(j%NR1),4)}, {vr(vXf+4*i,4)}, {c}")
stamp("qgemm")
vPk = vXf
zero_o(); a.e("s_nop 0")
for i in range(4): a.e(f"v_cvt_pk_bf16_f32 v{vPk+i}, v{vAcc+2*i}, v{vAcc+2*i+1}")
a.e(f"ds_write_b128 v{vM2w}, {vr(vPk,4)}")
for i in range(4, 8): a.e(f"v_cvt_pk_bf16_f32 v{vPk+i}, v{vAcc+2*i}, v{vAcc+2*i+1}")
a.e(f"ds_write_b128 v{vM2w}, {vr(vPk+4,4)} offset:1024")
for i in range(8, 10): a.e(f"v_cvt_pk_bf16_f32 v{vPk+i}, v{vAcc+2*i}, v{vAcc+2*i+1}")
a.e(f"ds_write_b64 v{vM2h}, {vr(vPk+8,2)} offset:2048")
zero_m()
for p in opt.kv_a.get(20, ()): first_kv(p)
a.e("s_waitcnt lgkmcnt(0)\ns_barrier")
for p in opt.kv_a.get(21, ()): first_kv(p)
assert a.vm == vm_join, (a.vm, vm_join)
assert not opt.flip and min(opt.kv_a) > opt.bk
for kv in (opt.kv_at, opt.kv_a): assert min(kv) > min(19, opt.bk) and all(k in opt.syncs or k >= 20 for k in kv)
light("q0")
a.label("L_bq")
a.lg = []
stamp("E2")
a.lds(f"ds_read_b64 {vr(vQH[0],2)}, v{vQa+4} offset:2048", ("q", 0))
a.lds(f"ds_read_b128 {vr(vQ[0],4)}, v{vQa}", ("q", 0))
a.lds(f"ds_read_b128 {vr(vQ[1],4)}, v{vQa+1}", ("q", 0))
a.lds(f"ds_read_b64 {vr(vQH[1],2)}, v{vQa+5} offset:2048", ("q", 1))
a.lds(f"ds_read_b128 {vr(vQ[2],4)}, v{vQa+2}", ("q", 1))
a.lds(f"ds_read_b128 {vr(vQ[3],4)}, v{vQa+3}", ("q", 1))
a.e(f"s_not_b32 s{sT0}, s{sTAG}\nv_mov_b32 v{vFlag}, s{sT0}\ns_mov_b64 exec, 0xffff")
a.lds(f"ds_read_b32 v{vFlag}, v{vXp1}", ("q", 1))
a.e("s_mov_b64 exec, -1")
seq = [(t, p) for t in range(13) for p in range(2)] + [(t, p) for p in range(2) for t in (13, 14, 15)]
NS = 32
def s2b(n):
    t, p = seq[n]; S = vS[n % 2]
    if "a" in opt.dg: return "s_nop 0"
    if "e" in opt.dg: return "\n".join(f"v_mfma_f32_32x32x8bf16_1k {vr(S+16*x,16)}, {vr(k1slot(t),2)}, {vr(vQH[p],2)}, 0" for x in range(2))
    if "f" in opt.dg: return "\n".join(f"v_mfma_f32_32x32x16_bf16 {vr(S+16*x,16)}, {vr(kslot(t),4)}, {vr(vP+4,4)}, 0" for x in range(2))
    return f"v_mfma_f32_32x32x4_2b_bf16 {vr(S,32)}, {vr(k1slot(t),2)}, {vr(vQH[p],2)}, 0" + (f" cbsz:1 abid:{t&1}" if opt.k1 else "")
def s16(n, x):
    t, p = seq[n]; S = vS[n % 2] + 16 * x
    if "g" in opt.dg: return "s_nop 0"
    return f"v_mfma_f32_32x32x16_bf16 {vr(S,16)}, {vr(kslot(t),4)}, {vr(vQ[2*p+x],4)}, {'0' if 'a' in opt.dg else vr(S,16)}"
def pv(n, g):
    t, p = seq[n]; O = vO + 16 * (2 * p + g // 2)
    if "b" in opt.dg: return "s_nop 0"
    return f"v_smfmac_f32_32x32x32_bf16 {vr(O,16)}, {vr(vslot(t)+4*(g%2),4)}, {vr(vS[n%2]+8*g,8)}, v{vIx}"
a.wait_vm(("k", 0))
a.wait_lg(("q", 0))
if opt.dly:
    a.e(f"s_mov_b32 s{sT0}, {opt.dly}")
    a.label("L_dly")
    a.e(f"s_nop 15\ns_sub_u32 s{sT0}, s{sT0}, 1\ns_cbranch_scc0 L_dly")
stamp("kv0")
a.e(s2b(0))
a.e(f"v_mov_b32 v{vR1}, -1\nv_mov_b32 v{vR1+1}, -1\nv_mov_b32 v{vR1+2}, -1\nv_mov_b32 v{vR1+3}, -1\ns_xor_b32 s{sT0}, s{sTAG}, s{sXCC}\nv_mov_b32 v{vR1+4}, s{sT0}")
for x in v_loads(1): a.vload(*x)
kv_advance(1)
a.e("s_nop 7"); a.e(s16(0, 0)); a.e(s16(0, 1)); a.wait_lg0(); a.e("s_nop 9")
assert opt.dual and opt.order[0] == 0 and opt.order[3] == 3
vOB = dict(zip(opt.order, (vO, 182, vO, 158)))
vAC = dict(zip(opt.order, ([158, 162, 178, 202, 220], range(18, 38, 4), range(222, 242, 4), range(202, 222, 4))))
vFb, vF8 = vWoB, vWoA
SPIN = f"s_add_u32 s{sSPIN}, s{sSPIN}, 1\ns_cmp_lt_u32 s{sSPIN}, 1000000\ns_cbranch_scc0 L_end"
vRdy = vR1 + 22
def normalize(S, T, fail):
    a.e(f"v_subrev_u32 v{T}, 0x21800000, v{S+10}\nv_cmp_lt_u32 vcc, 0x3c000000, v{T}")
    if not opt.dg: a.e(f"s_branch {fail}" if opt.force_fallback else f"s_cbranch_vccnz {fail}")
ostubs = []
def ostore(T, pol, tag):
    o = sE0 if tag == "e" else sO0
    a.e(f"buffer_store_dwordx4 {vr(T,4)}, v{vL16}, {sr(sWS,4)}, s{o} offen{pol}")
    a.e(f"buffer_store_dword v{T+4}, v{vL8}, {sr(sWS,4)}, s{o+1} offen{pol}")
def scale(S, T):
    a.e(f"v_rcp_f32 v{S+10}, v{S+10}\ns_or_b32 s{sT0}, s{sMSK}, s{sMSK+1}")
    if opt.pk:
        for i in range(0, 10, 2): a.e(f"v_pk_mul_f32 {vr(S+i,2)}, {vr(S+i,2)}, {vr(S+10,2)} op_sel_hi:[1,0]")
    else:
        for i in range(10): a.e(f"v_mul_f32 v{S+i}, v{S+i}, v{S+10}")
    for i in range(5): a.e(f"v_cvt_pk_bf16_f32 v{T+i}, v{S+2*i}, v{S+2*i+1}")
    if opt.dg:
        for i in range(5): a.e(f"v_min_u32 v{T+i}, -2, v{T+i}")
def finish(S, T, tag):
    scale(S, T)
    a.label(f"L_ost{tag}")
    if opt.fast:
        a.e(f"s_cbranch_scc1 L_osc{tag}")
        ostore(T, opt.opol[tag], tag)
        ostubs.append((T, tag))
    else: ostore(T, " sc1", tag)
    a.label(f"L_osd{tag}")
def opoll(tile, jj):
    b = vOB[tile]
    so = sOJ + jj
    if tile: a.e(f"s_add_u32 s{sT1}, s{so}, {tile*20480}"); so = sT1
    a.e(f"buffer_load_dwordx4 {vr(b+8*jj,4)}, v{vL16}, {sr(sWS,4)}, s{so} offen sc1")
    a.e(f"buffer_load_dwordx4 {vr(b+8*jj+4,4)}, v{vL16}, {sr(sWS,4)}, s{so} offen offset:1024 sc1")
    a.e(f"buffer_load_dwordx2 {vr(b+16+2*jj,2)}, v{vL8}, {sr(sWS,4)}, s{so} offen offset:2048 sc1")
def SETF(off): return f"s_mov_b64 exec, 1\nds_write_b8 v{vFa}, v{vFlag} offset:{off}\ns_mov_b64 exec, -1"
vPkd = vR1 + 12
jd = [(u, t) for u in range(2) for t in range(5)] + [(2 + u, d - u) for d in range(7) for u in (2, 1, 0) if 0 <= d - u < 5]
js = [(u, t) for u in range(5) for t in range(5)]
ring = dict(zip(js, list(range(38, 118, 4)) + list(range(138, 158, 4))))
nblk = [0]
class only_par:
    def __init__(s_, par, reg=sPAR): s_.par = par; s_.reg = reg
    def __enter__(s_):
        s_.k = nblk[0]; nblk[0] += 1
        a.e(f"s_cmp_eq_u32 s{s_.reg}, {s_.par}\ns_cbranch_scc0 L_blk{s_.k}")
    def __exit__(s_, *x): a.label(f"L_blk{s_.k}")
def wr3(addr, off, src):
    for i in range(3): a.e(f"ds_write_b128 v{addr}, {vr(src+4*i,4)} offset:{off+1024*i}")
def rd3(addr, off, dst):
    for i in range(3): a.e(f"ds_read_b128 {vr(dst+4*i,4)}, v{addr} offset:{off+1024*i}")
def add11(dst, src):
    if opt.pk:
        for i in range(0, 10, 2): a.e(f"v_pk_add_f32 {vr(dst+i,2)}, {vr(dst+i,2)}, {vr(src+i,2)}")
        a.e(f"v_add_f32 v{dst+10}, v{dst+10}, v{src+10}")
    else:
        for i in range(11): a.e(f"v_add_f32 v{dst+i}, v{dst+i}, v{src+i}")
vRc = [vO, vVr + 8, vR1]
def padn(key):
    for q in range(opt.nops.get(key, 0)): a.e("s_nop 0")
def roleprio(key):
    if key in opt.prioE:
        with only_par(0, sU): a.e(f"s_setprio {opt.prioE[key]}")
    if key in opt.prioL:
        with only_par(1, sU): a.e(f"s_setprio {opt.prioL[key]}")
def okc(sfx):
    a.label("L_okc" + sfx)
    a.e(f"s_waitcnt lgkmcnt(0)\nv_and_b32 v{vT0}, v{vT0}, v{vT1}\nv_cmp_ne_u32 vcc, 0x01010101, v{vT0}\ns_cbranch_vccnz L_okslow{sfx}")
def ereads():
    a.e(f"ds_read_b32 v{vT0}, v{vFb} offset:8")
    rd3(vA0, 0, vR1); rd3(vA0, 3072, vR1 + 12); rd3(vA0, 6144, vO)
def lreads():
    a.e(f"ds_read_b32 v{vRdy}, v{vFb}")
    rd3(vA1, 0, vRc[0]); rd3(vA1, 9216, vRc[1])
def l2reads():
    a.e(f"ds_read_u8 v{vRdy+1}, v{vFa} offset:46")
    rd3(vX1, 3072, vRc[2])
def preads():
    a.e(f"ds_read_u8 v{vRdy}, v{vFp}")
    rd3(vL1, 0, vRc[0])
def late1():
    with only_par(1, sU):
        with only_par(1): l2reads()
        preads()
ksched = {2 * t - 4: t for t in range(2, 15)}; vsched = {2 * t - 3: t for t in range(2, 15)}
for n in range(NS):
    t, p = seq[n]
    a.c(f"half-step {n}: tile {t} pair {p}")
    if n in opt.prio: a.e(f"s_setprio {opt.prio[n]}")
    roleprio(n)
    padn(n)
    if n == 0 and opt.debug and opt.only and not any(x[0] in "cdq" for x in opt.only):
        for r in (0, 4, 6, 8, 10, 16, 12, 14, 18, 20, 22, 24, 26, 28, 30): a.e(f"s_mov_b32 s{r}, 0")
    if n in (4, 8, 16, 24, 29, 30, 31): stamp(f"step{n}")
    light(f"h{n}")
    S = vS[n % 2]
    ex = [f"v_exp_f32 v{S+i}, v{S+i}" for i in range(32)]
    cur = [0]
    pos = opt.posn.get(n, opt.pos); xs = opt.xsn.get(n, opt.xs)
    def ev(k):
        if k == 0 and n > 0: a.e(pv(n - 1, 3))
        if k == 1:
            if nxt:
                a.wait_vm_if(("k", seq[n + 1][0]))
                a.e(s2b(n + 1))
            if n == 30:
                with only_par(0, sPE): ereads()
        if k == 2: a.wait_vm_if(("v", t)); a.e(pv(n, 0))
        if k == 3: a.e(pv(n, 1))
        if k == 4 and nxt: a.e(s16(n + 1, 0))
        if k == 5: a.e(pv(n, 2))
        if k == 6 and nxt: a.e(s16(n + 1, 1))
    def E(hi):
        while cur[0] < hi:
            for k in range(7):
                if pos[k] == cur[0]: ev(k)
            if n == 31 and cur[0] == opt.w31:
                light("k9")
                wr3(vL0, 0, vO + 32)
                a.e(SETF(0))
                light("k10")
            if not ("c" in opt.dg and cur[0] % 4 == 3): a.e(ex[cur[0]])
            cur[0] += 1
    L = k_loads(ksched[n]) if n in ksched else v_loads(vsched[n]) if n in vsched else v_loads(15) if n == 26 else []
    def LD(i):
        if i < len(L) and not ("d" in opt.dg and n > 1): a.vload(*L[i])
    nxt = n + 1 < NS
    assert opt.okc == 3 and pos[0] < pos[1] and pos[0] < xs[0] and pos[1] < xs[2]
    E(xs[0] - 2)
    if n in (0, 4, 8):
        a.wait_vm_if(("flag",))
        flag_cmp()
    E(xs[0])
    if n in ksched and ksched[n] % 2 == 0: chunk_check(ksched[n] // 2)
    LD(0); E(xs[1]); LD(1)
    if n in vsched: kv_advance(vsched[n])
    if n in (1, 5): flag_refresh()
    E(xs[2])
    if n == opt.clr_at:
        a.e(f"buffer_store_dwordx4 {vr(vR1,4)}, v{vL16}, {sr(sWS,4)}, s{sO0} offen sc1")
        a.e(f"buffer_store_dword v{vR1}, v{vL8}, {sr(sWS,4)}, s{sO1} offen sc1")
    if n == 3:
        a.e(f"""s_mul_i32 s{sT1}, s{sTB}, 81920
s_lshr_b32 s{sT0}, s{sJ}, 1
s_mul_i32 s{sT0}, s{sT0}, 10240
s_add_u32 s{sT1}, s{sT1}, s{sT0}
s_add_u32 s{sT1}, s{sT1}, {A_O}
s_lshl_b32 s{sT0}, s{sJ}, 1
s_xor_b32 s{sT0}, s{sT0}, s{sHG}
s_andn2_b32 s{sT0}, 3, s{sT0}
s_mul_i32 s{sOJ}, s{sT0}, 2560
s_add_u32 s{sOJ}, s{sOJ}, s{sT1}
s_xor_b32 s{sT0}, s{sT0}, 1
s_mul_i32 s{sOJ+1}, s{sT0}, 2560
s_add_u32 s{sOJ+1}, s{sOJ+1}, s{sT1}""")
    if n == 27:
        assert opt.wo0 + 20 / opt.wok <= 25
        a.e(f"s_lshl_b32 s{sT0}, s{sTT}, 1\ns_add_u32 s{sT0}, s{sT0}, s{sKH}\ns_add_u32 s{sT0}, s{sT0}, {L_FL}\nv_mov_b32 v{vFa}, s{sT0}\nv_mov_b32 v{vFlag}, 1\nv_and_b32 v{vFb}, -4, v{vFa}\nv_mov_b32 v{vF8}, {L_FL}")
        if opt.dual: a.e(f"""s_mul_i32 s{sT1}, s{sU}, 20480
s_sub_u32 s{sE0}, s{sO0}, s{sT1}
s_sub_u32 s{sE1}, s{sO1}, s{sT1}
s_lshl_b32 s{sT1}, s{sU}, 1
v_subrev_u32 v{vFe}, s{sT1}, v{vFa}
s_mul_i32 s{sT1}, s{sKH}, {3072 - 12288}
s_add_u32 s{sT1}, s{sT1}, {L_X - L_S - 24576 - 3072}
s_mul_i32 s{sT1}, s{sT1}, s{sU}
v_add_u32 v{vX1}, s{sT1}, v{vA0}
s_mul_i32 s{sT1}, s{sPE}, 9216
v_add_u32 v{vL1}, s{sT1}, v{vA1}
v_xor_b32 v{vFp}, 1, v{vFa}""")
        else: a.e(f"s_mov_b32 s{sE0}, s{sO0}\ns_mov_b32 s{sE1}, s{sO1}\nv_mov_b32 v{vFe}, v{vFa}\nv_mov_b32 v{vX1}, v{vA0}")
    if n == opt.clr_at + 6:
        a.e(f"s_mov_b64 exec, 1\nbuffer_store_dword v{vR1+4}, v{vL16}, {sr(sWS,4)}, s{sF2} offen sc1\ns_mov_b64 exec, -1")
    if n == opt.clr_at + 7 and opt.otouch:
        a.e(f"buffer_load_dwordx4 {vr(vR1+8,4)}, v{vL16}, {sr(sWS,4)}, s{sO0} offen{opt.otouch}")
        a.e(f"buffer_load_dword v{vR1+12}, v{vL8}, {sr(sWS,4)}, s{sO1} offen{opt.otouch}")
    if n == 23:
        a.e(f"v_and_b32 v{vT0}, 15, v{vLane}\nv_lshlrev_b32 v{vT0}, 7, v{vT0}\ns_and_b32 s{sF2}, s{sF2}, 0xfffff800")
        a.vload(f"buffer_load_dword v{vT1}, v{vT0}, {sr(sWS,4)}, s{sF2} offen sc1", ("f2",))
    if n == 25:
        for x in k_loads(15): a.vload(*x)
    if n == 28:
        a.wait_vm_if(("f2",))
        a.label("L_f2")
        a.e(f"""v_xor_b32 v{vT1}, s{sTAG}, v{vT1}
v_cmp_lt_u32 vcc, 7, v{vT1}
s_cbranch_vccnz L_slowf2
v_cmp_ne_u32 {sr(sMSK,2)}, s{sXCC}, v{vT1}""")
        assert not any(x[0] == "wo" for x in a.vm) and opt.wo0 + 20 / opt.wok <= 24
        a.e(SETF(16))
    if n == 29: wr3(vE0, 0, vO)
    if n == 31:
        if opt.okc == 0:
            with only_par(0, sU): okc("")
        elif opt.okc == 1: okc("")
    if n == 30:
        with only_par(0, sPE):
            a.label("L_erd")
            light("k5")
            a.e(f"s_waitcnt lgkmcnt(3)\nv_cmp_ne_u32 vcc, 0x01010101, v{vT0}\ns_cbranch_vccnz L_eslow"); light("k6"); add11(vO + 16, vR1); add11(vO + 16, vR1 + 12)
    E(xs[3])
    s = n - opt.wo0
    wol = [x for x in range(s * opt.wok, (s + 1) * opt.wok) if 0 <= x < 20]
    if opt.wpf is not None and 0 <= n - opt.wpf[0] < -(-25 // opt.wpf[1]):
        k0 = (n - opt.wpf[0]) * opt.wpf[1]
        if k0 == 0: a.e(f"s_and_b32 s{sT0}, s2, -8\ns_add_u32 s{sT0}, s{sT0}, s{sW}\ns_lshl_b32 s{sT0}, s{sT0}, 7\ns_add_u32 s{sWP}, s{sWO}, s{sT0}\ns_addc_u32 s{sWP+1}, s{sWO+1}, 0")
        for k in range(k0, min(25, k0 + opt.wpf[1])): a.e(f"s_load_dwordx2 {sr(sJE,2)}, {sr(sWP,2)}, {k*32768 + 60}")
    for s in ([] if opt.nowo else wol):
        khs, i = divmod(s, 10); pp, u = divmod(i, 5)
        if u < 4: so = f"s_add_u32 s{sT2}, s{sPJ + 2*pp + u//2}, {(320*khs + 40*(u%2))*1280}"
        else: so = f"s_min_u32 s{sT2}, s{sPJ+2*pp}, s{sPJ+2*pp+1}\ns_add_u32 s{sT2}, s{sT2}, {320*khs*1280}"
        ld = f"buffer_load_dwordx4 v{vWoA if u < 4 else vWoB}, {sr(sWO,4)}, s{sT2} offen lds"
        m0 = f"s_add_u32 m0, s{sM0B}, {L_W + khs*51200 + i*5120}\n{so}"
        if opt.wo64 == 1:
            a.e(f"s_bitcmp1_b32 s{sWM}, {s}\ns_cbranch_scc0 L_wo{s}\n{m0}\n{ld}")
            a.label(f"L_wo{s}")
            wo_last = len(a.lines)
        elif opt.wo64 == 2:
            a.e(f"{m0}\ns_bitcmp1_b32 s{sWM}, {s}\ns_cselect_b64 exec, -1, 0")
            a.vload(ld, ("wo", s))
            a.e("s_mov_b64 exec, -1")
        else:
            a.e(m0)
            if s == wol[0]: a.e("s_mov_b32 exec_hi, 0xff")
            a.vload(ld + opt.wopol, ("wo", s))
            if s == wol[-1]: a.e("s_mov_b32 exec_hi, -1")
    if n == 29:
        with only_par(1, sPE): wr3(vA0, 3072, vO + 16)
        a.e(SETF(8))
    if n == 30:
        with only_par(0, sPE):
            light("k7"); a.e("s_waitcnt lgkmcnt(0)"); add11(vO + 16, vO)
            normalize(vO + 16, vR1 + 12, "L_defer")
            finish(vO + 16, vR1 + 12, "e")
            a.e(SETF(24).replace(f"v{vFa},", f"v{vFe},"))
            a.label("L_deferred")
            light("k8")
    roleprio(n + 0.5)
    padn(n + 0.5)
    E(32)
a.e("s_nop 1")
a.e(pv(NS - 1, 3))
if opt.lpos == 3: late1()
stamp("loop end")
light("t0")
vSum = vO + 48
a.e(f"s_cmp_eq_u32 s{sTT}, 3\ns_cbranch_scc0 L_other")
wst = []
def wstart(p0=opt.p0):
    if opt.okc == 3:
        k = len(wst); wst.append(k)
        a.label(f"L_ws{k}")
        a.e(f"ds_read_b64 {vr(vT0,2)}, v{vF8} offset:16")
    for j in range(25):
        if j == p0 and opt.okc == 3: a.e(f"s_waitcnt lgkmcnt({min(15, 2*p0)})\nv_and_b32 v{vT0}, v{vT0}, v{vT1}\nv_cmp_ne_u32 vcc, 0x01010101, v{vT0}\ns_cbranch_vccnz L_wr{k}")
        if j == p0: [opoll(0, jj) for jj in range(2)]
        trd(ring[js[j]], *js[j], ("fr",) + js[j])
padn("t3")
a.label("L_t3")
a.e(f"s_waitcnt lgkmcnt(0)\nv_and_b32 v{vRdy}, v{vRdy}, v{vRdy+1}\nv_cmp_ne_u32 vcc, 1, v{vRdy}\ns_cbranch_vccnz L_t3w")
add11(vRc[0], vRc[2])
stamp("L rd")
light("t1")
add11(vSum, vRc[0])
normalize(vSum, vRc[0], "L_fallback")
finish(vSum, vPkd, "l")
a.e(SETF(24))
stamp("O stored")
light("t2"); light("r2")
a.e(f"s_cmp_eq_u32 s{sDEF}, 0\ns_cbranch_scc0 L_dfb")
padn("role")
a.label("L_role")
a.e(f"s_cmp_eq_u32 s{sU}, 0\ns_cbranch_scc1 L_work")
def otest(e, jj):
    b = vOB[e]
    a.e(f"v_max_u32 v{vT0}, v{b+16+2*jj}, v{b+17+2*jj}\nv_max3_u32 v{vT0}, v{vT0}, v{b+8*jj+3}, v{b+8*jj+7}\nv_cmp_eq_u32 vcc, -1, v{vT0}")
fstubs = []; gdone = []
def fread(reg, op, addr, off): return f"{op} v{reg}, v{addr} offset:{off}"
def fcheck(name, rd, reg, val):
    a.wait_lg(name)
    a.label(f"L_fc{name}")
    a.e(f"v_cmp_ne_u32 vcc, {val}, v{reg}\ns_cbranch_vccnz L_fs{name}")
    fstubs.append((name, rd))
def pub(tile): return fread(vRdy, "ds_read_u16", vF8, 24 + 2 * tile)
def project(first):
    a.lg = [("fr",) + js[j] for j in range(25) for q in range(2)]
    vm = [(0, 0)] * 3 + [(0, 1)] * 3
    order = opt.order
    sfx = "f" if first else ""
    side = {}
    assert opt.ndef >= 1
    def at(i, f): side.setdefault(i, []).append(f)
    def wr(tile, t, c=""): return lambda: a.lds(f"ds_write_b128 v{vPx}, {vr(vAC[tile][t],4)} offset:{5632*tile + 32*t}{c}", "w")
    def flag(tile):
        def f(): a.e(SETF(32 + 4 * tile)); a.lg.append("w"); light(f"g{tile}")
        return f
    def entry():
        a.label("L_work2"); a.lg = []
    at(24, entry)
    for k, tile in enumerate(order):
        b = vOB[tile]
        for jj in range(2):
            i = 25 * k + 10 * jj - 1
            sp = 0 if jj == 0 and k != 2 else 1
            at(i - 2 * sp, lambda tile=tile, jj=jj, b=b: a.e(f"s_waitcnt vmcnt({vm[::-1].index((tile, jj))})\nv_max_u32 v{vT0}, v{b+16+2*jj}, v{b+17+2*jj}"))
            at(i - sp, lambda jj=jj, b=b: a.e(f"v_max3_u32 v{vT0}, v{vT0}, v{b+8*jj+3}, v{b+8*jj+7}"))
            def br(tile=tile, jj=jj):
                a.e(f"v_cmp_eq_u32 vcc, -1, v{vT0}\ns_cbranch_vccnz L_oslow{tile}{jj}{sfx}")
                a.label(f"L_ochk{tile}{jj}{sfx}")
                light(f"k{tile}" if jj == 0 else "t3" if tile == 3 else "-")
            at(i, br)
        if opt.w32: pass
        elif k < opt.ndef:
            for t in range(5): at(25 * (k + 1) + opt.wsl[t], wr(tile, t, " ; spaced"))
            at(25 * (k + 1) + opt.wsl[4], flag(tile))
        else:
            for t in range(3): at(25 * k + 16 + 3 * t, wr(tile, t, " ; spaced"))
            side.setdefault(25 * k + 24, [])[0:0] = [lambda: a.e("s_nop 3"), wr(tile, 3, " ; spaced"), lambda: a.e("s_nop 2"), wr(tile, 4), flag(tile)]
        if k == 0 or not first: gdone.append((tile, sfx))
    for x, (tl, jx) in opt.pp.items():
        i = 25 * order.index(tl) + jx
        if first and i < 25: i = opt.ppf
        assert i + 6 < 24 or i > 25
        if i > 25 and i - 6 < 24: side[24].insert(1, lambda x=x: a.lds(pub(x), f"p{x}{sfx}"))
        else: at(i - 6, lambda x=x: a.lds(pub(x), f"p{x}{sfx}"))
        at(i - 1, lambda x=x: fcheck(f"p{x}{sfx}", pub(x), vRdy, "0x0101"))
        for jj in range(2):
            keep = a.lines; a.lines = []; opoll(x, jj); ls = [l.replace(f's{sT1}', f's{sT2}') for l in a.lines]; a.lines = keep
            for c in range(3):
                def ld(x=x, jj=jj, part=ls[:2] if c == 0 else ls[c+1:c+2]): a.lines.extend(part); vm.append((x, jj))
                side.setdefault(min(i + 3 * jj + c, 25 * order.index(x) - 4), []).append(ld)
    if opt.pre3 is not None: at(75 + opt.pre3, lambda: (a.e(SETF(56)), a.lg.append("w")))
    for f in side.get(-1, ()): f()
    wq = []
    def w1(c):
        r, tile, t, i = wq.pop(0)
        a.lds(f"ds_write_b32 v{vPx}, v{vAC[tile][t]+i} offset:{5632*tile + 176*i + 32*t}{c}", "w")
        if t == 4 and i == 3: flag(tile)()
    for k, tile in enumerate(order):
        for j, (u, t) in enumerate(js if k < opt.ndef else jd):
            a.wait_lg(("fr", u, t))
            acc = vAC[tile][t]
            A, B = vr(ring[u,t],4), vr(vOB[tile]+4*u,4)
            if opt.w32: A, B = B, A
            a.e(f"v_mfma_f32_16x16x32_bf16 {vr(acc,4)}, {A}, {B}, {'0' if u == 0 else vr(acc,4)}")
            if first and j == 24: return
            for f in side.get(25 * k + j, ()): f()
            if opt.w32:
                n = 25 * k + j
                if k == 2 and j == 0: assert not any(x[1] == order[0] for x in wq)
                if u == 4: wq += [(max(n + 3, 24), tile, t, i) for i in range(4)]
                cap = opt.wcap[k] if n not in side else opt.wcs
                for q in range(cap):
                    if wq and wq[0][0] <= n: w1(" ; spaced")
    if opt.w32:
        while wq:
            if wq[0][0] > 99:
                d = vr(vAC[wq[0][1]][wq[0][2]], 4)
                p = max(i for i, l in enumerate(a.lines) if l.startswith(f"    v_mfma_f32_16x16x32_bf16 {d},"))
                st = sum(parse(l).get("nop", 1) for l in a.lines[p+1:] if parse(l))
                if st < 8: a.e(f"s_nop {7 - st}")
            w1(" ; spaced")
    a.e("s_waitcnt lgkmcnt(0)")
def worker(g):
    a.e(f"s_setprio {opt.pw[g]}")
    vm = []
    nred = [0]
    sOC, vCl = sKV, 182
    if opt.clean: a.e(f"s_mul_i32 s{sOC}, s{sTB}, 81920\ns_lshl_b32 s{sT0}, s{sHGO}, 4\ns_add_u32 s{sOC}, s{sOC}, s{sT0}\ns_mul_i32 s{sT0}, s{sJ}, 640\ns_add_u32 s{sOC}, s{sOC}, s{sT0}\ns_add_u32 s{sOC}, s{sOC}, {A_O}")
    def reduce(tile, last):
        padn(f"r{tile}")
        Q = ([118, 122, 126, 130, 134, 18, 22, 26, 30], list(range(38, 74, 4)))[nred[0] % 2]; nred[0] += 1
        a.e("s_mov_b32 exec_hi, 0xff")
        def prd():
            for h in range(2):
                for j in range(4):
                    ad, of = vRb if j > 1 else vRa, (j % 2) * 25600 + tile * 5632
                    a.e(f"ds_read_b128 {vr(Q[4*h+j],4)}, v{ad} offset:{of + h*2816}")
        rd = f"ds_read_b32 v{vRdy}, v{vF8} offset:{32+4*tile}"
        if last and opt.pre3 is not None:
            a.label(f"L_rv{tile}")
            a.e(f"ds_read_b32 v{vRdy}, v{vF8} offset:56\n{SPIN}\ns_waitcnt lgkmcnt(0)\nv_cmp_ne_u32 vcc, 0x01010101, v{vRdy}\ns_cbranch_vccnz L_rv{tile}")
            a.label(f"L_rw{tile}")
            a.e(rd); prd()
            a.e(f"{SPIN}\ns_waitcnt lgkmcnt(8)\nv_cmp_ne_u32 vcc, 0x01010101, v{vRdy}\ns_cbranch_vccnz L_rw{tile}")
        else:
            if opt.sp0:
                a.e(rd); prd()
                a.e(f"s_waitcnt lgkmcnt(8)\nv_cmp_ne_u32 vcc, 0x01010101, v{vRdy}\ns_cbranch_vccz L_rd{tile}")
            a.label(f"L_rw{tile}")
            a.e(f"{rd}\n{SPIN}\ns_waitcnt lgkmcnt(0)\nv_cmp_ne_u32 vcc, 0x01010101, v{vRdy}\ns_cbranch_vccnz L_rw{tile}")
            prd()
        a.label(f"L_rd{tile}")
        if last: light("t4")
        k = opt.order.index(tile)
        if k == opt.cl0:
            for t in opt.clean:
                a.e(f"s_add_u32 s{sT1}, s{sOC}, {t*20480}\nbuffer_load_dwordx4 {vr(vCl+4*t,4)}, v{vL16}, {sr(sWS,4)}, s{sT1} offen sc1")
        a.e(f"s_add_u32 s{sT1}, s{sOB}, {tile*20480}")
        for h in range(2):
            B = Q[4*h:4*h+4]
            a.e(f"s_waitcnt lgkmcnt({6-4*h})")
            for i in range(4): a.e(f"v_add_f32 v{B[0]+i}, v{B[0]+i}, v{B[1]+i}")
            a.e(f"s_waitcnt lgkmcnt({4-4*h})")
            for i in range(4): a.e(f"v_add_f32 v{B[2]+i}, v{B[2]+i}, v{B[3]+i}")
            for i in range(4): a.e(f"v_add_f32 v{B[0]+i}, v{B[0]+i}, v{B[2]+i}")
            for i in range(2): a.e(f"v_cvt_pk_bf16_f32 v{Q[8]+2*h+i}, v{B[0]+2*i}, v{B[0]+2*i+1}")
        if tile not in opt.noout: a.e(f"buffer_store_dwordx4 {vr(Q[8],4)}, v{vGo}, {sr(sOUT,4)}, s{sT1} offen{opt.outpol3 if last else opt.outpol}")
        if k == opt.cl0 and opt.clean: a.e("s_waitcnt vmcnt(1)")
        for t in opt.clean:
            if opt.clean[t] != k: continue
            c = vCl + 4 * t
            a.e(f"v_max3_u32 v{vT0}, v{c}, v{c+1}, v{c+2}\nv_max_u32 v{vT0}, v{vT0}, v{c+3}\ns_add_u32 s{sT1}, s{sOC}, {t*20480}\nv_cmp_ne_u32 vcc, -1, v{vT0}\ns_and_b64 exec, exec, vcc\ns_cbranch_execz L_cl{t}")
            a.e(f"buffer_store_dwordx4 {vr(c,4)}, v{vL16}, {sr(sWS,4)}, s{sT1} offen sc1")
            a.label(f"L_cl{t}")
            a.e("s_mov_b32 exec_lo, -1\ns_mov_b32 exec_hi, 0xff")
        a.e("s_mov_b32 exec_hi, -1")
        vm.append("st")
        a.lg = []
    for k, tile in enumerate(opt.order):
        if k in opt.wb:
            a.e(f"s_and_b32 s{sT0}, s2, {opt.wbm}\ns_or_b32 s{sT0}, s{sT0}, s{sJ}\ns_cbranch_scc1 L_wb{k}\nbuffer_wbl2 sc1")
            a.label(f"L_wb{k}")
        reduce(tile, tile == 3)
def wstubs(g):
    while gdone:
        tile, sfx = gdone.pop(0)
        for jj in range(2):
            a.label(f"L_oslow{tile}{jj}{sfx}")
            a.e(SPIN)
            opoll(tile, jj)
            if jj == 0:
                a.e("s_waitcnt vmcnt(3)")
                otest(tile, 1)
                a.e(f"s_cbranch_vccz L_ok{tile}{sfx}")
                opoll(tile, 1)
                a.label(f"L_ok{tile}{sfx}")
            a.e("s_waitcnt vmcnt(0)")
            otest(tile, jj)
            a.e(f"s_cbranch_vccnz L_oslow{tile}{jj}{sfx}\ns_branch L_ochk{tile}{jj}{sfx}")
    while fstubs:
        name, rd = fstubs.pop()
        a.label(f"L_fs{name}")
        a.e(f"{rd}\n{SPIN}\ns_waitcnt lgkmcnt(0)\ns_branch L_fc{name}")
worker(1)
a.label("L_fin")
stamp("out st")
light("t5")
a.e(f"s_or_b32 s{sT0}, s2, s{sW}\ns_cmp_eq_u32 s{sT0}, 0\ns_cbranch_scc0 L_noep")
a.e(f"s_mov_b64 exec, 1\nv_mov_b32 v{vT1}, s{sTAG}\nv_mov_b32 v{vT0}, {A_EP}\nbuffer_store_dword v{vT1}, v{vT0}, {sr(sWS,4)}, 0 offen sc1\ns_mov_b64 exec, -1")
a.label("L_noep")
if opt.debug:
    a.e("s_waitcnt vmcnt(0)")
    stamp("end")
    for nm, r in LIGHT.items():
        i = nstamp[0]; nstamp[0] += 1; STAMPS.append(nm)
        a.e(f"v_writelane_b32 v17, s98, {i}\nv_writelane_b32 v17, s{r}, {32+i}")
    a.e(f"s_lshl_b32 s{sT0}, s2, 3\ns_add_u32 s{sT0}, s{sT0}, s{sW}\ns_lshl_b32 s{sT0}, s{sT0}, 8\ns_add_u32 s{sT0}, s{sT0}, {A_DBG}")
    a.e(f"v_writelane_b32 v17, s{sSPIN}, 31\nv_lshlrev_b32 v{vT0}, 2, v{vLane}")
    a.e(f"buffer_store_dword v17, v{vT0}, {sr(sWS,4)}, s{sT0} offen")
    if opt.dbgout:
        assert nstamp[0] <= 15
        srd(sX, 16, 256)
        a.e(f"v_subrev_u32 v{vT1}, s94, v17\nv_cmp_eq_u32 vcc, 0, v17\nv_cndmask_b32 v{vT1}, v{vT1}, v17, vcc\ns_not_b32 s{sT0}, s94\ns_and_b32 s{sT0}, s{sT0}, 0xffffff\ns_and_b32 s98, s98, 0xffffff\nv_writelane_b32 v{vT1}, s{sT0}, 0\nv_writelane_b32 v{vT1}, s98, 15")
        a.e(f"s_mov_b64 exec, 0xffff\nbuffer_atomic_umax v{vT1}, v{vT0}, {sr(sX,4)}, 0 offen")
if opt.pad:
    if opt.pad == "end": a.e("s_waitcnt vmcnt(0)\ns_memrealtime s[92:93]")
    a.label("L_pad")
    a.e("s_memrealtime s[90:91]\ns_waitcnt lgkmcnt(0)\ns_sub_u32 s90, s90, s92\ns_cmp_lt_u32 s90, 6000\ns_cbranch_scc1 L_pad")
a.label("L_end")
a.e("s_endpgm")
a.raw(";PAD L_t2")
a.label("L_t3w")
a.e(SPIN)
l2reads(); preads()
a.e("s_branch L_t3")
a.label("L_t2w")
a.e(SPIN)
preads()
a.label("L_t2")
a.e(f"s_waitcnt lgkmcnt(0)\nv_cmp_ne_u32 vcc, 1, v{vRdy}\ns_cbranch_vccnz L_t2w\ns_nop 4")
add11(vSum, vRc[0])
wr3(vX1, 3072, vSum)
a.e(SETF(48))
light("t1")
a.e("s_branch L_role")
a.raw(";PAD L_other")
a.label("L_other")
a.e(f"s_cmp_eq_u32 s{sTT}, 2\ns_cbranch_scc1 L_t2")
if opt.okc == 2: okc("")
a.e(f"s_cmp_eq_u32 s{sTT}, 0\ns_cbranch_scc1 L_t0")
wstart(opt.p0f)
if opt.g0e:
    a.e(f"s_setprio {opt.pg0}")
    project(True)
    a.e(f"s_setprio {opt.prd}")
    light("g9")
else: vRc[0] = vKr
lreads()
if opt.l2p == 0: l2reads()
a.label("L_lrd")
a.e(f"s_waitcnt lgkmcnt({0 if opt.l2p else 4})\nv_cmp_ne_u32 vcc, 0x01010101, v{vRdy}\ns_cbranch_vccnz L_lslow")
if opt.l2p == 1: l2reads()
add11(vRc[0], vRc[1])
if opt.l2p == 2: l2reads()
add11(vSum, vRc[0])
if opt.l2p == 3: l2reads()
a.label("L_l2")
a.e(f"s_waitcnt lgkmcnt(0)\nv_cmp_ne_u32 vcc, 1, v{vRdy+1}\ns_cbranch_vccnz L_l2w")
light("t1")
add11(vSum, vRc[2])
normalize(vSum, vRc[0], "L_fallback")
finish(vSum, vPkd, "m")
a.e(SETF(24))
light("t2")
a.e(f"s_setprio {opt.pw[0]}\ns_branch {'L_work2' if opt.g0e else 'L_work'}")
a.label("L_lslow")
a.e(SPIN)
a.e(f"ds_read_b32 v{vRdy}, v{vFb}\ns_waitcnt lgkmcnt(0)\nv_cmp_ne_u32 vcc, 0x01010101, v{vRdy}\ns_cbranch_vccnz L_lslow")
lreads()
if opt.l2p == 0: l2reads()
a.e("s_branch L_lrd")
a.label("L_l2w")
a.e(SPIN)
l2reads()
a.e("s_branch L_l2")
a.raw(";PAD L_t0")
a.label("L_t0")
a.e("s_nop 5")
wr3(vX1, 3072, vSum)
a.e(SETF(48))
light("t1")
a.e(f"s_cmp_eq_u32 s{sDEF}, 0\ns_cbranch_scc0 L_dfb")
wstart()
a.label("L_work")
a.e(f"s_setprio {opt.pw[0]}")
project(False)
a.e("s_branch L_fin")
wstubs(0)
a.label("L_dfb")
a.e(f"s_mov_b32 s{sDEF}, 0\ns_mov_b32 s{sO0}, s{sE0}\ns_mov_b32 s{sO1}, s{sE1}\nv_mov_b32 v{vFa}, v{vFe}")
for i in range(4): a.e(f"v_mov_b32 v{vQ[3]+i}, v{vQ[1]+i}")
for i in range(2): a.e(f"v_mov_b32 v{vQH[1]+i}, v{vQH[0]+i}")
a.e("s_branch L_fallback")
a.label("L_eslow")
a.e(SPIN)
a.e(f"ds_read_b32 v{vT0}, v{vFb} offset:8\ns_waitcnt lgkmcnt(0)\nv_cmp_ne_u32 vcc, 0x01010101, v{vT0}\ns_cbranch_vccnz L_eslow")
ereads()
a.e("s_branch L_erd")
if opt.okc < 3:
    a.label("L_okslow")
    a.e(SPIN)
    a.e(f"ds_read_b64 {vr(vT0,2)}, v{vF8} offset:16\ns_branch L_okc")
else:
    for k in range(3):
        a.label(f"L_wr{k}")
        a.e(f"{SPIN}\ns_waitcnt lgkmcnt(0)\ns_branch L_ws{k}")
for c in slow_stubs:
    a.label(f"L_slow{c}")
    a.e(f"s_add_u32 s{sSPIN}, s{sSPIN}, 1\ns_cmp_lt_u32 s{sSPIN}, 1000000\ns_cbranch_scc0 L_end")
    a.e(f"s_mov_b64 exec, {sr(sMSK,2)}\n{FLOAD}\ns_mov_b64 exec, -1\ns_waitcnt vmcnt(0)")
    flag_cmp()
    a.e(f"s_nop 0\ns_and_b32 s{sT0}, s{sMSK + c//4}, 0x{0xff << (8*(c%4)):x}\ns_cbranch_scc1 L_slow{c}\ns_branch L_back{c}")
for T, tag in ostubs:
    a.label(f"L_osc{tag}")
    ostore(T, " sc1", tag)
    a.e(f"s_branch L_osd{tag}")
a.label("L_defer")
a.e(f"s_mov_b32 s{sDEF}, 1\ns_branch L_deferred")
a.label("L_slowf0")
a.e(f"s_add_u32 s{sSPIN}, s{sSPIN}, 1\ns_cmp_lt_u32 s{sSPIN}, 1000000\ns_cbranch_scc0 L_end")
a.e(f"{F0}\ns_waitcnt vmcnt(0)\ns_branch L_f0")
a.label("L_slowf2")
a.e(f"s_add_u32 s{sSPIN}, s{sSPIN}, 1\ns_cmp_lt_u32 s{sSPIN}, 1000000\ns_cbranch_scc0 L_end")
a.e(f"buffer_load_dword v{vT1}, v{vT0}, {sr(sWS,4)}, s{sF2} offen sc1\ns_waitcnt vmcnt(0)\ns_branch L_f2")
a.label("L_fallback")
fS = 70; fM = vR1 + 20; fK = vKr; fV = vVr
def f_scores():
    a.e(f"buffer_load_dwordx4 {vr(fK,4)}, v{vL16}, {sr(sWS,4)}, s{sT0} offen sc1")
    a.e(f"buffer_load_dwordx2 {vr(fK+4,2)}, v{vK1a}, {sr(sWS,4)}, s{sT0} offen offset:1024 sc1")
    a.e(f"buffer_load_dwordx4 {vr(fV,4)}, v{vVa}, {sr(sWS,4)}, s{sT0} offen offset:1536 sc1")
    a.e(f"buffer_load_dwordx4 {vr(fV+4,4)}, v{vVa}, {sr(sWS,4)}, s{sT0} offen offset:2304 sc1")
    a.e("s_waitcnt vmcnt(0)\ns_mov_b32 exec_lo, 0x00440000\ns_mov_b32 exec_hi, 0x00440000")
    for i in range(8): a.e(f"v_mov_b32 v{fV+i}, 0x3f803f80")
    a.e("s_mov_b64 exec, -1")
    a.e(f"v_mfma_f32_32x32x4_2b_bf16 {vr(fS,32)}, {vr(fK+4,2)}, {vr(vQH[1],2)}, 0 cbsz:1\ns_nop 15\ns_nop 1")
    a.e(f"v_mfma_f32_32x32x16_bf16 {vr(fS+16,16)}, {vr(fK,4)}, {vr(vQ[3],4)}, {vr(fS+16,16)}\ns_nop 11")
a.e(f"v_mov_b32 v{fM}, 0xff800000\ns_mov_b32 s{sT0}, 0")
a.label("L_fb1")
f_scores()
for i in range(0, 16, 2): a.e(f"v_max3_f32 v{fM}, v{fM}, v{fS+16+i}, v{fS+17+i}")
a.e(f"s_add_u32 s{sT0}, s{sT0}, 4096\ns_cmp_lt_u32 s{sT0}, 262144\ns_cbranch_scc1 L_fb1")
a.e(f"v_mov_b32 v{fM+1}, v{fM}\ns_nop 1\nv_permlane32_swap_b32 v{fM}, v{fM+1}\ns_nop 1\nv_max_f32 v{fM}, v{fM}, v{fM+1}")
for i in range(16): a.e(f"v_mov_b32 v{vSum+i}, 0")
a.e(f"v_mov_b32 v{vIx}, 0xdddddddd\ns_mov_b32 s{sT0}, 0")
a.label("L_fb2")
f_scores()
for i in range(16): a.e(f"v_sub_f32 v{fS+16+i}, v{fS+16+i}, v{fM}")
for i in range(16): a.e(f"v_exp_f32 v{fS+16+i}, v{fS+16+i}")
a.e("s_nop 1")
for g in range(2):
    a.e(f"v_smfmac_f32_32x32x32_bf16 {vr(vSum,16)}, {vr(fV+4*g,4)}, {vr(fS+16+8*g,8)}, v{vIx}")
a.e(f"s_add_u32 s{sT0}, s{sT0}, 4096\ns_cmp_lt_u32 s{sT0}, 262144\ns_cbranch_scc1 L_fb2")
a.e("s_nop 15")
with only_par(0, sU): wstart()
scale(vSum, vPkd)
for i in range(5): a.e(f"v_min_u32 v{vPkd+i}, -2, v{vPkd+i}")
a.label("L_last")
a.e("s_branch L_ostl")
a.raw(open("footer.txt").read())
txt = a.text()
def addresses(lines):
    import subprocess, re
    open("_g5.s", "w").write("\n".join(lines))
    r = subprocess.run(["clang", "-x", "assembler", "-target", "amdgcn-amd-amdhsa", "-mcpu=gfx950", "-c", "_g5.s", "-o", "_g5.o"], capture_output=True, text=True)
    assert r.returncode == 0, r.stderr[:2000]
    d = subprocess.run(["llvm-objdump", "-d", "--mcpu=gfx950", "_g5.o"], capture_output=True, text=True).stdout
    d = d[d.index("_kernel>:"):]
    ad = [int(m.group(1), 16) for m in re.finditer(r"// ([0-9A-F]{12}):", d)]
    k0 = next(i for i, l in enumerate(lines) if l.endswith("_kernel:"))
    idx = [i for i in range(k0, len(lines)) if lines[i].startswith("    ") and parse(lines[i])]
    assert len(idx) == len(ad), (len(idx), len(ad))
    return dict(zip(idx, ad))
if HOPRET:
    lines = txt.split("\n")
    for t, site in HOPRET.items():
        if t.startswith("L_"):
            i = lines.index(t + ":")
            k = i - 1
            while not parse(lines[k]): k -= 1
            assert parse(lines[k])["op"] in ("s_branch", "s_endpgm") and k == i - 1, (t, lines[k])
            lines[i:i] = [f"H_{t}:", f"    s_branch R_{site}"]
    pg = sorted(t for t in HOPRET if t.startswith("P"))
    end = lines.index("L_last:")
    for n, t in enumerate(pg):
        ad = addresses(lines[:end] + [f"H_{x}:" for x in pg[n:]] + lines[end:])
        full = True
        for i in sorted(ad):
            if i >= end: raise SystemExit("no spot for " + t)
            l = lines[i].strip()
            if ad[i] >= int(t[1:]) * 4096 and full: break
            if " exec" in l.split(",")[0]: full = l.endswith(", -1")
        print(t, hex(ad[i]), l, file=sys.stderr)
        lines[i:i] = [f"H_{t}:", f"    s_cbranch_execz R_{HOPRET[t]}"]; end += 2
    txt = "\n".join(lines)
def symbols(txt):
    import subprocess
    open("_g9.s", "w").write(txt)
    r = subprocess.run(["clang", "-x", "assembler", "-target", "amdgcn-amd-amdhsa", "-mcpu=gfx950", "-c", "_g9.s", "-o", "_g9.o"], capture_output=True, text=True)
    assert r.returncode == 0, r.stderr[:2000]
    d = subprocess.run(["llvm-objdump", "-t", "_g9.o"], capture_output=True, text=True).stdout
    return {l.split()[-1]: int(l.split()[0], 16) for l in d.split("\n") if " .text" in l}
for lab in re.findall(r"^;PAD (\w+)$", txt, re.M):
    n = (opt.al[lab] - symbols(txt)[lab]) % 64 // 4 if lab in opt.al else 0
    txt = txt.replace(f";PAD {lab}\n", "    s_endpgm\n" * n)
if opt.al is not None:
    sy = symbols(txt); print(sys.argv[1], {k: sy[k] % 64 for k in ("L_bq", "L_t3", "L_role", "L_t2", "L_other", "L_t0", "L_work")}, file=sys.stderr)
TL = txt.split("\n")
for p in check(txt):
    if not TL[int(p.split(":")[0][5:]) - 1].endswith("; spaced"): print("HAZARD", p, file=sys.stderr)
open(sys.argv[1], "w").write(txt)
if opt.debug: open(sys.argv[1] + ".stamps", "w").write("\n".join(STAMPS))
```

```python
import re

class Asm:
    def __init__(self):
        self.lines = []
        self.vm = []
        self.lg = []
    def e(self, s):
        for l in s.strip("\n").split("\n"):
            self.lines.append("    " + l.strip())
    def c(self, s):
        self.lines.append("    ; " + s)
    def label(self, name):
        self.lines.append(name + ":")
    def raw(self, s):
        self.lines.append(s)
    def vload(self, s, tag):
        self.e(s); self.vm.append(tag)
    def wait_vm(self, tag):
        idx = max(i for i, t in enumerate(self.vm) if t == tag)
        n = len(self.vm) - 1 - idx
        assert n <= 63
        self.e(f"s_waitcnt vmcnt({n})")
        self.vm = self.vm[idx + 1:]
    def wait_vm_if(self, tag):
        if tag in self.vm: self.wait_vm(tag)
    def wait_vm0(self):
        self.e("s_waitcnt vmcnt(0)"); self.vm = []
    def lds(self, s, tag):
        self.e(s); self.lg.append(tag)
    def wait_lg(self, tag):
        if tag not in self.lg: return
        idx = max(i for i, t in enumerate(self.lg) if t == tag)
        n = len(self.lg) - 1 - idx
        n = min(n, 15)
        self.e(f"s_waitcnt lgkmcnt({n})")
        self.lg = self.lg[len(self.lg) - n:] if n else []
    def wait_lg0(self):
        self.e("s_waitcnt lgkmcnt(0)"); self.lg = []
    def text(self):
        return "\n".join(self.lines) + "\n"

def vr(base, n=1):
    return f"v{base}" if n == 1 else f"v[{base}:{base+n-1}]"
def sr(base, n=1):
    return f"s{base}" if n == 1 else f"s[{base}:{base+n-1}]"

_REG = re.compile(r"^(-?\|?)(?:abs\()?([vsa])(?:(\d+)|\[(\d+):(\d+)\])\)?\|?$")
def regs(tok):
    tok = tok.strip()
    if tok in ("vcc", "vcc_lo", "vcc_hi"): return {("s", 106), ("s", 107)}
    if tok in ("exec", "exec_lo", "exec_hi"): return {("s", 126), ("s", 127)}
    if tok == "m0": return {("s", 124)}
    m = _REG.match(tok)
    if not m: return set()
    f = m.group(2)
    if m.group(3) is not None: lo = hi = int(m.group(3))
    else: lo, hi = int(m.group(4)), int(m.group(5))
    return {(f, i) for i in range(lo, hi + 1)}

TRANS = ("v_exp_", "v_log_", "v_rcp_", "v_rsq_", "v_sqrt_", "v_sin_", "v_cos_")
def passes(op):
    if "32x32x4_2b" in op: return 16
    if "32x32" in op: return 8
    if "16x16" in op: return 4
    raise ValueError(op)

def parse(line):
    line = line.split(";")[0].strip()
    if not line or line.endswith(":") or line.startswith("."): return None
    parts = line.split(None, 1)
    op = parts[0]
    ops = []
    if len(parts) > 1:
        ops = [x.strip() for x in parts[1].split(",")]
        last = ops[-1].split()
        if last: ops[-1] = last[0]
    d = dict(op=op, w=set(), r=set(), kind="other", text=line, srcc=set(), ab=set(), data=set())
    R = [regs(x) for x in ops]
    if op.startswith("v_mfma"):
        d["kind"] = "mfma"; d["w"] = R[0]; d["ab"] = R[1] | R[2]; d["srcc"] = R[3]; d["r"] = R[1] | R[2] | R[3]; d["p"] = passes(op)
    elif op.startswith("v_smfmac"):
        d["kind"] = "mfma"; d["w"] = R[0]; d["ab"] = R[1] | R[2] | R[3]; d["srcc"] = R[0]; d["r"] = R[0] | R[1] | R[2] | R[3]; d["p"] = passes(op)
    elif op.startswith("v_"):
        d["kind"] = "valu"
        if op.startswith("v_cmp"):
            d["w"] = R[0]; d["r"] = set().union(*R[1:])
        elif op.startswith("v_permlane32_swap") or op.startswith("v_permlane16_swap"):
            d["w"] = R[0] | R[1]; d["r"] = R[0] | R[1]
        elif op.startswith("v_add_co") or op.startswith("v_addc_co"):
            d["w"] = R[0] | R[1]; d["r"] = set().union(*R[2:])
        else:
            d["w"] = R[0]; d["r"] = set().union(*R[1:]) if len(R) > 1 else set()
            if op.startswith("v_fmac") : d["r"] |= R[0]
    elif op.startswith("buffer_") or op.startswith("global_"):
        d["kind"] = "vmem"
        lds = " lds" in line
        if "load" in op and not lds:
            d["w"] = R[0]; d["r"] = set().union(*R[1:])
        else:
            d["r"] = set().union(*R)
            if "store" in op: d["data"] = R[0] if op.startswith("buffer_") else R[1]
            if lds: d["r"] |= {("s", 124)}; d["ldsdma"] = True
    elif op.startswith("ds_"):
        d["kind"] = "ds"
        if "read" in op: d["w"] = R[0]; d["r"] = set().union(*R[1:])
        else: d["r"] = set().union(*R)
    elif op.startswith("s_"):
        d["kind"] = "salu"
        if op in ("s_nop",): d["nop"] = int(ops[0], 0) + 1
        elif op.startswith(("s_cmp", "s_cbranch", "s_branch", "s_waitcnt", "s_barrier", "s_setprio", "s_endpgm", "s_sleep", "s_bitcmp")):
            d["r"] = set().union(*R) if R else set()
        else:
            d["w"] = R[0] if R else set(); d["r"] = set().union(*R[1:]) if len(R) > 1 else set()
    return d

def check(text, window=24, tr2=False):
    ins = []
    for ln, l in enumerate(text.split("\n"), 1):
        p = parse(l)
        if p: p["ln"] = ln; ins.append(p)
    probs = []
    for i, c in enumerate(ins):
        dist = 0; dist2 = 0
        for j in range(i - 1, max(-1, i - window - 1), -1):
            p = ins[j]
            if p["op"] in ("s_branch", "s_endpgm", "s_setpc_b64"): break
            need = 0
            vw = {x for x in p["w"] if x[0] in "va"}
            sw = {x for x in p["w"] if x[0] == "s"}
            if p["kind"] == "mfma":
                P = p["p"]
                t_ab = {4: 8, 8: 12, 16: 20}[P]; t_c = {4: 6, 8: 10, 16: 18}[P]
                if c["kind"] == "mfma":
                    if c["ab"] & vw: need = max(need, t_ab)
                    if c["srcc"] & vw and not (c["srcc"] == vw and c["p"] == P): need = max(need, t_c)
                    if c["w"] & vw and not (c["srcc"] & vw) : need = max(need, t_c)
                elif c["kind"] in ("valu", "vmem", "ds"):
                    if (c["r"] | c["w"]) & vw: need = max(need, t_ab)
                    if c["kind"] == "valu" and c["w"] & p["srcc"]: need = max(need, {4: 3, 8: 7, 16: 15}[P])
            if p["kind"] == "valu":
                if c["kind"] == "mfma" and c["r"] & vw: need = max(need, 2)
                if p["op"].startswith(TRANS) and c["kind"] in ("valu",) and not c["op"].startswith(TRANS) and c["r"] & vw: need = max(need, 1)
                if p["op"].startswith(TRANS) and c["kind"] in ("vmem", "ds") and c["r"] & vw: need = max(need, 1)
                if c["op"].startswith("v_permlane") and c["r"] & vw: need = max(need, 2)
                if c["op"].startswith(("v_readfirstlane", "v_readlane")) and c["r"] & vw: need = max(need, 1)
                if c["kind"] == "vmem" and c["r"] & sw: need = max(need, 5)
                if c["kind"] == "valu" and c["r"] & sw: need = max(need, 2)
                if "dpp" in c["text"] and c["r"] & vw: need = max(need, 2)
            if p["kind"] == "salu" and ("s", 124) in p["w"] and c.get("ldsdma"): need = max(need, 1)
            if p["kind"] == "vmem" and len(p["data"]) > 2 and c["w"] & p["data"]: need = max(need, 2)
            if need > dist + (dist2 if p['kind'] == 'mfma' else 0):
                probs.append(f"line {c['ln']}: '{c['text']}' needs {need} states after line {p['ln']} '{p['text']}', has {dist}")
            dist += p.get("nop", 1)
            if tr2 and p["op"].startswith("v_exp_f32"): dist2 += 1
    return probs
```

```python
import sys, math, struct
from asmlib import *

class Opt:
    debug = False
    prio = {0: 3, 20: 2}
    prioE = {2824: 1}
    wsl = (2, 6, 10, 14, 18)
    order = (0, 2, 1, 3)
    pg0 = 0
    prd = 1
    l2p = 0
    pre3 = None
    sp0 = False
    g0e = False
    lpos = 3
    ndef = 1
    prioL = {2912: 1}
    flip = 0
    dual = 1
    pp = {2: (0, 9), 1: (2, 3), 3: (1, 10)}
    prog = ('G0 G2 G1 G3', 'R0 R2 R1 R3')
    pw = (0, 0)
    p0 = 4
    p0f = 4
    ppf = 17
    nf1 = 25
    prr = 0
    spec = ()
    npf = 8
    pdrop = 1
    force_fallback = False
    fast = True
    touch = 'ouw'
    wo0 = 4
    only = None
    dbgout = False
    pad = None
    syncs = (1, 3, 5, 7, 9, 11, 13, 15, 17, 19)
    lead = 4
    fl_at = 15
    bk = 15
    pub_at = 1
    drain = 20
    ahead = 7
    hrot = 2
    w64 = True
    dskip = 5
    kv_at = {17: (0,), 19: (1,), 20: (2,)}
    kv_a = {21: (0, 1, 2)}
    skv = 2
    head = "kKp12w3ssss"
    upers = 2
    bprio = 2
    epoll = 2
    pge = 0
    dmode = ""
    align = 8
    dry = False
    xfirst = True
    poll_at = 36
    otouch = ' sc1'
    smart = True
    pstep_e = 0
    oa_e = 8
    pstep = 0
    oa_at = 13
    npre_e = 10
    prl = 1
    pre = 3
    outpol = ""
    opol = {"e": "", "l": "", "m": ""}
    epar = 0
    cpf = True
    pk = False
    chk1 = True
    clr_at = 10
    phase = None
    hops = {}
    tn = 5
    dly = 0
    k1 = True
    wo64 = 0
    wok = 1
    wopol = ""
    nowo = False
    wpf = None
    hold = 99
    noout = ()
    outpol3 = ""
    wb = ()
    wbm = 0xf8
    clean = {}
    cl0 = 0
    w32 = False
    wcap = (1, 2, 2, 2)
    wcs = 1
    al = {}
    nops = {}
    okc = 3
    nof0 = False
    pos = (2, 5, 14, 18, 22, 26, 30)
    dg = ''
    kvpol = ' sc1'
    wt = ()
    vmask = None
    rev = False
    prioA = {}
    cd = 0
    od = 0
    otd = 7
    clrpol = ' sc1'
    f2pol = ' sc1'
    clr4 = True
    trk = True
    lock = None
    one = False
    k1c = True
    posn = {}
    xsn = {29: (3, 3, 3, 9), 30: (3, 3, 4, 12)}
    nr = 3
    nl = 3
    cu = (12, 13)
    w31 = 27
    erd = -8
    tr2 = True
    xs = (8, 12, 16, 24)
    npre = 40
opt = Opt()
for x in sys.argv[2:]:
    k, v = x.split("=", 1)
    setattr(opt, k, eval(v))

A_KV = 0
A_F1 = 262144
A_EP = A_F1 + 65536
A_F2 = 524288
A_O = 1 << 20
A_DBG = 4 << 20
WS_BYTES = 8 << 20
OOB = 0x40000000
L_W = 0
P_R = [81920, 102400, 122880, 0, 20480]
P_KVW = 122880
L_S = 102400
L_Q2 = 143360
L_FLG = 153600
L_F01 = 153632
L_FL = 153888
LDS_BYTES = 163840
sX, sWQ, sWKV, sWO, sOUT, sWS = 20, 24, 28, 32, 36, 40
sW, sTT, sKH, sHG, sTB, sT, sTK, sTAG, sXCD, sR = 44, 45, 46, 47, 48, 49, 50, 51, 52, 53
sT0, sT1, sT2, sT3 = 54, 55, 56, 57
sKV = 58
sXCC = 59
sO0, sO1 = 60, 61
sHGO = 62
sM0B = 63
sSPIN = 64
sOB = 65
sWQB = 66
sRG = 67
sMSK = 72
sC0 = 74
sF2 = 76
sJH, sJE, sCA, sCX = 77, 78, 79, 80
sJ, sU, sPAR, sISS, sDEF = 81, 82, 83, 84, 85
sPJ = 86
sOJ = 67
sCC = 3
sWP = 92
sWM = 74
sPE, sE0, sE1 = 69, 70, 71
L_X = 154112
vLane, vL16, vK1a, vVa, vFa, vWoA, vWoB, vTr, vA0, vA1, vE0, vL0, vFlag, vT0, vT1, vL8 = range(1, 17)
vQ = [18, 22, 26, 30]; vQH = [34, 36]
vS = [38, 70]
vP = 102
vO = 118
vKr = 182
vVr = 200
vR1 = 224
vXf = 38; vAcc = 118; vFr = 138
vW40, vXp = 224, 225
vXa = 226
vQa = 231
vCx, vCw = 237, 238
vCx2, vXp1 = 247, 248
vSt = 240
vT2, vT3 = 241, 242
vTq0, vTq1, vM2w, vM2h = 243, 244, 245, 246
vX1, vFe = 255, 248
vL1, vFp = 249, 252
vPw, vPx = 254, 254
vRa, vRb, vRs, vGo = 250, 251, 252, 253

a = Asm()
nstamp = [0]
STAMPS = []
def stamp(name):
    if opt.pad == name: a.e("s_memrealtime s[92:93]")
    if not opt.debug: return
    if opt.only is not None and name not in opt.only and not (name.startswith("A:") and "A" in opt.only): return
    i = nstamp[0]; nstamp[0] += 1
    a.c(f"stamp {i}: {name}")
    a.e("s_memrealtime s[98:99]\ns_memtime s[100:101]")
    a.wait_lg0()
    a.e(f"v_writelane_b32 v17, s98, {i}\nv_writelane_b32 v17, s100, {32+i}")
    STAMPS.append(name)
def stamp_at(i):
    if not opt.debug: return
    if opt.only is not None and "A" not in opt.only: return
    a.e("s_memrealtime s[98:99]\ns_memtime s[100:101]")
    a.wait_lg0()
    a.e(f"v_writelane_b32 v17, s98, {i}\nv_writelane_b32 v17, s100, {32+i}")
import re
LIGHT = dict(zip([x for x in (opt.only or ()) if re.match(r"^([cdhtkrgq]\d+|cA)$", x)], [0, 4, 6, 8, 10, 16, 12, 14, 18, 20, 22, 24, 26, 28, 30])) if opt.debug else {}
def light(name):
    if not opt.debug or opt.only is None or name not in opt.only: return
    assert name in LIGHT
    a.e(f"s_mem{'real' if name[0] == 'r' else ''}time {sr(LIGHT[name],2)}")
def srd(base, lo, nbytes):
    a.e(f"s_mov_b32 s{base}, s{lo}\ns_mov_b32 s{base+1}, s{lo+1}\ns_mov_b32 s{base+2}, {nbytes}\ns_mov_b32 s{base+3}, 0x00020000")
def trd(f, i, t, tag):
    off = i * 5120 + 32 * t
    base = vTr
    for q in range(2):
        a.lds(f"ds_read_b64_tr_b16 {vr(f+2*q,2)}, v{base} offset:{off+q*2560}", tag)
slow_stubs = []
HOPRET = {}
def hop(site):
    tg = opt.hops.get(site)
    if not tg: return
    a.e("s_mov_b64 exec, 0")
    for j, t in enumerate(tg):
        if t is None: continue
        assert t not in HOPRET
        HOPRET[t] = site
        a.e(f"s_cmp_eq_u32 s{sJ}, {j}\ns_cbranch_scc1 H_{t}")
    a.label(f"R_{site}")
    a.e("s_mov_b64 exec, -1")

a.raw(open("header.txt").read().replace("@LDS@", str(LDS_BYTES)).replace(".p2align 8", f".p2align 12\n.fill {opt.phase//4}, 4, 0xbf810000" if opt.phase is not None else f".p2align {opt.align}"))
a.e("s_cmp_ge_u32 s2, 256\ns_cbranch_scc1 L_end")
a.e("s_load_dwordx16 s[4:19], s[0:1], 0")
if opt.pad == "start": a.e("s_memrealtime s[92:93]")
if opt.debug:
    a.e("v_mov_b32 v17, 0\ns_memrealtime s[94:95]\ns_memtime s[96:97]"); nstamp[0] = 2; STAMPS.append("start"); STAMPS.append("karg")
def xtile(j):
    if j: a.e(f"s_add_u32 s{sT3}, s{sTK}, {j}\ns_and_b32 s{sT3}, s{sT3}, 3\ns_mul_i32 s{sT1}, s{sT3}, 20480\ns_add_u32 s{sT0}, s{sT1}, s{sJH}\ns_add_u32 s{sT1}, s{sT1}, s{sJE}")
    for i in range(5):
        a.e(f"s_add_u32 m0, s{sT1}, {1920*i}\ns_nop 0")
        a.vload(f"buffer_load_dwordx4 v{vXp}, {sr(sX,4)}, s{sT0} offen offset:{128*i} lds", ("x",))
def skv(role):
    if role == "B" or opt.skv == 1: a.e(f"""s_bitcmp1_b32 s{sHG}, 0
s_cselect_b32 s{sWKV}, s10, s8
s_cselect_b32 s{sWKV+1}, s11, s9""")
    if opt.skv == 2 and role == "B":
        a.e(f"s_mov_b64 exec, 15\nbuffer_load_dword v{vT2}, v{vT3}, {sr(sWKV,4)}, s{sCC} offen\ns_mov_b64 exec, -1")
    if opt.skv == 1:
        a.e(f"s_add_u32 s{sMSK}, s{sWKV}, s{sCC}\ns_addc_u32 s{sMSK+1}, s{sWKV+1}, 0")
        for o in (0, 64, 128, 196): a.e(f"s_load_dword s{sISS}, {sr(sMSK,2)}, {o}")
    if "q" in opt.touch and role == "B": a.e(f"s_load_dword s{sISS}, s[6:7], s{sRG}")
    a.e(f"s_load_dword s{sTAG}, s[18:19], {A_EP}")
    if opt.debug: a.e("v_writelane_b32 v17, s94, 0\nv_writelane_b32 v17, s96, 32")
def tagwait():
    a.e(f"s_waitcnt lgkmcnt(0)\ns_mul_i32 s{sTAG}, s{sTAG}, 1664525\ns_add_u32 s{sTAG}, s{sTAG}, 1013904223")
    if opt.debug: a.e("v_writelane_b32 v17, s90, 1\nv_writelane_b32 v17, s92, 33")
def su0():
    srd(sWS, 18, WS_BYTES); srd(sWO, 12, 819200); srd(sOUT, 14, 2621440)
    a.e(f"""s_lshr_b32 s{sU}, s{sW}, 2
s_lshr_b32 s{sTT}, s{sW}, 1
{f"s_xor_b32 s{sTT}, s{sTT}, s{sU}" if opt.flip else "s_nop 0"}
s_and_b32 s{sPAR}, s{sTT}, 1
{f's_xor_b32 s{sPE}, s{sPAR}, s{sU}' if opt.dual else f's_mov_b32 s{sPE}, s{sPAR}'}
s_and_b32 s{sKH}, s{sW}, 1
s_mov_b32 s{sDEF}, 0
s_lshl_b32 s{sT}, s{sTB}, 2
s_add_u32 s{sT}, s{sT}, s{sTT}
{"" if opt.wo64 else f"s_mul_i32 s{sM0B}, s{sW}, 640"}
s_getreg_b32 s{sXCC}, hwreg(HW_REG_XCC_ID, 0, 3)
s_mov_b32 s{sSPIN}, 0""")
def su1():
    a.e(f"""s_mul_i32 s{sOB}, s{sT}, 20480
s_add_u32 s{sOB}, s{sOB}, {A_O}
s_lshl_b32 s{sT2}, s{sHGO}, 4
s_add_u32 s{sT2}, s{sT2}, s{sOB}
s_lshl_b32 s{sT3}, s{sKH}, 10
s_add_u32 s{sO0}, s{sT2}, s{sT3}
s_lshl_b32 s{sT3}, s{sKH}, 2
s_add_u32 s{sO1}, s{sT2}, s{sT3}
s_add_u32 s{sO1}, s{sO1}, 2048
s_lshl_b32 s{sF2}, s{sT}, 4
s_lshl_b32 s{sT0}, s{sHG}, 1
s_add_u32 s{sT0}, s{sT0}, s{sKH}
s_add_u32 s{sF2}, s{sF2}, s{sT0}
s_lshl_b32 s{sF2}, s{sF2}, 7
s_add_u32 s{sF2}, s{sF2}, {A_F2}
s_mul_i32 s{sT1}, s{sJ}, 25600
v_mul_u32_u24 v{vTq0}, 40, v{vLane}
v_and_b32 v{vT0}, 3, v{vLane}
v_lshlrev_b32 v{vT0}, 5, v{vT0}
v_sub_u32 v{vTr}, v{vTq0}, v{vT0}
v_add_u32 v{vTr}, s{sT1}, v{vTr}""")
def su2():
    if not opt.wo64: return su2o()
    X, Y = vWoA, vWoB
    a.e(f"""s_min_u32 s{sM0B}, s{sW}, 4
s_lshl_b32 s{sM0B}, s{sM0B}, 10
s_mul_i32 s{sT0}, s{sJ}, 5
s_lshl_b32 s{sWM}, 31, s{sT0}
s_cmp_eq_u32 s{sU}, 0
s_cselect_b32 s{sWM}, -1, s{sWM}
v_add_u32 v{vT1}, s{sM0B}, v{vL16}
v_mul_u32_u24 v{vT0}, 6554, v{vT1}
v_lshrrev_b32 v{vT0}, 20, v{vT0}
s_movk_i32 s{sT0}, -160
v_mad_i32_i24 v{vT1}, v{vT0}, s{sT0}, v{vT1}
v_and_b32 v{X}, 4, v{vT0}
v_mul_u32_u24 v{X}, 5, v{X}
v_and_b32 v{Y}, 3, v{vT0}
v_add_u32 v{X}, v{X}, v{Y}
v_and_b32 v{Y}, 2, v{vT0}
s_movk_i32 s{sT1}, 1280
v_mad_u32_u24 v{vT1}, v{X}, s{sT1}, v{vT1}
v_mul_u32_u24 v{Y}, {19*1280}, v{Y}
v_and_b32 v{X}, 8, v{vT0}
s_movk_i32 s{sT0}, 320
v_mad_u32_u24 v{Y}, v{X}, s{sT0}, v{Y}
s_lshl_b32 s{sT2}, s{sHG}, 4
v_xor_b32 v{X}, s{sT2}, v{vT0}
v_and_b32 v{X}, 16, v{X}
s_movk_i32 s{sT0}, -6400
v_mad_i32_i24 v{Y}, v{X}, s{sT0}, v{Y}
v_add_u32 v{Y}, {96*1280}, v{Y}
v_add_u32 v{Y}, v{Y}, v{vT1}
v_and_b32 v{X}, 24, v{vT0}
s_movk_i32 s{sT0}, 640
v_mad_u32_u24 v{X}, v{X}, s{sT0}, v{vT1}""")
def su2o():
    a.e(f"""v_mul_u32_u24 v{vT0}, 6554, v{vLane}
v_lshrrev_b32 v{vT0}, 16, v{vT0}
v_mul_u32_u24 v{vT1}, 10, v{vT0}
v_sub_u32 v{vT1}, v{vLane}, v{vT1}
v_lshlrev_b32 v{vT1}, 4, v{vT1}
v_mul_u32_u24 v{vWoA}, 1280, v{vT0}
v_add_u32 v{vWoA}, v{vWoA}, v{vT1}
v_lshrrev_b32 v{vWoB}, 1, v{vT0}
v_mul_u32_u24 v{vWoB}, 38, v{vWoB}
v_add_u32 v{vWoB}, v{vWoB}, v{vT0}
v_mul_u32_u24 v{vWoB}, 1280, v{vWoB}
v_add_u32 v{vWoB}, v{vWoB}, v{vT1}
s_and_b32 s{sT0}, s{sJ}, 1
s_mul_i32 s{sT0}, s{sT0}, 20
s_and_b32 s{sT1}, s{sJ}, 2
s_lshl_b32 s{sT2}, s{sT1}, 1
s_add_u32 s{sT2}, s{sT2}, s{sT0}
s_lshl_b32 s{sT3}, s{sU}, 3
s_add_u32 s{sT2}, s{sT2}, s{sT3}
s_mul_i32 s{sT2}, s{sT2}, 1280
v_add_u32 v{vWoA}, s{sT2}, v{vWoA}
s_add_u32 s{sT0}, s{sT0}, s{sT1}
s_xor_b32 s{sT3}, s{sU}, s{sHG}
s_andn2_b32 s{sT3}, 1, s{sT3}
s_mul_i32 s{sT3}, s{sT3}, 80
s_add_u32 s{sT0}, s{sT0}, s{sT3}
s_add_u32 s{sT0}, s{sT0}, 16
s_mul_i32 s{sT0}, s{sT0}, 1280
v_add_u32 v{vWoB}, s{sT0}, v{vWoB}""")
def su3():
    for j in range(4):
        a.e(f"s_xor_b32 s{sT0}, s{sHG}, {j ^ 3}\ns_and_b32 s{sT0}, s{sT0}, 3\ns_mul_i32 s{sT0}, s{sT0}, 102400\ns_add_u32 s{sPJ+j}, s{sT0}, s{sHGO}")
    a.e(f"""s_lshl_b32 s{sT1}, s{sU}, 1
s_add_u32 s{sT1}, s{sT1}, s{sKH}
s_mul_i32 s{sT0}, s{sT1}, 12288
s_add_u32 s{sT0}, s{sT0}, {L_S}
v_add_u32 v{vA0}, s{sT0}, v{vL16}
s_xor_b32 s{sT0}, s{sT1}, 1
s_mul_i32 s{sT0}, s{sT0}, 12288
s_add_u32 s{sT0}, s{sT0}, {L_S}
v_add_u32 v{vA1}, s{sT0}, v{vL16}
s_mul_i32 s{sT0}, s{sPE}, 6144
v_add_u32 v{vE0}, s{sT0}, v{vA1}
s_mul_i32 s{sT0}, s{sPE}, 9216
v_add_u32 v{vL0}, s{sT0}, v{vA0}""")
def su4():
    a.e(f"""v_and_b32 v{vT0}, 31, v{vLane}
v_lshlrev_b32 v{vK1a}, 4, v{vT0}
v_lshrrev_b32 v{vT1}, 5, v{vLane}
v_mul_u32_u24 v{vT1}, 384, v{vT1}
v_add_u32 v{vVa}, v{vK1a}, v{vT1}
v_mov_b32 v{vT1}, {OOB}
s_mov_b32 vcc_lo, {opt.vmask or ('0xffc80000' if opt.one else '0xff880000')}
s_mov_b32 vcc_hi, {opt.vmask or ('0xffc80000' if opt.one else '0xff880000')}
v_cndmask_b32 v{vVa}, v{vVa}, v{vT1}, vcc
v_lshlrev_b32 v{vL8}, 3, v{vLane}
s_lshl_b32 s{sT0}, s{sPAR}, 1
s_add_u32 s{sT0}, s{sT0}, s{sKH}
s_lshl_b32 s{sKV}, s{sXCD}, 15
s_lshl_b32 s{sT1}, s{sT0}, 13
s_add_u32 s{sKV}, s{sKV}, s{sT1}
v_lshrrev_b32 v{vFa}, 3, v{vLane}
v_add_u32 v{vFa}, s{sXCD}, v{vFa}
v_and_b32 v{vFa}, 7, v{vFa}
v_lshlrev_b32 v{vFa}, 5, v{vFa}
v_and_b32 v{vT1}, 7, v{vLane}
v_add_u32 v{vFa}, v{vFa}, v{vT1}
v_lshlrev_b32 v{vFa}, 7, v{vFa}
s_lshl_b32 s{sT1}, s{sT0}, 10
s_add_u32 s{sT1}, s{sT1}, {A_F1}
v_add_u32 v{vFa}, s{sT1}, v{vFa}
s_lshl_b32 s{sT1}, s{sT0}, 6
s_add_u32 s{sT1}, s{sT1}, {L_F01}
v_lshl_add_u32 v{vXp1}, v{vLane}, 2, s{sT1}""")
def su5():
    a.e(f"""s_and_b32 s{sT0}, s{sTT}, 2
s_mul_i32 s{sT0}, s{sT0}, 2560
s_add_u32 s{sT0}, s{sT0}, {L_Q2}
s_add_u32 s{sT1}, s{sT0}, 2560
v_lshrrev_b32 v{vT0}, 5, v{vLane}
v_lshl_add_u32 v{vT0}, v{vT0}, 10, v{vK1a}
s_lshl_b32 s{sT2}, s{sKH}, 9
s_xor_b32 s{sT3}, s{sT2}, 512
v_add_u32 v{vT1}, s{sT3}, v{vT0}
v_add_u32 v{vQa}, s{sT0}, v{vT1}
v_add_u32 v{vQa+2}, s{sT1}, v{vT1}
v_add_u32 v{vT1}, s{sT2}, v{vT0}
v_add_u32 v{vQa+1}, s{sT0}, v{vT1}
v_add_u32 v{vQa+3}, s{sT1}, v{vT1}
s_lshr_b32 s{sT3}, s{sT3}, 1
v_xor_b32 v{vT1}, s{sT3}, v{vL8}
v_add_u32 v{vQa+4}, s{sT0}, v{vT1}
v_add_u32 v{vQa+5}, s{sT1}, v{vT1}""")
    if opt.k1c: a.e(f"v_lshrrev_b32 v{vK1a}, 1, v{vK1a}")
    if opt.k1: a.e(f"v_and_b32 v{vT1}, 32, v{vLane}\nv_lshl_add_u32 v{vK1a}, v{vT1}, 7, v{vK1a}")
def touch():
    if "o" in opt.touch: a.e(f"s_load_dword s{sISS}, s[18:19], s{sO0}")
    if "u" in opt.touch: a.e(f"s_mul_i32 s{sT0}, s{sT}, 20480\ns_add_u32 s{sT0}, s{sT0}, s{sHGO}\ns_load_dword s{sISS}, s[14:15], s{sT0}")
    if "w" in opt.touch: a.e(f"s_load_dword s{sISS}, s[12:13], s{sHGO}")
def sub():
    a.e(f"v_and_b32 v{vSt}, 0xfffff3ff, v{vFa}\nv_or_b32 v{vSt}, s{sWQB}, v{vSt}")
    a.e(f"s_lshl_b32 s{sT0}, s{sJ}, 6\ns_add_u32 s{sT0}, s{sT0}, {L_F01}\nv_lshl_add_u32 v{vCx}, v{vLane}, 2, s{sT0}")
    a.e(f"v_lshlrev_b32 v{vT0}, 2, v{vLane}\nv_add_u32 v{vT0}, {L_FL}, v{vT0}\nv_mov_b32 v{vT1}, 0\ns_mov_b64 exec, 0xffff\nds_write_b32 v{vT0}, v{vT1}\ns_mov_b64 exec, -1")
def sur():
    a.e(f"""v_mul_u32_u24 v{vT0}, 52, v{vLane}
v_lshrrev_b32 v{vT0}, 9, v{vT0}
s_mul_i32 s{sT0}, s{sJ}, 704
v_lshl_add_u32 v{vRa}, v{vT0}, 4, v{vL16}
v_add_u32 v{vRa}, s{sT0}, v{vRa}
v_add_u32 v{vRb}, 51200, v{vRa}
v_mul_u32_u24 v{vGo}, 1120, v{vT0}
v_add_u32 v{vGo}, v{vGo}, v{vL16}
s_mul_i32 s{sOB}, s{sTB}, 81920
s_mul_i32 s{sT0}, s{sJ}, 5120
s_add_u32 s{sOB}, s{sOB}, s{sT0}
s_add_u32 s{sOB}, s{sOB}, s{sHGO}""")
def suw(g=1):
    if opt.w32:
        a.e(f"""v_lshrrev_b32 v{vPw}, 4, v{vLane}
v_mul_u32_u24 v{vPw}, 704, v{vPw}
v_and_b32 v{vT1}, 4, v{vLane}
s_mul_i32 s{sT0}, s{sJ}, 25600
v_mul_u32_u24 v{vT1}, 704, v{vT1}
v_add3_u32 v{vPw}, v{vPw}, v{vT1}, s{sT0}
v_and_b32 v{vT1}, 8, v{vLane}
v_lshl_add_u32 v{vPw}, v{vT1}, 1, v{vPw}
v_and_b32 v{vT1}, 3, v{vLane}
v_lshl_add_u32 v{vPw}, v{vT1}, 2, v{vPw}
v_mov_b32 v{vGo}, 0""")
        return
    a.e(f"""v_and_b32 v{vPw}, 15, v{vLane}
v_mul_u32_u24 v{vPw}, 176, v{vPw}
v_bfe_u32 v{vT1}, v{vLane}, 4, 1
s_mul_i32 s{sT0}, s{sJ}, 25600
v_mul_u32_u24 v{vT1}, 2816, v{vT1}
v_add3_u32 v{vPw}, v{vPw}, v{vT1}, s{sT0}
v_lshrrev_b32 v{vT1}, 5, v{vLane}
v_lshl_add_u32 v{vPw}, v{vT1}, 4, v{vPw}""" + f"\nv_mov_b32 v{vGo}, 0")
vIx = vP + 2
def zero_o():
    a.e(f"v_mov_b32 v{vP}, 0\nv_mov_b32 v{vP+1}, 0\nv_mov_b32 v{vIx}, 0xdddddddd")
    if "f" in opt.dg: a.e(f"v_mov_b32 v{vP+4}, 0x3db5be12\nv_mov_b32 v{vP+5}, 0x3e21bd77\nv_mov_b32 v{vP+6}, 0\nv_mov_b32 v{vP+7}, 0\ns_mov_b32 exec_lo, 0\nv_mov_b32 v{vP+4}, 0\nv_mov_b32 v{vP+5}, 0\ns_mov_b32 exec_lo, -1")
def zero_m():
    for i in range(2): a.e(f"v_mfma_f32_32x32x4_2b_bf16 {vr(vO+32*i,32)}, {vr(vP,2)}, {vr(vP,2)}, 0")
def zero_b(): zero_o(); a.e("s_nop 0"); zero_m()
SU = [su0, su1, su2, su3, su4, su5]
def kslot(t): return vP + 4 if t % opt.nr == 3 else vKr + 6 * (t % opt.nr)
def vslot(t): return vP + 8 if t % opt.nr == 3 else vVr + 8 * (t % opt.nr)
def k1slot(t): return vKr + 6 * (t // 2 % 3) + 4
NB = 32 - opt.nl
def k_loads(t):
    b = kslot(t)
    return [(f"buffer_load_dwordx4 {vr(b,4)}, v{vL16}, {sr(sWS,4)}, s{sKV} offen{opt.kvpol}", ("k", t)),
            (f"buffer_load_dwordx2 {vr(k1slot(t),2)}, v{vK1a}, {sr(sWS,4)}, s{sKV} offen offset:1024{opt.kvpol}", ("k", t))][:1 if opt.k1 and t % 2 else 2]
def v_loads(t):
    b = vslot(t)
    return [(f"buffer_load_dwordx4 {vr(b,4)}, v{vVa}, {sr(sWS,4)}, s{sKV} offen offset:1536{opt.kvpol}", ("v", t)),
            (f"buffer_load_dwordx4 {vr(b+4,4)}, v{vVa}, {sr(sWS,4)}, s{sKV} offen offset:2304{opt.kvpol}", ("v", t))]
def kv_advance(t):
    if "s" in opt.dg: a.e("s_nop 0"); return
    if t % 2 == 0: a.e(f"s_add_u32 s{sKV}, s{sKV}, 4096")
    else: a.e(f"s_add_u32 s{sKV}, s{sKV}, {32768-4096}\ns_and_b32 s{sKV}, s{sKV}, 0x3ffff")
FLOAD = f"buffer_load_dword v{vFlag}, v{vFa}, {sr(sWS,4)}, 0 offen sc1"
def flag_cmp(): a.e(f"v_cmp_ne_u32 {sr(sMSK,2)}, s{sTAG}, v{vFlag}")
def chunk_check(c):
    a.e(f"s_and_b32 s{sT0}, s{sMSK + c//4}, 0x{0xff << (8*(c%4)):x}\ns_cbranch_scc1 L_slow{c}")
    a.label(f"L_back{c}")
    slow_stubs.append(c)
nref = [0]
def flag_refresh():
    k = nref[0]; nref[0] += 1
    a.e(f"s_or_b32 s{sT0}, s{sMSK}, s{sMSK+1}\ns_cbranch_scc0 L_ref{k}\ns_mov_b64 exec, {sr(sMSK,2)}\n{FLOAD}\ns_mov_b64 exec, -1")
    a.label(f"L_ref{k}")
def first_kv(part):
    if part == 0:
        for x in k_loads(0): a.vload(*x)
        return
    if part == 1:
        for x in v_loads(0): a.vload(*x)
        kv_advance(0)
        return
    for x in k_loads(1): a.vload(*x)
a.e(f"""v_lshrrev_b32 v{vT0}, 6, v0
v_and_b32 v{vLane}, 63, v0
s_and_b32 s{sXCD}, s2, 7
s_lshr_b32 s{sT0}, s2, 3
v_readfirstlane_b32 s{sW}, v{vT0}
s_and_b32 s{sHG}, s{sT0}, 7
s_lshr_b32 s{sR}, s{sT0}, 3
s_lshl_b32 s{sTB}, s{sXCD}, 2
s_add_u32 s{sTB}, s{sTB}, s{sR}
v_lshrrev_b32 v{vT0}, 4, v0
v_xor_b32 v{vT0}, v{vT0}, v0
v_and_b32 v{vT0}, 7, v{vT0}
v_bfe_u32 v{vXp}, v0, 3, 4
v_mul_u32_u24 v{vXp}, 1280, v{vXp}
v_lshl_add_u32 v{vXp}, v{vT0}, 4, v{vXp}
s_and_b32 s{sJ}, s{sW}, 3
s_lshr_b32 s{sTK}, s{sHG}, 1
s_lshr_b32 s{sT1}, s{sJ}, 1
s_mul_i32 s{sT1}, s{sT1}, 640
s_mul_i32 s{sJH}, s{sTB}, 81920
s_add_u32 s{sJH}, s{sJH}, s{sT1}
s_and_b32 s{sJE}, s{sJ}, 1
s_lshl_b32 s{sJE}, s{sJE}, 6
s_add_u32 s{sJE}, s{sJE}, s{sT1}
s_lshl_b32 s{sJE}, s{sJE}, 4
v_lshlrev_b32 v{vL16}, 4, v{vLane}
s_mov_b32 s{sX+2}, 2621440
s_mov_b32 s{sX+3}, 0x00020000
""" + (f"""s_lshr_b32 s{sCC}, s2, 4
s_lshl_b32 s{sCC}, s{sCC}, 3
s_add_u32 s{sCC}, s{sCC}, s{sW}
s_mul_i32 s{sCC}, s{sCC}, 200
""" if opt.skv == 1 else "") + f"""s_mul_i32 s{sCA}, s{sJ}, 6400
s_mul_i32 s{sHGO}, s{sHG}, 160
s_cmp_lt_u32 s{sW}, 4
s_cbranch_scc0 L_b1""")
a.e(f"""s_mul_i32 s{sCX}, s{sTK}, 20480
s_add_u32 s{sT0}, s{sCX}, s{sJH}
s_add_u32 s{sT1}, s{sCX}, s{sJE}
s_waitcnt lgkmcnt(0)
s_mov_b32 s{sX}, s4
s_mov_b32 s{sX+1}, s5""")
if opt.debug: a.e("s_memrealtime s[90:91]\ns_memtime s[92:93]")
xtile(0)
skv("A")
light("d0")
a.e("s_branch L_a2")
a.label("L_b1")
a.vm = []
if opt.cpf:
    a.e(f"s_getpc_b64 {sr(sC0,2)}")
    a.label("L_pc")
    a.e(f"""s_lshr_b32 s{sT0}, s2, 3
s_lshl_b32 s{sT0}, s{sT0}, 2
s_add_u32 s{sT0}, s{sT0}, s{sJ}
s_lshl_b32 s{sT0}, s{sT0}, 8
v_lshlrev_b32 v{vT0}, 7, v{vLane}
v_add_u32 v{vT0}, s{sT0}, v{vT0}
v_min_u32 v{vT0}, L_last-L_pc, v{vT0}
s_mov_b64 exec, 3
global_load_dword v{vT2}, v{vT0}, {sr(sC0,2)}
s_mov_b64 exec, -1""")
vWa = 38
def waddr():
    a.e(f"v_and_b32 v{vWa+5}, 255, v0\ns_movk_i32 s{sT0}, 1120\ns_movk_i32 s{sT1}, 1280\ns_movk_i32 s{sT2}, -960")
    for m in range(5):
        d = vWa + m
        if m: a.e(f"v_add_u32 v{vWa+5}, 256, v{vWa+5}")
        a.e(f"""v_mul_u32_u24 v{vT1}, 6554, v{vWa+5}
v_lshlrev_b32 v{d}, 4, v{vWa+5}
v_lshrrev_b32 v{vT1}, 16, v{vT1}
v_mad_u32_u24 v{d}, v{vT1}, s{sT0}, v{d}
v_and_b32 v{vT0}, 12, v{vT1}
v_mad_u32_u24 v{d}, v{vT0}, s{sT1}, v{d}
v_and_b32 v{vT0}, 16, v{vT1}
v_mad_i32_i24 v{d}, v{vT0}, s{sT2}, v{d}""")
def slab_b(sl):
    rho, e = divmod(sl, 4)
    if e == 0 and rho: a.e(f"s_add_u32 s{sRG}, s{sRG}, 163840\ns_sub_u32 s{sRG+1}, s{sRG}, 819200\ns_min_u32 s{sRG}, s{sRG}, s{sRG+1}")
    for m in ((0, 1) if e == 0 else (e + 1,)):
        a.e(f"s_add_u32 m0, s{sWQB}, {P_R[rho] + 4096*m}\ns_nop 0")
        a.vload(f"buffer_load_dwordx4 v{vWa+m}, {sr(sWQ,4)}, s{sRG} offen lds", ("w", sl))
def wkv_dma(half):
    if half == 0:
        a.e(f"s_add_u32 m0, s{sCA}, {P_KVW}\ns_nop 0")
        for i in range(4): a.vload(f"buffer_load_dwordx4 v{vL16}, {sr(sWKV,4)}, s{sCA} offen offset:{1024*i} lds", ("kv",))
        return
    a.e(f"s_add_u32 m0, s{sCA}, {P_KVW+4096}\ns_add_u32 s{sT0}, s{sCA}, 4096")
    for i in range(3):
        if i == 2: a.e("s_mov_b64 exec, 0xffff")
        a.vload(f"buffer_load_dwordx4 v{vL16}, {sr(sWKV,4)}, s{sT0} offen offset:{1024*i} lds", ("kv",))
    a.e("s_mov_b64 exec, -1")
a.e(f"""s_mov_b32 s{sWKV+2}, 25600
s_mov_b32 s{sWKV+3}, 0x00020000
s_mov_b32 s{sWQ+2}, 819200
s_mov_b32 s{sWQ+3}, 0x00020000
s_lshl_b32 s{sWQB}, s{sJ}, 10
s_mul_i32 s{sRG}, s{sR}, 163840
s_add_u32 s{sRG}, s{sRG}, s{sHGO}""")
if opt.skv == 2: a.e(f"v_lshlrev_b32 v{vT3}, 7, v{vLane}\ns_lshr_b32 s{sCC}, s2, 4\ns_lshl_b32 s{sCC}, s{sCC}, 2\ns_add_u32 s{sCC}, s{sCC}, s{sJ}\ns_lshl_b32 s{sCC}, s{sCC}, 9")
if "a" not in opt.head: waddr()
a.e("s_waitcnt lgkmcnt(0)")
if opt.debug: a.e("s_memrealtime s[90:91]\ns_memtime s[92:93]")
skv("B")
a.e(f"s_mov_b32 s{sX}, s4\ns_mov_b32 s{sX+1}, s5\ns_mov_b32 s{sWQ}, s6\ns_mov_b32 s{sWQ+1}, s7")
kst = nstamp[0]
if opt.debug and (opt.only is None or "A" in opt.only):
    nstamp[0] += 3; STAMPS += ["A:data B:x", "A:chain B:k", "A:pub B:last"]
F0 = f"s_mov_b64 exec, 0xffff\nbuffer_load_dword v{vT1}, v{vSt}, {sr(sWS,4)}, 0 offen sc1\ns_mov_b64 exec, -1"
nsl = 0
todo = SU[:2] + [touch] + SU[2:] + [sub, sur, zero_b]
for k, ch in enumerate(opt.head):
    if ch == "k": light("cA"); wkv_dma(0)
    elif ch == "K": wkv_dma(1); light("c0")
    elif ch == "a": waddr()
    elif ch == "p": a.e(f"s_setprio {opt.bprio}")
    elif ch in "123": xtile(int(ch))
    elif ch == "s": slab_b(nsl); nsl += 1
    elif ch == "t":
        a.e(f"s_lshr_b32 s{sT0}, s2, 3\ns_lshl_b32 s{sT0}, s{sT0}, 2\ns_add_u32 s{sT0}, s{sT0}, s{sJ}\ns_mul_i32 s{sT0}, s{sT0}, {128*opt.tn}\ns_add_u32 s{sT0}, s{sT0}, {819200 - 128*128*opt.tn}\ns_mov_b64 exec, {(1 << opt.tn) - 1}")
        a.vload(f"buffer_load_dword v{vT2}, v{vT3}, {sr(sWQ,4)}, s{sT0} offen", ("t",))
        a.e("s_mov_b64 exec, -1")
    elif ch == "u": todo.pop(0)()
    elif ch == "w": light("c1"); a.wait_vm(("kv",)); light("c2"); a.e("s_barrier")
assert nsl <= 8
light("c3")
tagwait()
a.wait_vm(("x",)); light("c4"); stamp_at(kst); a.e("s_barrier")
def f0check():
    a.wait_vm_if(("f0",))
    a.label("L_f0")
    a.e(f"s_mov_b64 exec, 0xff\nv_cmp_ne_u32 vcc, s{sTAG}, v{vT1}\n{'s_nop 0' if opt.nof0 else 's_cbranch_vccnz L_slowf0'}\ns_mov_b64 exec, 0xffff\nds_write_b32 v{vCx}, v{vT1}\ns_mov_b64 exec, -1")
    stamp_at(kst + 1)
for sl in range(20 + opt.lead):
    while nsl <= sl and nsl < 20 and not (sl <= opt.lead + opt.syncs[0] and nsl >= opt.hold): slab_b(nsl); nsl += 1
    if sl == opt.fl_at:
        assert not todo
        if opt.nof0 == 2: a.e(f"v_mov_b32 v{vT1}, s{sTAG}")
        else: a.e(F0); a.vm.append(("f0",))
    d = sl - opt.lead
    if d in opt.syncs:
        for k in range(opt.upers):
            if todo: todo.pop(0)()
        for p in opt.kv_at.get(d, ()): first_kv(p)
        hop(f"B{d}")
        a.wait_vm_if(("w", d))
        if d == opt.bk: f0check()
        if d == 19: stamp_at(kst + 2)
        a.e("s_barrier")
if opt.bk == 20: f0check()
for p in opt.kv_at.get(20, ()): first_kv(p)
hop("B20")
vm_join = list(a.vm)
a.e("s_waitcnt lgkmcnt(0)\ns_barrier")
light("q0"); light("r0")
a.e("s_branch L_bq")
a.raw(";PAD L_bq")
a.label("L_a2")
cX, cW, cA, cR = 38, 98, 78, 138
light("d1")
for f in SU: f()
suw(0)
a.e(f"""s_add_u32 s{sCA}, s{sCA}, {P_KVW}
v_bfe_u32 v{vT0}, v{vLane}, 1, 3
v_lshrrev_b32 v{vT1}, 4, v{vLane}
v_xor_b32 v{vT0}, v{vT0}, v{vT1}
v_and_b32 v{vT1}, 15, v{vLane}
v_lshlrev_b32 v{vT1}, 7, v{vT1}
v_lshl_add_u32 v{vT0}, v{vT0}, 4, v{vT1}
s_lshl_b32 s{sT2}, s{sKH}, 6
v_xor_b32 v{vCx}, s{sT2}, v{vT0}
s_mul_i32 s{sT2}, s{sKH}, 3072
s_add_u32 s{sT2}, s{sT2}, s{sJE}
s_add_u32 s{sT2}, s{sT2}, s{sCX}
v_add_u32 v{vCx}, s{sT2}, v{vCx}
s_lshl_b32 s{sT2}, s{sKH}, 11
v_xor_b32 v{vCx2}, 64, v{vCx}
v_add_u32 v{vCx2}, s{sT2}, v{vCx2}
v_add_u32 v{vTq1}, {P_R[0]}, v{vTq0}
s_mul_i32 s{sT0}, s{sJ}, 20480
v_add_u32 v{vT0}, s{sT0}, v{vT0}
s_lshl_b32 s{sT0}, s{sR}, 12""")
for rho in range(5):
    if rho: a.e(f"s_add_u32 s{sT0}, s{sT0}, 4096\ns_sub_u32 s{sT1}, s{sT0}, 20480\ns_min_u32 s{sT0}, s{sT0}, s{sT1}")
    a.e(f"v_add_u32 v{vXa+rho}, s{sT0}, v{vT0}")
a.e(f"""v_lshrrev_b32 v{vT0}, 4, v{vLane}
v_bfe_u32 v{vT1}, v{vLane}, 2, 2
v_lshl_add_u32 v{vT0}, v{vT0}, 3, v{vT1}
v_mul_u32_u24 v{vT0}, 40, v{vT0}
v_add_u32 v{vT0}, s{sCA}, v{vT0}
v_and_b32 v{vT1}, 3, v{vLane}
v_lshlrev_b32 v{vT1}, 4, v{vT1}
v_min_u32 v{vCw}, 32, v{vT1}
v_add_u32 v{vCw}, v{vCw}, v{vT0}
v_add_u32 v{vT1}, 8, v{vT1}
v_min_u32 v{vCw+1}, 32, v{vT1}
v_add_u32 v{vCw+1}, v{vCw+1}, v{vT0}
s_mul_i32 s{sT0}, s{sJ}, 2560
s_add_u32 s{sT0}, s{sT0}, {L_Q2}
v_add_u32 v{vM2w}, s{sT0}, v{vL16}
v_add_u32 v{vM2h}, s{sT0}, v{vL8}
s_add_u32 s{sT1}, s{sW}, {L_FLG}
v_mov_b32 v{vT3}, s{sT1}
v_mov_b32 v{vFlag}, 0
s_mov_b64 exec, 1
ds_write_b8 v{vT3}, v{vFlag}
s_mov_b64 exec, -1
v_mov_b32 v{vFlag}, 1""")
a.e(f"""s_bitcmp1_b32 s{sHG}, 0
s_cbranch_scc1 L_ofv
v_lshrrev_b32 v{vT0}, 4, v{vLane}
v_and_b32 v{vT1}, 3, v{vLane}
v_lshlrev_b32 v{vT1}, 4, v{vT1}
v_lshl_add_u32 v{vSt}, v{vT0}, 9, v{vT1}
v_and_b32 v{vT1}, 4, v{vLane}
v_lshl_add_u32 v{vSt}, v{vT1}, 5, v{vSt}
v_and_b32 v{vT1}, 8, v{vLane}
v_lshl_add_u32 v{vSt}, v{vT1}, 3, v{vSt}
s_and_b32 s{sT1}, s{sTK}, 1
s_lshl_b32 s{sT1}, s{sT1}, 8""")
if opt.k1c: a.e(f"""s_mov_b32 exec_lo, 0
v_subrev_u32 v{vSt}, s{sT1}, v{vSt}
v_add_u32 v{vSt}, 1024, v{vSt}
v_lshrrev_b32 v{vSt}, 1, v{vSt}
s_mov_b32 exec_lo, -1""")
a.e("s_branch L_ofd")
a.label("L_ofv")
a.e(f"""v_and_b32 v{vT0}, 7, v{vLane}
v_lshlrev_b32 v{vT0}, 2, v{vT0}
v_mov_b32 v{vT1}, 0x73625410
v_lshrrev_b32 v{vT0}, v{vT0}, v{vT1}
v_and_b32 v{vT0}, 7, v{vT0}
v_add_u32 v{vT0}, 16, v{vT0}
v_and_b32 v{vT1}, 4, v{vLane}
v_lshlrev_b32 v{vT1}, 1, v{vT1}
v_and_b32 v{vT2}, 3, v{vLane}
v_add_u32 v{vT1}, v{vT1}, v{vT2}
v_lshrrev_b32 v{vT2}, 5, v{vLane}
v_lshl_add_u32 v{vT1}, v{vT2}, 2, v{vT1}
s_mov_b32 vcc_lo, 0xff00ff00
s_mov_b32 vcc_hi, 0xff00ff00
v_cndmask_b32 v{vT0}, v{vT1}, v{vT0}, vcc
v_bfe_u32 v{vT1}, v{vLane}, 4, 1
v_mul_u32_u24 v{vT1}, 384, v{vT1}
v_lshl_add_u32 v{vSt}, v{vT0}, 4, v{vT1}
s_and_b32 s{sT1}, s{sTK}, 1
s_mul_i32 s{sT1}, s{sT1}, 768
s_add_u32 s{sT1}, s{sT1}, 1536""")
a.label("L_ofd")
a.e(f"""s_lshl_b32 s{sT0}, s{sTB}, 13
s_lshr_b32 s{sT2}, s{sTK}, 1
s_lshl_b32 s{sT2}, s{sT2}, 12
s_add_u32 s{sT0}, s{sT0}, s{sT2}
s_add_u32 s{sT0}, s{sT0}, s{sT1}
v_add_u32 v{vT2}, s{sCA}, v{vL16}""")
light("d2")
tagwait()
light("d3")
a.e("s_waitcnt vmcnt(0)")
light("cA")
a.e("s_barrier")
stamp_at(kst)
light("c0")
def cw_read(i):
    a.lds(f"ds_read_b128 {vr(cX+4*i,4)}, v{vCx2 if i%2 else vCx} offset:{2048*(i//2)}", ("cx", i))
    for h in range(2):
        for q in range(2):
            a.lds(f"ds_read_b64_tr_b16 {vr(cW+8*i+4*h+2*q,2)}, v{vCw+h} offset:{i*1280+q*160}", ("cw", i, h))
for i in range(5): cw_read(i)
light("c1")
a.e(f"s_bitcmp1_b32 s{sHG}, 0\ns_cbranch_scc1 L_chv")
save = list(a.lg)
for mat in range(2):
    a.lg = list(save)
    if mat: a.label("L_chv")
    for i in range(5):
        for h in range(2):
            a.wait_lg(("cw", i, h))
            W, X = vr(cW + 8 * i + 4 * h, 4), vr(cX + 4 * i, 4)
            c = "0" if i == 0 else vr(cA + 4 * h, 4)
            a.e(f"v_mfma_f32_16x16x32_bf16 {vr(cA+4*h,4)}, {W if not mat else X}, {X if not mat else W}, {c}")
    if not mat: a.e("s_branch L_chd")
a.label("L_chd")
light("c2")
a.e(f"s_cmp_eq_u32 s{sW}, 0\ns_cbranch_scc1 L_fin0\ns_nop 5")
a.e(f"ds_write_b128 v{vT2}, {vr(cA,4)}\nds_write_b128 v{vT2}, {vr(cA+4,4)} offset:1024")
a.e(f"s_mov_b64 exec, 1\nds_write_b8 v{vT3}, v{vFlag}\ns_mov_b64 exec, -1")
stamp_at(kst + 1)
hop("A")
a.e("s_branch L_bx")
a.label("L_fin0")
a.e(f"ds_read_b32 v{cR+24}, v{vT3}")
for j in range(1, 4):
    for h in range(2): a.e(f"ds_read_b128 {vr(cR+8*(j-1)+4*h,4)}, v{vT2} offset:{6400*j+1024*h}")
a.e(f"""s_add_u32 s{sSPIN}, s{sSPIN}, 1
s_cmp_lt_u32 s{sSPIN}, 1000000
s_cbranch_scc0 L_end
s_waitcnt lgkmcnt(6)
v_cmp_ne_u32 vcc, 0x01010100, v{cR+24}
s_waitcnt lgkmcnt(0)
s_cbranch_vccnz L_fin0""")
light("c3")
stamp_at(kst + 1)
for i in range(8):
    a.e(f"v_add_f32 v{cA+i}, v{cA+i}, v{cR+i}\nv_add_f32 v{cR+8+i}, v{cR+8+i}, v{cR+16+i}")
for i in range(8): a.e(f"v_add_f32 v{cA+i}, v{cA+i}, v{cR+8+i}")
SCALE = math.log2(math.e) / math.sqrt(20.0)
SCX = f"0x{struct.unpack('<I', struct.pack('<f', SCALE))[0]:08x}"
a.e(f"s_bitcmp1_b32 s{sHG}, 0\ns_cbranch_scc1 L_stv")
for i in range(8): a.e(f"v_mul_f32 v{cA+i}, {SCX}, v{cA+i}")
for i in range(4): a.e(f"v_cvt_pk_bf16_f32 v{cR+i}, v{cA+2*i}, v{cA+2*i+1}")
if opt.k1c:
    for i in range(2): a.e(f"v_mov_b32_dpp v{cR+2+i}, v{cR+i} quad_perm:[1,1,3,3] row_mask:0x4 bank_mask:0xf")
a.e(f"s_mov_b32 exec_hi, {'0x5555' if opt.k1c else '0xffff'}\ns_branch L_std")
a.label("L_stv")
for i in range(4): a.e(f"v_cvt_pk_bf16_f32 v{cR+i}, v{cA+2*i}, v{cA+2*i+1}")
a.e(f"v_add_f32 v{vT0}, abs(v{cA}), abs(v{cA+1})")
for i in range(2, 8): a.e(f"v_add_f32 v{vT0}, v{vT0}, abs(v{cA+i})")
a.e(f"v_permlane32_swap_b32 v{cR}, v{cR+2}\nv_permlane32_swap_b32 v{cR+1}, v{cR+3}")
a.e(f"v_cmp_nge_f32 vcc, 0x5c000000, v{vT0}\ns_mov_b32 s{sT1}, 0x3f803f80\ns_nop 0\ns_cmp_lg_u64 vcc, 0\ns_cselect_b32 s{sT1}, 0x7f807f80, s{sT1}")
a.e("s_mov_b64 exec, 0x30003000")
for i in range(4): a.e(f"v_mov_b32 v{cR+i}, s{sT1}")
a.e("s_mov_b32 exec_lo, 0xc000c000")
for i in range(4): a.e(f"v_mov_b32 v{cR+i}, 0")
a.e("s_mov_b32 exec_lo, -1\ns_mov_b32 exec_hi, 0x00ff00ff")
a.label("L_std")
a.e(f"""buffer_store_dwordx4 {vr(cR,4)}, v{vSt}, {sr(sWS,4)}, s{sT0} offen sc1
s_mov_b64 exec, -1
s_lshl_b32 s{sCC}, s{sTB}, 3
s_add_u32 s{sCC}, s{sCC}, s{sHG}
s_lshl_b32 s{sCC}, s{sCC}, 7
s_add_u32 s{sCC}, s{sCC}, {A_F1}
v_mov_b32 v{vT1}, s{sTAG}""")
def publish():
    a.e(f"s_cmp_eq_u32 s{sW}, 0\ns_cbranch_scc0 L_pubd\ns_mov_b64 exec, 1\ns_waitcnt vmcnt(0)\nbuffer_store_dword v{vT1}, v{vL16}, {sr(sWS,4)}, s{sCC} offen sc1\ns_mov_b64 exec, -1")
    keep = list(a.lg); stamp_at(kst + 2); a.lg = keep
    a.label("L_pubd")
a.label("L_bx")
light("c4")
a.lg = []; a.vm = []
a.e("s_barrier")
stamp("Bx")
for e in range(2):
    for i in range(e, 20, 2):
        a.lds(f"ds_read_b128 {vr(vXf+4*i,4)}, v{vXa+i//4} offset:{2048*(i%4//2)}", ("x", i))
        if e == 0 and i % 4 == 2: a.e(f"v_xor_b32 v{vXa+i//4}, 64, v{vXa+i//4}")
js = [(i, t) for i in range(10) for t in range(5)]
qs = [(i, t) for i in range(20) for t in range(opt.dskip)]
for i in range(4 * opt.dskip, 20): a.e(f"v_mov_b32 v{vAcc+i}, 0")
NR1 = 11
assert opt.pub_at in opt.syncs and (opt.bk in opt.syncs or opt.bk == 20) and opt.bk + opt.lead >= 19 and 19 in opt.syncs and opt.pub_at < opt.bk
issued = 0
avail = -1
def trq(f, i, t):
    if opt.dmode == "m" and t and i > 2: return
    rho, e = divmod(i, 4)
    base, off = (vTq1, P_R[rho] - P_R[0]) if rho < 3 else (vTq0, P_R[rho])
    for q in range(2):
        a.lds(f"ds_read_b64_tr_b16 {vr(f+2*q,2)}, v{base} offset:{off + e*5120 + 8*t + q*2560}", ("fr", i, t))
for j, (i, t) in enumerate(qs):
    while issued < len(qs) and issued < j + opt.ahead:
        if qs[issued][0] > avail:
            if qs[issued][0] >= opt.drain and issued > j: break
            nxt_s = min(x for x in opt.syncs if x > avail)
            if avail < 0: a.wait_lg(("x", 19))
            if nxt_s == opt.pub_at: publish()
            for p in opt.kv_a.get(nxt_s, ()): first_kv(p)
            a.e("s_barrier")
            avail = nxt_s
            stamp(f"S{avail}")
        trq(vFr + 4 * (issued % NR1), *qs[issued]); issued += 1
    a.wait_lg(("fr", i, t))
    c = "0" if i == 0 else vr(vAcc + 4 * t, 4)
    if opt.dmode == "r" and t and 0 < i < 19: continue
    a.e(f"v_mfma_f32_16x16x32_bf16 {vr(vAcc+4*t,4)}, {vr(vFr+4*(j%NR1),4)}, {vr(vXf+4*i,4)}, {c}")
stamp("qgemm")
vPk = vXf
zero_o(); a.e("s_nop 0")
for i in range(4): a.e(f"v_cvt_pk_bf16_f32 v{vPk+i}, v{vAcc+2*i}, v{vAcc+2*i+1}")
a.e(f"ds_write_b128 v{vM2w}, {vr(vPk,4)}")
for i in range(4, 8): a.e(f"v_cvt_pk_bf16_f32 v{vPk+i}, v{vAcc+2*i}, v{vAcc+2*i+1}")
a.e(f"ds_write_b128 v{vM2w}, {vr(vPk+4,4)} offset:1024")
for i in range(8, 10): a.e(f"v_cvt_pk_bf16_f32 v{vPk+i}, v{vAcc+2*i}, v{vAcc+2*i+1}")
a.e(f"ds_write_b64 v{vM2h}, {vr(vPk+8,2)} offset:2048")
zero_m()
for p in opt.kv_a.get(20, ()): first_kv(p)
a.e("s_waitcnt lgkmcnt(0)\ns_barrier")
for p in opt.kv_a.get(21, ()): first_kv(p)
assert a.vm == vm_join, (a.vm, vm_join)
assert not opt.flip and min(opt.kv_a) > opt.bk
for kv in (opt.kv_at, opt.kv_a): assert min(kv) > min(19, opt.bk) and all(k in opt.syncs or k >= 20 for k in kv)
light("q0"); light("r0")
a.label("L_bq")
a.lg = []
stamp("E2")
a.lds(f"ds_read_b64 {vr(vQH[0],2)}, v{vQa+4} offset:2048", ("q", 0))
a.lds(f"ds_read_b128 {vr(vQ[0],4)}, v{vQa}", ("q", 0))
a.lds(f"ds_read_b128 {vr(vQ[1],4)}, v{vQa+1}", ("q", 0))
a.lds(f"ds_read_b64 {vr(vQH[1],2)}, v{vQa+5} offset:2048", ("q", 1))
a.lds(f"ds_read_b128 {vr(vQ[2],4)}, v{vQa+2}", ("q", 1))
a.lds(f"ds_read_b128 {vr(vQ[3],4)}, v{vQa+3}", ("q", 1))
a.e(f"s_not_b32 s{sT0}, s{sTAG}\nv_mov_b32 v{vFlag}, s{sT0}\ns_mov_b64 exec, 0xffff")
a.lds(f"ds_read_b32 v{vFlag}, v{vXp1}", ("q", 1))
a.e("s_mov_b64 exec, -1")
seq = [(t, p) for t in range(16 - opt.nl) for p in range(2)] + [(t, p) for p in range(2) for t in range(16 - opt.nl, 16)]
NS = 32
def s2b(n):
    t, p = seq[n]; S = vS[n % 2]
    if "a" in opt.dg: return "s_nop 0"
    if "e" in opt.dg: return "\n".join(f"v_mfma_f32_32x32x8bf16_1k {vr(S+16*x,16)}, {vr(k1slot(t),2)}, {vr(vQH[p],2)}, 0" for x in range(2))
    if "f" in opt.dg: return "\n".join(f"v_mfma_f32_32x32x16_bf16 {vr(S+16*x,16)}, {vr(kslot(t),4)}, {vr(vP+4,4)}, 0" for x in range(2))
    return f"v_mfma_f32_32x32x4_2b_bf16 {vr(S,32)}, {vr(k1slot(t),2)}, {vr(vQH[p],2)}, {vr(S,32) if opt.rev and n else 0}" + (f" cbsz:1 abid:{t&1}" if opt.k1 else "")
def s16(n, x):
    t, p = seq[n]; S = vS[n % 2] + 16 * x
    if "g" in opt.dg: return "s_nop 0"
    return f"v_mfma_f32_32x32x16_bf16 {vr(S,16)}, {vr(kslot(t),4)}, {vr(vQ[2*p+x],4)}, {'0' if 'a' in opt.dg or (opt.rev and n) else vr(S,16)}"
def pv(n, g):
    t, p = seq[n]; O = vO + 16 * (2 * p + g // 2)
    if "b" in opt.dg: return "s_nop 0"
    return f"v_smfmac_f32_32x32x32_bf16 {vr(O,16)}, {vr(vslot(t)+4*(g%2),4)}, {vr(vS[n%2]+8*g,8)}, v{vIx}"
a.wait_vm(("k", 0))
a.wait_lg(("q", 0))
if opt.dly:
    a.e(f"s_mov_b32 s{sT0}, {opt.dly}")
    a.label("L_dly")
    a.e(f"s_nop 15\ns_sub_u32 s{sT0}, s{sT0}, 1\ns_cbranch_scc0 L_dly")
stamp("kv0")
a.e(s2b(0))
a.e(f"v_mov_b32 v{vR1}, -1\nv_mov_b32 v{vR1+1}, -1\nv_mov_b32 v{vR1+2}, -1\nv_mov_b32 v{vR1+3}, -1\ns_xor_b32 s{sT0}, s{sTAG}, s{sXCC}\nv_mov_b32 v{vR1+4}, s{sT0}")
for x in v_loads(1): a.vload(*x)
kv_advance(1)
a.e("s_nop 7"); a.e(s16(0, 0)); a.e(s16(0, 1)); a.wait_lg0(); a.e("s_nop 9")
assert opt.dual and opt.order[0] == 0 and opt.order[3] == 3
vOB = dict(zip(opt.order, (vO, 182, vO, 158)))
vAC = dict(zip(opt.order, ([158, 162, 178, 202, 220], range(18, 38, 4), range(222, 242, 4), range(202, 222, 4))))
vFb, vF8 = vWoB, vWoA
SPIN = f"s_add_u32 s{sSPIN}, s{sSPIN}, 1\ns_cmp_lt_u32 s{sSPIN}, 1000000\ns_cbranch_scc0 L_end"
vRdy = vR1 + 22
def normalize(S, T, fail):
    a.e(f"v_subrev_u32 v{T}, 0x21800000, v{S+10}\nv_cmp_lt_u32 vcc, 0x3c000000, v{T}")
    if not opt.dg: a.e(f"s_branch {fail}" if opt.force_fallback else f"s_cbranch_vccnz {fail}")
ostubs = []
def ostore(T, pol, tag):
    o = sE0 if tag == "e" else sO0
    a.e(f"buffer_store_dwordx4 {vr(T,4)}, v{vL16}, {sr(sWS,4)}, s{o} offen{pol}")
    a.e(f"buffer_store_dword v{T+4}, v{vL8}, {sr(sWS,4)}, s{o+1} offen{pol}")
def scale(S, T):
    a.e(f"v_rcp_f32 v{S+10}, v{S+10}\ns_or_b32 s{sT0}, s{sMSK}, s{sMSK+1}")
    if opt.pk:
        for i in range(0, 10, 2): a.e(f"v_pk_mul_f32 {vr(S+i,2)}, {vr(S+i,2)}, {vr(S+10,2)} op_sel_hi:[1,0]")
    else:
        for i in range(10): a.e(f"v_mul_f32 v{S+i}, v{S+i}, v{S+10}")
    for i in range(5): a.e(f"v_cvt_pk_bf16_f32 v{T+i}, v{S+2*i}, v{S+2*i+1}")
    if opt.dg:
        for i in range(5): a.e(f"v_min_u32 v{T+i}, -2, v{T+i}")
def finish(S, T, tag):
    scale(S, T)
    a.label(f"L_ost{tag}")
    if opt.fast:
        a.e(f"s_cbranch_scc1 L_osc{tag}")
        ostore(T, opt.opol[tag], tag)
        ostubs.append((T, tag))
    else: ostore(T, " sc1", tag)
    a.label(f"L_osd{tag}")
def opoll(tile, jj):
    b = vOB[tile]
    so = sOJ + jj
    if tile: a.e(f"s_add_u32 s{sT1}, s{so}, {tile*20480}"); so = sT1
    a.e(f"buffer_load_dwordx4 {vr(b+8*jj,4)}, v{vL16}, {sr(sWS,4)}, s{so} offen sc1")
    a.e(f"buffer_load_dwordx4 {vr(b+8*jj+4,4)}, v{vL16}, {sr(sWS,4)}, s{so} offen offset:1024 sc1")
    a.e(f"buffer_load_dwordx2 {vr(b+16+2*jj,2)}, v{vL8}, {sr(sWS,4)}, s{so} offen offset:2048 sc1")
def SETF(off): return f"s_mov_b64 exec, 1\nds_write_b8 v{vFa}, v{vFlag} offset:{off}\ns_mov_b64 exec, -1"
vPkd = vR1 + 12
jd = [(u, t) for u in range(2) for t in range(5)] + [(2 + u, d - u) for d in range(7) for u in (2, 1, 0) if 0 <= d - u < 5]
js = [(u, t) for u in range(5) for t in range(5)]
ring = dict(zip(js, list(range(38, 118, 4)) + list(range(138, 158, 4))))
nblk = [0]
class only_par:
    def __init__(s_, par, reg=sPAR): s_.par = par; s_.reg = reg
    def __enter__(s_):
        s_.k = nblk[0]; nblk[0] += 1
        a.e(f"s_cmp_eq_u32 s{s_.reg}, {s_.par}\ns_cbranch_scc0 L_blk{s_.k}")
    def __exit__(s_, *x): a.label(f"L_blk{s_.k}")
def wr3(addr, off, src):
    for i in range(3): a.e(f"ds_write_b128 v{addr}, {vr(src+4*i,4)} offset:{off+1024*i}")
def rd3(addr, off, dst):
    for i in range(3): a.e(f"ds_read_b128 {vr(dst+4*i,4)}, v{addr} offset:{off+1024*i}")
def add11(dst, src, fin=False):
    if fin and opt.one:
        a.e(f"v_add_f32 v{src+11}, v{dst+10}, v{src+10}\nv_add_f32 v{dst+10}, v{dst+10}, v{src+10}")
        for i in range(10):
            if i == 4: a.e(f"v_permlane32_swap_b32 v{dst+10}, v{src+11}")
            a.e(f"v_add_f32 v{dst+i}, v{dst+i}, v{src+i}")
        return
    for i in range(11): a.e(f"v_add_f32 v{dst+i}, v{dst+i}, v{src+i}")
vRc = [vO, vVr + 8, vR1]
def padn(key):
    for q in range(opt.nops.get(key, 0)): a.e("s_nop 0")
def roleprio(key):
    if key in opt.prioA: a.e(f"s_setprio {opt.prioA[key]}")
    if key in opt.prioE:
        with only_par(0, sU): a.e(f"s_setprio {opt.prioE[key]}")
    if key in opt.prioL:
        with only_par(1, sU): a.e(f"s_setprio {opt.prioL[key]}")
def okc(sfx):
    a.label("L_okc" + sfx)
    a.e(f"s_waitcnt lgkmcnt(0)\nv_and_b32 v{vT0}, v{vT0}, v{vT1}\nv_cmp_ne_u32 vcc, 0x01010101, v{vT0}\ns_cbranch_vccnz L_okslow{sfx}")
def ereads():
    a.e(f"ds_read_b32 v{vT0}, v{vFb} offset:8")
    rd3(vA0, 0, vR1); rd3(vA0, 3072, vR1 + 12); rd3(vA0, 6144, vO)
def lreads():
    a.e(f"ds_read_b32 v{vRdy}, v{vFb}")
    rd3(vA1, 0, vRc[0]); rd3(vA1, 9216, vRc[1])
def l2reads():
    a.e(f"ds_read_u8 v{vRdy+1}, v{vFa} offset:46")
    rd3(vX1, 3072, vRc[2])
def preads():
    a.e(f"ds_read_u8 v{vRdy}, v{vFp}")
    rd3(vL1, 0, vRc[0])
def late1():
    with only_par(1, sU):
        with only_par(1): l2reads()
        preads()
groups = [(k, t) for t in range(2, 16) for k in "kv"]
lsched = {}
for n in range(NS):
    lsched[n] = [groups.pop(0) for q in range(2 if n in (opt.cu if opt.nr == 4 else (25,)) else 1) if groups]
    for k, t in lsched[n]:
        if t >= opt.nr: assert max(i for i, x in enumerate(seq) if x[0] == t - opt.nr) + (0 if k == "k" else 1) <= n, (n, k, t)
        assert min(i for i, x in enumerate(seq) if x[0] == t) - (1 if k == "k" else 0) >= n + 2, (n, k, t)
def lgroup(g, part):
    k, t = g
    if part == 0 and k == "k" and t % 2 == 0: chunk_check(t // 2)
    L = k_loads(t) if k == "k" else v_loads(t)
    if part < len(L) and not ("d" in opt.dg and t > 2): a.vload(*L[part])
    if part == 1 and k == "v" and t < 15: kv_advance(t)
clr_mark = [0]
for n in range(NS):
    t, p = seq[n]
    a.c(f"half-step {n}: tile {t} pair {p}")
    if n in opt.prio: a.e(f"s_setprio {opt.prio[n]}")
    padn(n)
    if n == 0 and opt.debug and opt.only and not any(x[0] in "cdq" for x in opt.only):
        for r in (0, 4, 6, 8, 10, 16, 12, 14, 18, 20, 22, 24, 26, 28, 30): a.e(f"s_mov_b32 s{r}, 0")
    if n in (4, 8, 16, 24, 29, 30, 31): stamp(f"step{n}")
    light(f"h{n}")
    S = vS[n % 2]
    ex = [f"v_exp_f32 v{S+i}, v{S+i}" for i in range(32)]
    cur = [0]
    pos = opt.posn.get(n, opt.pos); xs = opt.xsn.get(n, opt.xs)
    def ev(k):
        if k == 0 and n > 0: a.e(pv(n - 1, 3))
        if k == 1:
            if nxt:
                a.wait_vm_if(("k", seq[n + 1][0]))
                if "w" in opt.dg and 3 < n < 26 and "vmcnt" in a.lines[-1]: a.lines[-1] = "    s_waitcnt vmcnt(40)"
                a.e(s2b(n + 1))
        if k == 2:
            a.wait_vm_if(("v", t))
            if "w" in opt.dg and 3 < n < 26 and "vmcnt" in a.lines[-1]: a.lines[-1] = "    s_waitcnt vmcnt(40)"
            a.e(pv(n, 0))
        if k == 3: a.e(pv(n, 1))
        if k == 4 and nxt: a.wait_vm_if(("k", seq[n + 1][0])); a.e(s16(n + 1, 0))
        if k == 5: a.e(pv(n, 2))
        if k == 6 and nxt: a.e(s16(n + 1, 1))
    def E(hi):
        while cur[0] < hi:
            roleprio(n * 100 + cur[0])
            if opt.lock:
                f, l, per, xl, xe = opt.lock
                g = n * 32 + cur[0]
                if g == 0: a.e(f"s_mov_b32 vcc_lo, s{sU}\ns_mov_b32 vcc_hi, 0")
                if f <= g <= l and (g - f) % per == 0: a.e("s_setprio 2")
                if f <= g - xl <= l and (g - xl - f) % per == 0:
                    a.e(f"s_cbranch_vccz L_lk{g}\ns_setprio 3"); a.label(f"L_lk{g}")
                if f <= g - xe <= l and (g - xe - f) % per == 0: a.e("s_setprio 3")
            for k in range(7):
                if pos[k] == cur[0]: ev(k)
            if n * 32 + cur[0] == (NB + 1) * 32 + opt.erd:
                with only_par(0, sPE): ereads()
            if n == 31 and cur[0] == opt.w31:
                light("k9")
                wr3(vL0, 0, vO + 32)
                a.e(SETF(0))
                light("k10")
            if not ("c" in opt.dg and cur[0] % 4 == 3): a.e(ex[cur[0]])
            cur[0] += 1
    L = lsched[n]
    nxt = n + 1 < NS
    assert opt.okc == 3 and pos[0] < pos[1] and pos[0] < xs[0] and (n != NB + 1 or opt.erd < xs[2])
    E(xs[0] - 2)
    if n in (0, 4, 8):
        a.wait_vm_if(("flag",))
        flag_cmp()
    E(xs[0])
    if L: lgroup(L[0], 0)
    E(xs[1])
    if L: lgroup(L[0], 1)
    if n in (1, 5): flag_refresh()
    E(xs[2])
    def clear():
        a.vload(f"buffer_store_dwordx4 {vr(vR1,4)}, v{vL16}, {sr(sWS,4)}, s{sO0} offen{opt.clrpol}", ("clr",))
        if opt.clr4:
            a.e(f"s_mul_i32 s{sT0}, s{sKH}, 252\ns_add_u32 s{sT0}, s{sT0}, s{sO1}\ns_mov_b64 exec, 0xffff")
            a.vload(f"buffer_store_dwordx4 {vr(vR1,4)}, v{vL16}, {sr(sWS,4)}, s{sT0} offen{opt.clrpol}", ("clr",))
            a.e("s_mov_b64 exec, -1")
        else: a.vload(f"buffer_store_dword v{vR1}, v{vL8}, {sr(sWS,4)}, s{sO1} offen{opt.clrpol}", ("clr",))
        if not opt.trk: a.vm = a.vm[:-2]
    if opt.cd == 0 and n == opt.clr_at: clear()
    for j in range(4):
        if opt.cd and n == opt.clr_at - opt.cd * (3 - j):
            with only_par(j, sJ): clear()
            a.vm = a.vm[:-2]; clr_mark[0] = n
    if n == 3:
        a.e(f"""s_mul_i32 s{sT1}, s{sTB}, 81920
s_lshr_b32 s{sT0}, s{sJ}, 1
s_mul_i32 s{sT0}, s{sT0}, 10240
s_add_u32 s{sT1}, s{sT1}, s{sT0}
s_add_u32 s{sT1}, s{sT1}, {A_O}
s_lshl_b32 s{sT0}, s{sJ}, 1
s_xor_b32 s{sT0}, s{sT0}, s{sHG}
s_andn2_b32 s{sT0}, 3, s{sT0}
s_mul_i32 s{sOJ}, s{sT0}, 2560
s_add_u32 s{sOJ}, s{sOJ}, s{sT1}
s_xor_b32 s{sT0}, s{sT0}, 1
s_mul_i32 s{sOJ+1}, s{sT0}, 2560
s_add_u32 s{sOJ+1}, s{sOJ+1}, s{sT1}""")
    if n == NB - 2:
        assert opt.wo0 + 20 / opt.wok <= 25
        a.e(f"s_lshl_b32 s{sT0}, s{sTT}, 1\ns_add_u32 s{sT0}, s{sT0}, s{sKH}\ns_add_u32 s{sT0}, s{sT0}, {L_FL}\nv_mov_b32 v{vFa}, s{sT0}\nv_mov_b32 v{vFlag}, 1\nv_and_b32 v{vFb}, -4, v{vFa}\nv_mov_b32 v{vF8}, {L_FL}")
        if opt.dual: a.e(f"""s_mul_i32 s{sT1}, s{sU}, 20480
s_sub_u32 s{sE0}, s{sO0}, s{sT1}
s_sub_u32 s{sE1}, s{sO1}, s{sT1}
s_lshl_b32 s{sT1}, s{sU}, 1
v_subrev_u32 v{vFe}, s{sT1}, v{vFa}
s_mul_i32 s{sT1}, s{sKH}, {3072 - 12288}
s_add_u32 s{sT1}, s{sT1}, {L_X - L_S - 24576 - 3072}
s_mul_i32 s{sT1}, s{sT1}, s{sU}
v_add_u32 v{vX1}, s{sT1}, v{vA0}
s_mul_i32 s{sT1}, s{sPE}, 9216
v_add_u32 v{vL1}, s{sT1}, v{vA1}
v_xor_b32 v{vFp}, 1, v{vFa}""")
        else: a.e(f"s_mov_b32 s{sE0}, s{sO0}\ns_mov_b32 s{sE1}, s{sO1}\nv_mov_b32 v{vFe}, v{vFa}\nv_mov_b32 v{vX1}, v{vA0}")
    if n == opt.clr_at + 6:
        assert ("clr",) not in a.vm and lsched[opt.clr_at + 1][0] not in a.vm
        if opt.trk: a.vm.append(("fl2",))
        a.e(f"s_mov_b64 exec, 1\nbuffer_store_dword v{vR1+4}, v{vL16}, {sr(sWS,4)}, s{sF2} offen{opt.f2pol}\ns_mov_b64 exec, -1")
    def otouch():
        a.e(f"buffer_load_dwordx4 {vr(vR1+8,4)}, v{vL16}, {sr(sWS,4)}, s{sO0} offen{opt.otouch}")
        a.e(f"buffer_load_dword v{vR1+12}, v{vL8}, {sr(sWS,4)}, s{sO1} offen{opt.otouch}")
        if opt.trk: a.vm += [("ot",)] * 2
    if opt.od == 0 and n == opt.clr_at + opt.otd: otouch()
    for j in range(4):
        if opt.od and n == opt.clr_at + opt.otd - opt.od * (3 - j):
            with only_par(j, sJ): otouch()
            a.vm = a.vm[:-2]
    if n == NB - 6:
        a.e(f"v_and_b32 v{vT0}, 15, v{vLane}\nv_lshlrev_b32 v{vT0}, 7, v{vT0}\ns_and_b32 s{sF2}, s{sF2}, 0xfffff800")
        a.vload(f"buffer_load_dword v{vT1}, v{vT0}, {sr(sWS,4)}, s{sF2} offen sc1", ("f2",))
    if len(L) > 1: lgroup(L[1], 0); lgroup(L[1], 1)
    if n == NB - 1:
        a.wait_vm_if(("f2",))
        a.label("L_f2")
        a.e(f"""v_xor_b32 v{vT1}, s{sTAG}, v{vT1}
v_cmp_lt_u32 vcc, 7, v{vT1}
s_cbranch_vccnz L_slowf2
v_cmp_ne_u32 {sr(sMSK,2)}, s{sXCC}, v{vT1}""")
        assert not any(x[0] == "wo" for x in a.vm) and opt.wo0 + 20 / opt.wok <= 24
        a.e(SETF(16))
    if n == NB: wr3(vE0, 0, vO)
    if n == 31:
        if opt.okc == 0:
            with only_par(0, sU): okc("")
        elif opt.okc == 1: okc("")
    if n == NB + 1:
        with only_par(0, sPE):
            a.label("L_erd")
            light("k5")
            a.e(f"s_waitcnt lgkmcnt(3)\nv_cmp_ne_u32 vcc, 0x01010101, v{vT0}\ns_cbranch_vccnz L_eslow"); light("k6"); add11(vO + 16, vR1); add11(vO + 16, vR1 + 12)
    E(xs[3])
    s = n - opt.wo0
    wol = [x for x in range(s * opt.wok, (s + 1) * opt.wok) if 0 <= x < 20]
    if opt.wpf is not None and 0 <= n - opt.wpf[0] < -(-25 // opt.wpf[1]):
        k0 = (n - opt.wpf[0]) * opt.wpf[1]
        if k0 == 0: a.e(f"s_and_b32 s{sT0}, s2, -8\ns_add_u32 s{sT0}, s{sT0}, s{sW}\ns_lshl_b32 s{sT0}, s{sT0}, 7\ns_add_u32 s{sWP}, s{sWO}, s{sT0}\ns_addc_u32 s{sWP+1}, s{sWO+1}, 0")
        for k in range(k0, min(25, k0 + opt.wpf[1])): a.e(f"s_load_dwordx2 {sr(sJE,2)}, {sr(sWP,2)}, {k*32768 + 60}")
    for k, h in enumerate(opt.wt):
        if h != n: continue
        with only_par(k & 3, sW): a.e(f"""s_lshr_b32 s{sT0}, s2, 3
s_mul_i32 s{sT0}, s{sT0}, 3200
v_lshlrev_b32 v{vP+3}, 2, v{vL16}
s_add_u32 s{sT0}, s{sT0}, {k*102400}
s_mov_b32 exec_hi, 0x3ffff
buffer_load_dword v{vP+4}, v{vP+3}, {sr(sWO,4)}, s{sT0} offen
s_mov_b32 exec_hi, -1""")
    for s in ([] if opt.nowo else wol):
        khs, i = divmod(s, 10); pp, u = divmod(i, 5)
        if u < 4: so = f"s_add_u32 s{sT2}, s{sPJ + 2*pp + u//2}, {(320*khs + 40*(u%2))*1280}"
        else: so = f"s_min_u32 s{sT2}, s{sPJ+2*pp}, s{sPJ+2*pp+1}\ns_add_u32 s{sT2}, s{sT2}, {320*khs*1280}"
        if "h" in opt.dg: so = f"s_mov_b32 s{sT2}, s{sHGO}"
        ld = f"buffer_load_dwordx4 v{vWoA if u < 4 else vWoB}, {sr(sWO,4)}, s{sT2} offen{opt.wopol} lds"
        m0 = f"s_add_u32 m0, s{sM0B}, {L_W + khs*51200 + i*5120}\n{so}"
        if opt.wo64 == 1:
            a.e(f"s_bitcmp1_b32 s{sWM}, {s}\ns_cbranch_scc0 L_wo{s}\n{m0}\n{ld}")
            a.label(f"L_wo{s}")
            wo_last = len(a.lines)
        elif opt.wo64 == 2:
            a.e(f"{m0}\ns_bitcmp1_b32 s{sWM}, {s}\ns_cselect_b64 exec, -1, 0")
            a.vload(ld, ("wo", s))
            a.e("s_mov_b64 exec, -1")
        else:
            a.e(m0)
            if s == wol[0]: a.e("s_mov_b32 exec_hi, 0xff")
            a.vload(ld, ("wo", s))
            if s == wol[-1]: a.e("s_mov_b32 exec_hi, -1")
    if n == NB:
        with only_par(1, sPE): wr3(vA0, 3072, vO + 16)
        a.e(SETF(8))
    if n == NB + 1:
        with only_par(0, sPE):
            light("k7"); a.e("s_waitcnt lgkmcnt(0)"); add11(vO + 16, vO, True)
            normalize(vO + 16, vR1 + 12, "L_defer")
            finish(vO + 16, vR1 + 12, "e")
            a.e(SETF(24).replace(f"v{vFa},", f"v{vFe},"))
            a.label("L_deferred")
            light("k8")
    padn(n + 0.5)
    E(32)
a.e("s_nop 1")
a.e(pv(NS - 1, 3))
if opt.lpos == 3: late1()
stamp("loop end")
light("t0")
vSum = vO + 48
a.e(f"s_cmp_eq_u32 s{sTT}, 3\ns_cbranch_scc0 L_other")
wst = []
def wstart(p0=opt.p0):
    if opt.okc == 3:
        k = len(wst); wst.append(k)
        a.label(f"L_ws{k}")
        a.e(f"ds_read_b64 {vr(vT0,2)}, v{vF8} offset:16")
    for j in range(25):
        if j == p0 and opt.okc == 3: a.e(f"s_waitcnt lgkmcnt({min(15, 2*p0)})\nv_and_b32 v{vT0}, v{vT0}, v{vT1}\nv_cmp_ne_u32 vcc, 0x01010101, v{vT0}\ns_cbranch_vccnz L_wr{k}")
        if j == p0: [opoll(0, jj) for jj in range(2)]
        trd(ring[js[j]], *js[j], ("fr",) + js[j])
padn("t3")
a.label("L_t3")
a.e(f"s_waitcnt lgkmcnt(0)\nv_and_b32 v{vRdy}, v{vRdy}, v{vRdy+1}\nv_cmp_ne_u32 vcc, 1, v{vRdy}\ns_cbranch_vccnz L_t3w")
add11(vRc[0], vRc[2])
stamp("L rd")
light("t1")
add11(vSum, vRc[0], True)
normalize(vSum, vRc[0], "L_fallback")
finish(vSum, vPkd, "l")
a.e(SETF(24))
stamp("O stored")
light("t2"); light("r2")
a.e(f"s_cmp_eq_u32 s{sDEF}, 0\ns_cbranch_scc0 L_dfb")
padn("role")
a.label("L_role")
a.e(f"s_cmp_eq_u32 s{sU}, 0\ns_cbranch_scc1 L_work")
def otest(e, jj):
    b = vOB[e]
    a.e(f"v_max_u32 v{vT0}, v{b+16+2*jj}, v{b+17+2*jj}\nv_max3_u32 v{vT0}, v{vT0}, v{b+8*jj+3}, v{b+8*jj+7}\nv_cmp_eq_u32 vcc, -1, v{vT0}")
fstubs = []; gdone = []
def fread(reg, op, addr, off): return f"{op} v{reg}, v{addr} offset:{off}"
def fcheck(name, rd, reg, val):
    a.wait_lg(name)
    a.label(f"L_fc{name}")
    a.e(f"v_cmp_ne_u32 vcc, {val}, v{reg}\ns_cbranch_vccnz L_fs{name}")
    fstubs.append((name, rd))
def pub(tile): return fread(vRdy, "ds_read_u16", vF8, 24 + 2 * tile)
def project(first):
    a.lg = [("fr",) + js[j] for j in range(25) for q in range(2)]
    vm = [(0, 0)] * 3 + [(0, 1)] * 3
    order = opt.order
    sfx = "f" if first else ""
    side = {}
    assert opt.ndef >= 1
    def at(i, f): side.setdefault(i, []).append(f)
    def wr(tile, t, c=""): return lambda: a.lds(f"ds_write_b128 v{vPx}, {vr(vAC[tile][t],4)} offset:{5632*tile + 32*t}{c}", "w")
    def flag(tile):
        def f(): a.e(SETF(32 + 4 * tile)); a.lg.append("w"); light(f"g{tile}")
        return f
    def entry():
        a.label("L_work2"); a.lg = []
    at(24, entry)
    for k, tile in enumerate(order):
        b = vOB[tile]
        for jj in range(2):
            i = 25 * k + 10 * jj - 1
            sp = 0 if jj == 0 and k != 2 else 1
            at(i - 2 * sp, lambda tile=tile, jj=jj, b=b: a.e(f"s_waitcnt vmcnt({vm[::-1].index((tile, jj))})\nv_max_u32 v{vT0}, v{b+16+2*jj}, v{b+17+2*jj}"))
            at(i - sp, lambda jj=jj, b=b: a.e(f"v_max3_u32 v{vT0}, v{vT0}, v{b+8*jj+3}, v{b+8*jj+7}"))
            def br(tile=tile, jj=jj):
                a.e(f"v_cmp_eq_u32 vcc, -1, v{vT0}\ns_cbranch_vccnz L_oslow{tile}{jj}{sfx}")
                a.label(f"L_ochk{tile}{jj}{sfx}")
                light(f"k{tile}" if jj == 0 else "t3" if tile == 3 else "-")
            at(i, br)
        if opt.w32: pass
        elif k < opt.ndef:
            for t in range(5): at(25 * (k + 1) + opt.wsl[t], wr(tile, t, " ; spaced"))
            at(25 * (k + 1) + opt.wsl[4], flag(tile))
        else:
            for t in range(3): at(25 * k + 16 + 3 * t, wr(tile, t, " ; spaced"))
            side.setdefault(25 * k + 24, [])[0:0] = [lambda: a.e("s_nop 3"), wr(tile, 3, " ; spaced"), lambda: a.e("s_nop 2"), wr(tile, 4), flag(tile)]
        if k == 0 or not first: gdone.append((tile, sfx))
    for x, (tl, jx) in opt.pp.items():
        i = 25 * order.index(tl) + jx
        if first and i < 25: i = opt.ppf
        assert i + 6 < 24 or i > 25
        if i > 25 and i - 6 < 24: side[24].insert(1, lambda x=x: a.lds(pub(x), f"p{x}{sfx}"))
        else: at(i - 6, lambda x=x: a.lds(pub(x), f"p{x}{sfx}"))
        at(i - 1, lambda x=x: fcheck(f"p{x}{sfx}", pub(x), vRdy, "0x0101"))
        for jj in range(2):
            keep = a.lines; a.lines = []; opoll(x, jj); ls = [l.replace(f's{sT1}', f's{sT2}') for l in a.lines]; a.lines = keep
            for c in range(3):
                def ld(x=x, jj=jj, part=ls[:2] if c == 0 else ls[c+1:c+2]): a.lines.extend(part); vm.append((x, jj))
                side.setdefault(min(i + 3 * jj + c, 25 * order.index(x) - 4), []).append(ld)
    if opt.pre3 is not None: at(75 + opt.pre3, lambda: (a.e(SETF(56)), a.lg.append("w")))
    for f in side.get(-1, ()): f()
    wq = []
    def w1(c):
        r, tile, t, i = wq.pop(0)
        a.lds(f"ds_write_b32 v{vPx}, v{vAC[tile][t]+i} offset:{5632*tile + 176*i + 32*t}{c}", "w")
        if t == 4 and i == 3: flag(tile)()
    for k, tile in enumerate(order):
        for j, (u, t) in enumerate(js if k < opt.ndef else jd):
            a.wait_lg(("fr", u, t))
            acc = vAC[tile][t]
            A, B = vr(ring[u,t],4), vr(vOB[tile]+4*u,4)
            if opt.w32: A, B = B, A
            a.e(f"v_mfma_f32_16x16x32_bf16 {vr(acc,4)}, {A}, {B}, {'0' if u == 0 else vr(acc,4)}")
            if first and j == 24: return
            for f in side.get(25 * k + j, ()): f()
            if opt.w32:
                n = 25 * k + j
                if k == 2 and j == 0: assert not any(x[1] == order[0] for x in wq)
                if u == 4: wq += [(max(n + 3, 24), tile, t, i) for i in range(4)]
                cap = opt.wcap[k] if n not in side else opt.wcs
                for q in range(cap):
                    if wq and wq[0][0] <= n: w1(" ; spaced")
    if opt.w32:
        while wq:
            if wq[0][0] > 99:
                d = vr(vAC[wq[0][1]][wq[0][2]], 4)
                p = max(i for i, l in enumerate(a.lines) if l.startswith(f"    v_mfma_f32_16x16x32_bf16 {d},"))
                st = sum(parse(l).get("nop", 1) for l in a.lines[p+1:] if parse(l))
                if st < 8: a.e(f"s_nop {7 - st}")
            w1(" ; spaced")
    a.e("s_waitcnt lgkmcnt(0)")
def worker(g):
    a.e(f"s_setprio {opt.pw[g]}")
    vm = []
    nred = [0]
    sOC, vCl = sKV, 182
    if opt.clean: a.e(f"s_mul_i32 s{sOC}, s{sTB}, 81920\ns_lshl_b32 s{sT0}, s{sHGO}, 4\ns_add_u32 s{sOC}, s{sOC}, s{sT0}\ns_mul_i32 s{sT0}, s{sJ}, 640\ns_add_u32 s{sOC}, s{sOC}, s{sT0}\ns_add_u32 s{sOC}, s{sOC}, {A_O}")
    def reduce(tile, last):
        padn(f"r{tile}")
        Q = ([118, 122, 126, 130, 134, 18, 22, 26, 30], list(range(38, 74, 4)))[nred[0] % 2]; nred[0] += 1
        a.e("s_mov_b32 exec_hi, 0xff")
        def prd():
            for h in range(2):
                for j in range(4):
                    ad, of = vRb if j > 1 else vRa, (j % 2) * 25600 + tile * 5632
                    a.e(f"ds_read_b128 {vr(Q[4*h+j],4)}, v{ad} offset:{of + h*2816}")
        rd = f"ds_read_b32 v{vRdy}, v{vF8} offset:{32+4*tile}"
        if last and opt.pre3 is not None:
            a.label(f"L_rv{tile}")
            a.e(f"ds_read_b32 v{vRdy}, v{vF8} offset:56\n{SPIN}\ns_waitcnt lgkmcnt(0)\nv_cmp_ne_u32 vcc, 0x01010101, v{vRdy}\ns_cbranch_vccnz L_rv{tile}")
            a.label(f"L_rw{tile}")
            a.e(rd); prd()
            a.e(f"{SPIN}\ns_waitcnt lgkmcnt(8)\nv_cmp_ne_u32 vcc, 0x01010101, v{vRdy}\ns_cbranch_vccnz L_rw{tile}")
        else:
            if opt.sp0:
                a.e(rd); prd()
                a.e(f"s_waitcnt lgkmcnt(8)\nv_cmp_ne_u32 vcc, 0x01010101, v{vRdy}\ns_cbranch_vccz L_rd{tile}")
            a.label(f"L_rw{tile}")
            a.e(f"{rd}\n{SPIN}\ns_waitcnt lgkmcnt(0)\nv_cmp_ne_u32 vcc, 0x01010101, v{vRdy}\ns_cbranch_vccnz L_rw{tile}")
            prd()
        a.label(f"L_rd{tile}")
        if last: light("t4")
        k = opt.order.index(tile)
        if k == opt.cl0:
            for t in opt.clean:
                a.e(f"s_add_u32 s{sT1}, s{sOC}, {t*20480}\nbuffer_load_dwordx4 {vr(vCl+4*t,4)}, v{vL16}, {sr(sWS,4)}, s{sT1} offen sc1")
        a.e(f"s_add_u32 s{sT1}, s{sOB}, {tile*20480}")
        for h in range(2):
            B = Q[4*h:4*h+4]
            a.e(f"s_waitcnt lgkmcnt({6-4*h})")
            for i in range(4): a.e(f"v_add_f32 v{B[0]+i}, v{B[0]+i}, v{B[1]+i}")
            a.e(f"s_waitcnt lgkmcnt({4-4*h})")
            for i in range(4): a.e(f"v_add_f32 v{B[2]+i}, v{B[2]+i}, v{B[3]+i}")
            for i in range(4): a.e(f"v_add_f32 v{B[0]+i}, v{B[0]+i}, v{B[2]+i}")
            for i in range(2): a.e(f"v_cvt_pk_bf16_f32 v{Q[8]+2*h+i}, v{B[0]+2*i}, v{B[0]+2*i+1}")
        if tile not in opt.noout: a.e(f"buffer_store_dwordx4 {vr(Q[8],4)}, v{vGo}, {sr(sOUT,4)}, s{sT1} offen{opt.outpol3 if last else opt.outpol}")
        if k == opt.cl0 and opt.clean: a.e("s_waitcnt vmcnt(1)")
        for t in opt.clean:
            if opt.clean[t] != k: continue
            c = vCl + 4 * t
            a.e(f"v_max3_u32 v{vT0}, v{c}, v{c+1}, v{c+2}\nv_max_u32 v{vT0}, v{vT0}, v{c+3}\ns_add_u32 s{sT1}, s{sOC}, {t*20480}\nv_cmp_ne_u32 vcc, -1, v{vT0}\ns_and_b64 exec, exec, vcc\ns_cbranch_execz L_cl{t}")
            a.e(f"buffer_store_dwordx4 {vr(c,4)}, v{vL16}, {sr(sWS,4)}, s{sT1} offen sc1")
            a.label(f"L_cl{t}")
            a.e("s_mov_b32 exec_lo, -1\ns_mov_b32 exec_hi, 0xff")
        a.e("s_mov_b32 exec_hi, -1")
        vm.append("st")
        a.lg = []
    for k, tile in enumerate(opt.order):
        if k in opt.wb:
            a.e(f"s_and_b32 s{sT0}, s2, {opt.wbm}\ns_or_b32 s{sT0}, s{sT0}, s{sJ}\ns_cbranch_scc1 L_wb{k}\nbuffer_wbl2 sc1")
            a.label(f"L_wb{k}")
        reduce(tile, tile == 3)
def wstubs(g):
    while gdone:
        tile, sfx = gdone.pop(0)
        for jj in range(2):
            a.label(f"L_oslow{tile}{jj}{sfx}")
            a.e(SPIN)
            opoll(tile, jj)
            if jj == 0:
                a.e("s_waitcnt vmcnt(3)")
                otest(tile, 1)
                a.e(f"s_cbranch_vccz L_ok{tile}{sfx}")
                opoll(tile, 1)
                a.label(f"L_ok{tile}{sfx}")
            a.e("s_waitcnt vmcnt(0)")
            otest(tile, jj)
            a.e(f"s_cbranch_vccnz L_oslow{tile}{jj}{sfx}\ns_branch L_ochk{tile}{jj}{sfx}")
    while fstubs:
        name, rd = fstubs.pop()
        a.label(f"L_fs{name}")
        a.e(f"{rd}\n{SPIN}\ns_waitcnt lgkmcnt(0)\ns_branch L_fc{name}")
worker(1)
a.label("L_fin")
stamp("out st")
light("t5")
a.e(f"s_or_b32 s{sT0}, s2, s{sW}\ns_cmp_eq_u32 s{sT0}, 0\ns_cbranch_scc0 L_noep")
a.e(f"s_mov_b64 exec, 1\nv_mov_b32 v{vT1}, s{sTAG}\nv_mov_b32 v{vT0}, {A_EP}\nbuffer_store_dword v{vT1}, v{vT0}, {sr(sWS,4)}, 0 offen sc1\ns_mov_b64 exec, -1")
a.label("L_noep")
if opt.debug:
    a.e("s_waitcnt vmcnt(0)")
    stamp("end")
    for nm, r in LIGHT.items():
        i = nstamp[0]; nstamp[0] += 1; STAMPS.append(nm)
        a.e(f"v_writelane_b32 v17, s98, {i}\nv_writelane_b32 v17, s{r}, {32+i}")
    a.e(f"s_lshl_b32 s{sT0}, s2, 3\ns_add_u32 s{sT0}, s{sT0}, s{sW}\ns_lshl_b32 s{sT0}, s{sT0}, 8\ns_add_u32 s{sT0}, s{sT0}, {A_DBG}")
    a.e(f"v_writelane_b32 v17, s{sSPIN}, 31\nv_lshlrev_b32 v{vT0}, 2, v{vLane}")
    a.e(f"buffer_store_dword v17, v{vT0}, {sr(sWS,4)}, s{sT0} offen")
    if opt.dbgout:
        assert nstamp[0] <= 15
        srd(sX, 16, 256)
        a.e(f"v_subrev_u32 v{vT1}, s94, v17\nv_cmp_eq_u32 vcc, 0, v17\nv_cndmask_b32 v{vT1}, v{vT1}, v17, vcc\ns_not_b32 s{sT0}, s94\ns_and_b32 s{sT0}, s{sT0}, 0xffffff\ns_and_b32 s98, s98, 0xffffff\nv_writelane_b32 v{vT1}, s{sT0}, 0\nv_writelane_b32 v{vT1}, s98, 15")
        a.e(f"s_mov_b64 exec, 0xffff\nbuffer_atomic_umax v{vT1}, v{vT0}, {sr(sX,4)}, 0 offen")
if opt.pad:
    if opt.pad == "end": a.e("s_waitcnt vmcnt(0)\ns_memrealtime s[92:93]")
    a.label("L_pad")
    a.e("s_memrealtime s[90:91]\ns_waitcnt lgkmcnt(0)\ns_sub_u32 s90, s90, s92\ns_cmp_lt_u32 s90, 6000\ns_cbranch_scc1 L_pad")
a.label("L_end")
a.e("s_endpgm")
a.raw(";PAD L_t2")
a.label("L_t3w")
a.e(SPIN)
l2reads(); preads()
a.e("s_branch L_t3")
a.label("L_t2w")
a.e(SPIN)
preads()
a.label("L_t2")
a.e(f"s_waitcnt lgkmcnt(0)\nv_cmp_ne_u32 vcc, 1, v{vRdy}\ns_cbranch_vccnz L_t2w\ns_nop 4")
add11(vSum, vRc[0])
wr3(vX1, 3072, vSum)
a.e(SETF(48))
light("t1")
a.e("s_branch L_role")
a.raw(";PAD L_other")
a.label("L_other")
a.e(f"s_cmp_eq_u32 s{sTT}, 2\ns_cbranch_scc1 L_t2")
if opt.okc == 2: okc("")
a.e(f"s_cmp_eq_u32 s{sTT}, 0\ns_cbranch_scc1 L_t0")
wstart(opt.p0f)
if opt.g0e:
    a.e(f"s_setprio {opt.pg0}")
    project(True)
    a.e(f"s_setprio {opt.prd}")
    light("g9")
else: vRc[0] = vKr
lreads()
if opt.l2p == 0: l2reads()
a.label("L_lrd")
a.e(f"s_waitcnt lgkmcnt({0 if opt.l2p else 4})\nv_cmp_ne_u32 vcc, 0x01010101, v{vRdy}\ns_cbranch_vccnz L_lslow")
if opt.l2p == 1: l2reads()
add11(vRc[0], vRc[1])
if opt.l2p == 2: l2reads()
add11(vSum, vRc[0])
if opt.l2p == 3: l2reads()
a.label("L_l2")
a.e(f"s_waitcnt lgkmcnt(0)\nv_cmp_ne_u32 vcc, 1, v{vRdy+1}\ns_cbranch_vccnz L_l2w")
light("t1")
add11(vSum, vRc[2], True)
normalize(vSum, vRc[0], "L_fallback")
finish(vSum, vPkd, "m")
a.e(SETF(24))
light("t2")
a.e(f"s_setprio {opt.pw[0]}\ns_branch {'L_work2' if opt.g0e else 'L_work'}")
a.label("L_lslow")
a.e(SPIN)
a.e(f"ds_read_b32 v{vRdy}, v{vFb}\ns_waitcnt lgkmcnt(0)\nv_cmp_ne_u32 vcc, 0x01010101, v{vRdy}\ns_cbranch_vccnz L_lslow")
lreads()
if opt.l2p == 0: l2reads()
a.e("s_branch L_lrd")
a.label("L_l2w")
a.e(SPIN)
l2reads()
a.e("s_branch L_l2")
a.raw(";PAD L_t0")
a.label("L_t0")
a.e("s_nop 5")
wr3(vX1, 3072, vSum)
a.e(SETF(48))
light("t1")
a.e(f"s_cmp_eq_u32 s{sDEF}, 0\ns_cbranch_scc0 L_dfb")
wstart()
a.label("L_work")
a.e(f"s_setprio {opt.pw[0]}")
project(False)
a.e("s_branch L_fin")
wstubs(0)
a.label("L_dfb")
a.e(f"s_mov_b32 s{sDEF}, 0\ns_mov_b32 s{sO0}, s{sE0}\ns_mov_b32 s{sO1}, s{sE1}\nv_mov_b32 v{vFa}, v{vFe}")
for i in range(4): a.e(f"v_mov_b32 v{vQ[3]+i}, v{vQ[1]+i}")
for i in range(2): a.e(f"v_mov_b32 v{vQH[1]+i}, v{vQH[0]+i}")
a.e("s_branch L_fallback")
a.label("L_eslow")
a.e(SPIN)
a.e(f"ds_read_b32 v{vT0}, v{vFb} offset:8\ns_waitcnt lgkmcnt(0)\nv_cmp_ne_u32 vcc, 0x01010101, v{vT0}\ns_cbranch_vccnz L_eslow")
ereads()
a.e("s_branch L_erd")
if opt.okc < 3:
    a.label("L_okslow")
    a.e(SPIN)
    a.e(f"ds_read_b64 {vr(vT0,2)}, v{vF8} offset:16\ns_branch L_okc")
else:
    for k in range(3):
        a.label(f"L_wr{k}")
        a.e(f"{SPIN}\ns_waitcnt lgkmcnt(0)\ns_branch L_ws{k}")
for c in slow_stubs:
    a.label(f"L_slow{c}")
    a.e(f"s_add_u32 s{sSPIN}, s{sSPIN}, 1\ns_cmp_lt_u32 s{sSPIN}, 1000000\ns_cbranch_scc0 L_end")
    a.e(f"s_mov_b64 exec, {sr(sMSK,2)}\n{FLOAD}\ns_mov_b64 exec, -1\ns_waitcnt vmcnt(0)")
    flag_cmp()
    a.e(f"s_nop 0\ns_and_b32 s{sT0}, s{sMSK + c//4}, 0x{0xff << (8*(c%4)):x}\ns_cbranch_scc1 L_slow{c}\ns_branch L_back{c}")
for T, tag in ostubs:
    a.label(f"L_osc{tag}")
    ostore(T, " sc1", tag)
    a.e(f"s_branch L_osd{tag}")
a.label("L_defer")
a.e(f"s_mov_b32 s{sDEF}, 1\ns_branch L_deferred")
a.label("L_slowf0")
a.e(f"s_add_u32 s{sSPIN}, s{sSPIN}, 1\ns_cmp_lt_u32 s{sSPIN}, 1000000\ns_cbranch_scc0 L_end")
a.e(f"{F0}\ns_waitcnt vmcnt(0)\ns_branch L_f0")
a.label("L_slowf2")
a.e(f"s_add_u32 s{sSPIN}, s{sSPIN}, 1\ns_cmp_lt_u32 s{sSPIN}, 1000000\ns_cbranch_scc0 L_end")
a.e(f"buffer_load_dword v{vT1}, v{vT0}, {sr(sWS,4)}, s{sF2} offen sc1\ns_waitcnt vmcnt(0)\ns_branch L_f2")
a.label("L_fallback")
fS = 70; fM = vR1 + 20; fK = vKr; fV = vVr
def f_scores():
    a.e(f"buffer_load_dwordx4 {vr(fK,4)}, v{vL16}, {sr(sWS,4)}, s{sT0} offen sc1")
    a.e(f"buffer_load_dwordx2 {vr(fK+4,2)}, v{vK1a}, {sr(sWS,4)}, s{sT0} offen offset:1024 sc1")
    a.e(f"buffer_load_dwordx4 {vr(fV,4)}, v{vVa}, {sr(sWS,4)}, s{sT0} offen offset:1536 sc1")
    a.e(f"buffer_load_dwordx4 {vr(fV+4,4)}, v{vVa}, {sr(sWS,4)}, s{sT0} offen offset:2304 sc1")
    a.e("s_waitcnt vmcnt(0)\ns_mov_b32 exec_lo, 0x00440000\ns_mov_b32 exec_hi, 0x00440000")
    for i in range(8): a.e(f"v_mov_b32 v{fV+i}, 0x3f803f80")
    a.e("s_mov_b64 exec, -1")
    a.e(f"v_mfma_f32_32x32x4_2b_bf16 {vr(fS,32)}, {vr(fK+4,2)}, {vr(vQH[1],2)}, 0 cbsz:1\ns_nop 15\ns_nop 1")
    a.e(f"v_mfma_f32_32x32x16_bf16 {vr(fS+16,16)}, {vr(fK,4)}, {vr(vQ[3],4)}, {vr(fS+16,16)}\ns_nop 11")
a.e(f"v_mov_b32 v{fM}, 0xff800000\ns_mov_b32 s{sT0}, 0")
a.label("L_fb1")
f_scores()
for i in range(0, 16, 2): a.e(f"v_max3_f32 v{fM}, v{fM}, v{fS+16+i}, v{fS+17+i}")
a.e(f"s_add_u32 s{sT0}, s{sT0}, 4096\ns_cmp_lt_u32 s{sT0}, 262144\ns_cbranch_scc1 L_fb1")
a.e(f"v_mov_b32 v{fM+1}, v{fM}\ns_nop 1\nv_permlane32_swap_b32 v{fM}, v{fM+1}\ns_nop 1\nv_max_f32 v{fM}, v{fM}, v{fM+1}")
for i in range(16): a.e(f"v_mov_b32 v{vSum+i}, 0")
a.e(f"v_mov_b32 v{vIx}, 0xdddddddd\ns_mov_b32 s{sT0}, 0")
a.label("L_fb2")
f_scores()
for i in range(16): a.e(f"v_sub_f32 v{fS+16+i}, v{fS+16+i}, v{fM}")
for i in range(16): a.e(f"v_exp_f32 v{fS+16+i}, v{fS+16+i}")
a.e("s_nop 1")
for g in range(2):
    a.e(f"v_smfmac_f32_32x32x32_bf16 {vr(vSum,16)}, {vr(fV+4*g,4)}, {vr(fS+16+8*g,8)}, v{vIx}")
a.e(f"s_add_u32 s{sT0}, s{sT0}, 4096\ns_cmp_lt_u32 s{sT0}, 262144\ns_cbranch_scc1 L_fb2")
a.e("s_nop 15")
with only_par(0, sU): wstart()
scale(vSum, vPkd)
for i in range(5): a.e(f"v_min_u32 v{vPkd+i}, -2, v{vPkd+i}")
a.label("L_last")
a.e("s_branch L_ostl")
a.raw(open("footer.txt").read())
txt = a.text()
def addresses(lines):
    import subprocess, re
    open("_g5.s", "w").write("\n".join(lines))
    r = subprocess.run(["clang", "-x", "assembler", "-target", "amdgcn-amd-amdhsa", "-mcpu=gfx950", "-c", "_g5.s", "-o", "_g5.o"], capture_output=True, text=True)
    assert r.returncode == 0, r.stderr[:2000]
    d = subprocess.run(["llvm-objdump", "-d", "--mcpu=gfx950", "_g5.o"], capture_output=True, text=True).stdout
    d = d[d.index("_kernel>:"):]
    ad = [int(m.group(1), 16) for m in re.finditer(r"// ([0-9A-F]{12}):", d)]
    k0 = next(i for i, l in enumerate(lines) if l.endswith("_kernel:"))
    idx = [i for i in range(k0, len(lines)) if lines[i].startswith("    ") and parse(lines[i])]
    assert len(idx) == len(ad), (len(idx), len(ad))
    return dict(zip(idx, ad))
if HOPRET:
    lines = txt.split("\n")
    for t, site in HOPRET.items():
        if t.startswith("L_"):
            i = lines.index(t + ":")
            k = i - 1
            while not parse(lines[k]): k -= 1
            assert parse(lines[k])["op"] in ("s_branch", "s_endpgm") and k == i - 1, (t, lines[k])
            lines[i:i] = [f"H_{t}:", f"    s_branch R_{site}"]
    pg = sorted(t for t in HOPRET if t.startswith("P"))
    end = lines.index("L_last:")
    for n, t in enumerate(pg):
        ad = addresses(lines[:end] + [f"H_{x}:" for x in pg[n:]] + lines[end:])
        full = True
        for i in sorted(ad):
            if i >= end: raise SystemExit("no spot for " + t)
            l = lines[i].strip()
            if ad[i] >= int(t[1:]) * 4096 and full: break
            if " exec" in l.split(",")[0]: full = l.endswith(", -1")
        print(t, hex(ad[i]), l, file=sys.stderr)
        lines[i:i] = [f"H_{t}:", f"    s_cbranch_execz R_{HOPRET[t]}"]; end += 2
    txt = "\n".join(lines)
def symbols(txt):
    import subprocess
    open("_g9.s", "w").write(txt)
    r = subprocess.run(["clang", "-x", "assembler", "-target", "amdgcn-amd-amdhsa", "-mcpu=gfx950", "-c", "_g9.s", "-o", "_g9.o"], capture_output=True, text=True)
    assert r.returncode == 0, r.stderr[:2000]
    d = subprocess.run(["llvm-objdump", "-t", "_g9.o"], capture_output=True, text=True).stdout
    return {l.split()[-1]: int(l.split()[0], 16) for l in d.split("\n") if " .text" in l}
for lab in re.findall(r"^;PAD (\w+)$", txt, re.M):
    n = (opt.al[lab] - symbols(txt)[lab]) % 64 // 4 if lab in opt.al else 0
    txt = txt.replace(f";PAD {lab}\n", "    s_endpgm\n" * n)
if opt.al is not None:
    sy = symbols(txt); print(sys.argv[1], {k: sy[k] % 64 for k in ("L_bq", "L_t3", "L_role", "L_t2", "L_other", "L_t0", "L_work")}, file=sys.stderr)
TL = txt.split("\n")
for p in check(txt, tr2=opt.tr2):
    if not TL[int(p.split(":")[0][5:]) - 1].endswith("; spaced"): print("HAZARD", p, file=sys.stderr)
open(sys.argv[1], "w").write(txt)
if opt.debug: open(sys.argv[1] + ".stamps", "w").write("\n".join(STAMPS))
```
